```python
import torch

def _softmax(x, axis=-1):
    return torch.softmax(x, dim=axis)

def _gelu(x):
    return torch.nn.functional.gelu(x, approximate='tanh')

def _silu(x):
    return torch.nn.functional.silu(x)

def _sigmoid(x):
    return torch.sigmoid(x)

def _layernorm(x, axis=-1, eps=1e-05):
    m = x.mean(dim=axis, keepdim=True)
    v = x.var(dim=axis, keepdim=True, unbiased=False)
    return (x - m) / torch.sqrt(v + eps)

def _scatter_add(tgt, idx, src, axis=0):
    return tgt.clone().index_add_(axis, idx, src)

def _segment_sum(src, seg, n):
    out = torch.zeros((n,) + src.shape[1:], dtype=src.dtype)
    return out.index_add_(0, seg, src)

def _pad(x, pw):
    flat = tuple((v for pair in reversed(pw) for v in pair))
    return torch.nn.functional.pad(x, flat)
kernel_name = 'recurrent_scan__memory_aug_recurrent_mem_tr__dense_activation_silu__prompt'

def setup_inputs():

    _w = lambda a: (lambda t: t.to(torch.bfloat16) if t.is_floating_point() else t)(torch.as_tensor(a))

    def _A_setup():
        B, S, Dm = (1, 2048, 576)
        H, Dh = (32, 128)
        M, seg = (8, 32)
        seg = min(seg, S)
        S = S // seg * seg
        return {'x': _w((lambda *s: torch.randn(*s, dtype=torch.bfloat16) * 0.05)(B, S, Dm)), 'mem0': _w((lambda *s: torch.randn(*s, dtype=torch.bfloat16) * 0.8)(B, M, Dm)), 'Wq': _w((lambda *s: torch.randn(*s, dtype=torch.bfloat16) * 1.6)(Dm, H, Dh) * Dm ** (-0.5)), 'Wk': _w((lambda *s: torch.randn(*s, dtype=torch.bfloat16) * 1.6)(Dm, H, Dh) * Dm ** (-0.5)), 'Wv': _w((lambda *s: torch.randn(*s, dtype=torch.bfloat16) * 0.8)(Dm, H, Dh) * Dm ** (-0.5)), 'Wo': _w((lambda *s: torch.randn(*s, dtype=torch.bfloat16) * 0.8)(H, Dh, Dm) * (H * Dh) ** (-0.5)), 'seg_len': seg}
    _A_in = _A_setup()

    def _B_setup():
        B, S, D, F = (1, 2048, 576, 4608)
        return {'x': _w((lambda *s: torch.randn(*s, dtype=torch.bfloat16) * 0.05)(B, S, D)), 'w1': _w((lambda *s: torch.randn(*s, dtype=torch.bfloat16) * 0.8)(D, F) * D ** (-0.5)), 'w2': _w((lambda *s: torch.randn(*s, dtype=torch.bfloat16) * 0.2)(F, D) * F ** (-0.5))}
    _B_in = _B_setup()
    return {'A_x': _A_in['x'], 'A_mem0': _A_in['mem0'], 'A_Wq': _A_in['Wq'], 'A_Wk': _A_in['Wk'], 'A_Wv': _A_in['Wv'], 'A_Wo': _A_in['Wo'], 'A_seg_len': _A_in['seg_len'], 'B_x': _B_in['x'], 'B_w1': _B_in['w1'], 'B_w2': _B_in['w2']}

def reference(A_x, A_mem0, A_Wq, A_Wk, A_Wv, A_Wo, A_seg_len, B_x, B_w1, B_w2):

    def _A_ref(x, mem0, Wq, Wk, Wv, Wo, seg_len):
        B, S, Dm = x.shape
        H, Dh = (Wq.shape[1], Wq.shape[2])
        M = mem0.shape[1]
        scale = Dh ** (-0.5)
        n_seg = S // seg_len
        L = M + seg_len
        idx = torch.arange(L)
        mask = (idx[:, None] < M) | (idx[:, None] >= idx[None, :])
        mem = mem0
        outs = []
        for s in range(n_seg):
            xs = x[:, s * seg_len:(s + 1) * seg_len, :].clone()
            h = torch.concatenate([mem, xs], axis=1)
            q = torch.einsum('btd,dhe->bhte', h, Wq)
            k = torch.einsum('btd,dhe->bhte', h, Wk)
            v = torch.einsum('btd,dhe->bhte', h, Wv)
            scores = torch.einsum('bhqe,bhke->bhqk', q, k) * scale
            scores = torch.where(mask[None, None], scores, -1000000000.0)
            p = _softmax(scores, axis=-1)
            o = torch.einsum('bhqk,bhke->bhqe', p, v)
            o = torch.einsum('bhte,hed->btd', o, Wo)
            mem = o[:, :M, :].clone()
            outs.append(o[:, M:, :])
        return torch.concatenate(outs, axis=1)

    def _B_ref(x, w1, w2):
        h = torch.einsum('bsd,df->bsf', x, w1)
        h = _silu(h)
        out = torch.einsum('bsf,fd->bsd', h, w2)
        return out
    x = A_x
    xn = _layernorm(x, axis=-1)
    s = _A_ref(xn, A_mem0, A_Wq, A_Wk, A_Wv, A_Wo, A_seg_len)
    g = _silu(_B_ref(xn, B_w1, B_w2))
    return x + s * g
```

```python
import re

_REG = re.compile(r'(?<![\w.])([vas])(?:\[(\d+):(\d+)\]|(\d+))(?![\w\[])')


def regs_of(tok):
    out = set()
    for m in _REG.finditer(tok):
        k = m.group(1)
        if m.group(2) is not None:
            for r in range(int(m.group(2)), int(m.group(3)) + 1):
                out.add((k, r))
        else:
            out.add((k, int(m.group(4))))
    if re.search(r'\bvcc\b', tok):
        out.add(('s', 106)); out.add(('s', 107))
    if re.search(r'\bexec\b', tok):
        out.add(('s', 126)); out.add(('s', 127))
    if re.search(r'\bm0\b', tok):
        out.add(('s', 124))
    return out


def split_ops(s):
    ops, depth, cur = [], 0, ''
    for ch in s:
        if ch in '[(':
            depth += 1
        if ch in '])':
            depth -= 1
        if ch == ',' and depth == 0:
            ops.append(cur.strip()); cur = ''
        else:
            cur += ch
    if cur.strip():
        ops.append(cur.strip())
    return ops


TRANS = ('v_exp_f32', 'v_log_f32', 'v_rcp_f32', 'v_rsq_f32', 'v_sqrt_f32', 'v_sin_f32', 'v_cos_f32')


class Ins:
    __slots__ = ('text', 'mn', 'w', 'r', 'kind', 'passes', 'srcc', 'states', 'dpp', 'sdata', 'ab')

    def __init__(self, text):
        self.text = text
        t = text.split(';')[0].strip()
        parts = t.split(None, 1)
        mn = parts[0]
        self.mn = mn
        ops = split_ops(parts[1]) if len(parts) > 1 else []
        self.w, self.r = set(), set()
        self.srcc = set(); self.sdata = set(); self.ab = set()
        self.passes = 0
        self.states = 1
        self.dpp = ('_dpp' in mn) or ('quad_perm' in t) or ('row_' in t and 'row_mask' in t)
        R = [regs_of(o) for o in ops]
        if mn.startswith('v_mfma') or mn.startswith('v_smfmac'):
            self.kind = 'mfma'
            self.passes = 8 if '32x32' in mn else 4
            if '4x4x4' in mn: self.passes = 2
            if mn.endswith('x4_f32'): self.passes = 8
            if mn.endswith('x2_f32'): self.passes = 16
            self.w = R[0]
            self.ab = R[1] | R[2]
            if mn.startswith('v_smfmac'):
                self.srcc = R[0]
                self.ab |= R[3]
            else:
                self.srcc = R[3]
            self.r = self.ab | self.srcc
        elif mn.startswith('v_'):
            self.kind = 'valu'
            if mn.startswith('v_cmp'):
                self.w = R[0]; self.r = set().union(*R[1:])
                if mn.startswith('v_cmpx'):
                    self.w |= {('s', 126), ('s', 127)}
            elif mn.startswith('v_permlane') and 'swap' in mn:
                self.w = R[0] | R[1]; self.r = R[0] | R[1]
            elif mn.startswith(('v_add_co', 'v_sub_co', 'v_addc_co', 'v_subb_co', 'v_subrev_co', 'v_mad_u64')):
                self.w = R[0] | R[1]; self.r = set().union(*R[2:])
            elif mn == 'v_nop':
                pass
            else:
                self.w = R[0]; self.r = set().union(*R[1:]) if len(R) > 1 else set()
                if mn.startswith(('v_fmac', 'v_dot2c', 'v_writelane')) or self.dpp or 'UNUSED_PRESERVE' in t:
                    self.r |= R[0]
        elif mn.startswith('ds_'):
            self.kind = 'ds'
            if mn.startswith(('ds_read', 'ds_bpermute', 'ds_permute', 'ds_swizzle')) or '_rtn' in mn:
                self.w = R[0]; self.r = set().union(*R[1:])
            else:
                self.r = set().union(*R)
        elif mn.startswith(('buffer_', 'global_', 'flat_')):
            self.kind = 'vmem'
            islds = bool(re.search(r'\blds\b', t)) or '_lds_' in mn
            if mn.startswith(('buffer_wbl2', 'buffer_inv')):
                pass
            elif 'load' in mn and not islds:
                self.w = R[0]; self.r = set().union(*R[1:])
            elif 'atomic' in mn and re.search(r'\bsc0\b', t):
                if mn.startswith('buffer'):
                    self.w = R[0]; self.r = set().union(*R)
                else:
                    self.w = R[0]; self.r = set().union(*R[1:])
            else:
                self.r = set().union(*R)
                if islds:
                    self.r.add(('s', 124))
                if 'store' in mn and ('x3' in mn or 'x4' in mn):
                    self.sdata = R[0] if mn.startswith('buffer') else R[1]
        elif mn.startswith('s_'):
            self.kind = 'salu'
            if mn == 's_nop':
                self.states = int(ops[0], 0) + 1
            elif mn.startswith(('s_cmp', 's_cbranch', 's_branch', 's_waitcnt', 's_barrier', 's_endpgm', 's_sleep',
                                's_setprio', 's_bitcmp')):
                self.r = set().union(*R) if R else set()
            else:
                if R:
                    self.w = R[0]; self.r = set().union(*R[1:]) if len(R) > 1 else set()
                if 'saveexec' in mn:
                    self.w |= {('s', 126), ('s', 127)}
        else:
            raise ValueError('unknown instruction ' + text)


def vregs(s):
    return {x for x in s if x[0] in 'va'}


def sregs(s):
    return {x for x in s if x[0] == 's'}


def need_states(p, c):
    n = 0
    pv, ps = vregs(p.w), sregs(p.w)
    if p.kind == 'valu':
        if c.kind == 'mfma' and pv & c.r: n = max(n, 2)
        if c.kind == 'valu':
            if c.dpp and pv & c.r: n = max(n, 2)
            if c.mn.startswith('v_permlane') and pv & c.r: n = max(n, 2)
            if c.mn.startswith(('v_readlane', 'v_readfirstlane')) and pv & c.r: n = max(n, 1)
            if p.mn.startswith(TRANS) and pv & c.r: n = max(n, 1)
            if ps & c.r:
                n = max(n, 4 if c.mn.startswith(('v_readlane', 'v_writelane')) else 2)
            if ('s', 126) in ps:
                if c.dpp: n = max(n, 5)
                if c.mn.startswith(('v_readlane', 'v_readfirstlane', 'v_writelane', 'v_permlane')): n = max(n, 4)
            if ('sdwa' in p.mn or 'op_sel' in p.text) and pv & (c.r | c.w): n = max(n, 1)
        if c.kind == 'mfma' and ('s', 126) in ps: n = max(n, 4)
        if c.kind == 'vmem' and ps & c.r: n = max(n, 5)
        if c.kind == 'salu' and ps & c.r: n = max(n, 1)
    if p.kind == 'salu':
        if ('s', 124) in p.w and ('s', 124) in c.r and c.kind in ('vmem', 'ds'): n = max(n, 1)
    if p.kind == 'mfma':
        P = p.passes
        big = {2: 5, 4: 8, 8: 12, 16: 20}[P]
        if c.kind == 'mfma':
            if p.w & c.ab: n = max(n, big)
            if p.w & c.srcc:
                if p.w == c.srcc and c.mn == p.mn:
                    n = max(n, 2 if P == 2 else 0)
                else:
                    n = max(n, {2: 4, 4: 6, 8: 10, 16: 18}[P])
            elif p.w & c.w:
                n = max(n, big)
        elif c.kind in ('valu', 'ds', 'vmem'):
            if p.w & (c.r | c.w): n = max(n, big)
            if c.kind == 'valu' and p.srcc & c.w: n = max(n, {2: 1, 4: 3, 8: 7, 16: 15}[P])
    if p.kind == 'vmem' and p.sdata:
        if p.sdata & c.w: n = max(n, 2)
    return n


class Gen:
    def __init__(self):
        self.lines = []
        self.hist = []
        self.lds_q = []
        self.vm_q = []
        self.nlabel = 0
        self.nops = 0

    def raw(self, s):
        self.lines.append(s)

    def c(self, s):
        self.lines.append('    ; ' + s)

    def newlabel(self, base='L'):
        self.nlabel += 1
        return f'{base}_{self.nlabel}'

    def label(self, name):
        self.lines.append(name + ':')

    def pad(self, n):
        while n > 0:
            k = min(n, 16)
            self._put(Ins(f's_nop {k-1}'))
            self.nops += k
            n -= k

    def _put(self, ins):
        self.lines.append('    ' + ins.text)
        self.hist.append(ins)
        if len(self.hist) > 26:
            self.hist.pop(0)

    def _dists(self, nxt_is_mfma):
        out = []
        H = self.hist
        for k in range(len(H)):
            t, free = 0, 0
            for q in H[k:]:
                if q.kind == 'mfma':
                    t = max(t, free)
                    free = t + q.passes
                t += q.states
            plain = t
            if nxt_is_mfma:
                t = max(t, free)
            out.append((H[k], t - 1, plain - 1))
        return out

    def i(self, text, tag=None):
        ins = Ins(text)
        need = 0
        for p, have, plain in self._dists(ins.kind == 'mfma'):
            n = need_states(p, ins)
            if n > have:
                need = max(need, n - plain)
        if need > 0:
            self.pad(need)
        self._put(ins)
        if ins.kind == 'ds':
            self.lds_q.append(tag)
        elif ins.kind == 'vmem':
            self.vm_q.append(tag)
        return ins

    def settle(self):
        need = 0
        for p, have, plain in self._dists(False):
            if p.kind == 'mfma':
                n = {2: 5, 4: 8, 8: 12, 16: 20}[p.passes]
            elif p.kind == 'valu':
                n = 5 if sregs(p.w) else 2
            elif p.kind == 'vmem' and p.sdata:
                n = 2
            elif p.kind == 'salu' and ('s', 124) in p.w:
                n = 1
            else:
                n = 0
            need = max(need, n - have)
        if need > 0:
            self.pad(need)

    def forget(self):
        self.hist = []

    def _cnt(self, q, tag):
        idx = [k for k, t in enumerate(q) if t == tag]
        if not idx:
            return None
        return len(q) - 1 - idx[-1]

    def wait_lds(self, tag=None):
        if tag is None:
            n = 0
        else:
            n = self._cnt(self.lds_q, tag)
            if n is None:
                return
        assert n <= 15, n
        self.i(f's_waitcnt lgkmcnt({n})')
        self.lds_q = self.lds_q[len(self.lds_q) - n:] if n else []

    def wait_vm(self, tag=None):
        if tag is None:
            n = 0
        else:
            n = self._cnt(self.vm_q, tag)
            if n is None:
                return
        assert n <= 63, n
        self.i(f's_waitcnt vmcnt({n})')
        self.vm_q = self.vm_q[len(self.vm_q) - n:] if n else []

    def text(self):
        return '\n'.join(self.lines) + '\n'


def vr(b, n=1):
    return f'v{b}' if n == 1 else f'v[{b}:{b+n-1}]'


def ar(b, n=1):
    return f'a{b}' if n == 1 else f'a[{b}:{b+n-1}]'


def sr(b, n=1):
    return f's{b}' if n == 1 else f's[{b}:{b+n-1}]'
```

```python
import math
from asmgen import *
from layout import *
from chain import S_WS, S_W8, S_DBG, S_W, S_PTR, SPIN_MAX, f2u

S_RANK = 15
P_MEM0, P_WQ, P_WK, P_WV, P_WO = S_PTR, S_PTR + 2, S_PTR + 4, S_PTR + 6, S_PTR + 8
P_X, P_W1, P_W2, P_OUT = 60, 62, 64, 66
S_X4, S_O4 = 68, 72
T0, T1, T2, T3 = 42, 43, 44, 45
S_TRY = 41
WS = f's[{S_WS}:{S_WS+3}]'
W8 = f's[{S_W8}:{S_W8+3}]'
LOG2E = math.log2(math.e)
V_L, V_L16 = 0, 1


def wreg(n, cnt=4):
    return ar(n, cnt) if n < 256 else vr(224 + n - 256, cnt)


class Bulk:
    def __init__(self, g, bail):
        self.g = g
        self.bail = bail

    def srd(self, dst, ptr, nbytes):
        g = self.g
        g.i(f's_mov_b32 s{dst}, s{ptr}')
        g.i(f's_mov_b32 s{dst+1}, s{ptr+1}')
        g.i(f's_mov_b32 s{dst+2}, {nbytes}')
        g.i(f's_mov_b32 s{dst+3}, 0x20000')

    def spin(self, load, test, sleep=4):
        g = self.g
        lp, ok = g.newlabel('sp'), g.newlabel('sp')
        g.i(f's_mov_b32 s{S_TRY}, 0')
        g.settle()
        g.label(lp)
        load()
        test()
        g.i(f's_cbranch_scc1 {ok}')
        g.i(f's_sleep {sleep}')
        g.i(f's_add_u32 s{S_TRY}, s{S_TRY}, 1')
        g.i(f's_cmp_lt_u32 s{S_TRY}, {SPIN_MAX}')
        g.i(f's_cbranch_scc1 {lp}')
        g.i(f's_branch {self.bail}')
        g.label(ok)

    def wait_word(self, soff, need, vt, sleep=4):
        g = self.g

        def load():
            g.i(f'buffer_load_dword v{vt}, off, {WS}, s{soff} sc1')
            g.wait_vm()

        def test():
            g.i(f'v_readfirstlane_b32 s{T3}, v{vt}')
            g.i(f's_cmp_ge_u32 s{T3}, {need}')
        self.spin(load, test, sleep)

    def wait_ln(self, vt):
        g = self.g
        g.i(f'v_mov_b32 v{vt+1}, {DBG_LN}')

        def load():
            g.i(f'global_load_dword v{vt}, v{vt+1}, s[{S_DBG}:{S_DBG+1}] sc1')
            g.wait_vm()

        def test():
            g.i(f'v_readfirstlane_b32 s{T3}, v{vt}')
            g.i(f's_cmp_ge_u32 s{T3}, {N_LN}')
        self.spin(load, test, 8)

    def setup(self):
        g = self.g
        g.i(f'v_lshlrev_b32 v{V_L16}, 4, v{V_L}')
        self.srd(S_X4, P_X, 2359296)
        self.srd(S_O4, P_OUT, 2359296)

    def layernorm(self):
        g = self.g
        NU = 3
        VA, VO, VS, VQ, VM, VR, VT, VU = 2, 3, 4, 5, 6, 7, 8, 9
        D = 16
        nz = g.newlabel('nz')
        g.i(f's_cmp_ge_u32 s{S_RANK}, 4')
        g.i(f's_cbranch_scc1 {nz}')
        for k in range(4):
            g.i(f'v_mov_b32 v{12+k}, 0')
        g.i(f's_lshl_b32 s{T0}, s{S_RANK}, 2')
        g.i(f's_add_u32 s{T0}, s{T0}, s{S_W}')
        g.i(f's_lshl_b32 s{T0}, s{T0}, 10')
        g.i(f's_add_u32 s{T0}, s{T0}, {OFF_FLAG}')
        g.i(f'buffer_store_dwordx4 v[12:15], v{V_L16}, {WS}, s{T0} offen sc1')
        g.label(nz)
        g.vm_q = []
        g.i(f'v_and_b32 v{VT}, 7, v{V_L}')
        g.i(f'v_lshrrev_b32 v{VU}, 3, v{V_L}')
        g.i(f'v_mul_u32_u24 v{VA}, 1152, v{VT}')
        g.i(f'v_lshl_add_u32 v{VA}, v{VU}, 4, v{VA}')
        g.i(f'v_lshlrev_b32 v{VO}, 9, v{VU}')
        g.i(f'v_lshl_add_u32 v{VO}, v{VT}, 4, v{VO}')
        g.i(f's_lshl_b32 s20, s{S_RANK}, 2')
        g.i(f's_add_u32 s20, s20, s{S_W}')
        for u in range(NU):
            g.i(f's_add_u32 s{T0}, s20, {u * 4 * N_LN}')
            g.i(f's_mul_i32 s{T0}, s{T0}, 9216')
            for i in range(9):
                g.i(f'buffer_load_dwordx4 {vr(D + 36*u + 4*i, 4)}, v{VA}, s[{S_X4}:{S_X4+3}], s{T0} offen offset:{128*i}',
                    tag=('x', u))
        F = 128
        done = g.newlabel('lnd')
        for u in range(NU):
            g.i(f's_add_u32 s21, s20, {u * 4 * N_LN}')
            g.i(f's_cmp_ge_u32 s21, 256')
            g.i(f's_cbranch_scc1 {done}')
            g.wait_vm(('x', u))
            for k in range(36):
                g.i(f'v_lshlrev_b32 v{F+2*k}, 16, v{D+36*u+k}')
                g.i(f'v_and_b32 v{F+2*k+1}, 0xffff0000, v{D+36*u+k}')

            def allsum(r):
                g.i(f'v_add_f32_dpp v{r}, v{r}, v{r} row_ror:8 row_mask:0xf bank_mask:0xf')
                g.i(f'v_mov_b32 v{VT}, v{r}')
                g.i(f'v_permlane16_swap_b32 v{r}, v{VT}')
                g.i(f'v_add_f32 v{r}, v{r}, v{VT}')
                g.i(f'v_mov_b32 v{VT}, v{r}')
                g.i(f'v_permlane32_swap_b32 v{r}, v{VT}')
                g.i(f'v_add_f32 v{r}, v{r}, v{VT}')

            def rnd(r):
                g.i(f'v_cvt_pk_bf16_f32 v{r}, v{r}, v{r}')
                g.i(f'v_and_b32 v{r}, 0xffff0000, v{r}')
            g.i(f'v_pk_add_f32 v[10:11], {vr(F,2)}, {vr(F+2,2)}')
            for k in range(2, 36):
                g.i(f'v_pk_add_f32 v[10:11], v[10:11], {vr(F+2*k,2)}')
            g.i(f'v_add_f32 v{VS}, v10, v11')
            allsum(VS)
            g.i(f'v_mul_f32 v{VM}, {f2u(1/576):#x}, v{VS}')
            g.i(f'v_mov_b32 v{VQ}, 0')
            for k in range(72):
                g.i(f'v_sub_f32 v{VU}, v{F+k}, v{VM}')
                g.i(f'v_fmac_f32 v{VQ}, v{VU}, v{VU}')
            allsum(VQ)
            g.i(f'v_mul_f32 v{VQ}, {f2u(1/576):#x}, v{VQ}')
            rnd(VQ)
            g.i(f'v_add_f32 v{VQ}, {f2u(1e-5):#x}, v{VQ}')
            rnd(VQ)
            g.i(f'v_sqrt_f32 v{VQ}, v{VQ}')
            rnd(VQ)
            g.i(f'v_rcp_f32 v{VR}, v{VQ}')
            rnd(VM)
            for k in range(36):
                a, b, d = F + 2 * k, F + 2 * k + 1, D + 36 * u + k
                g.i(f'v_sub_f32 v{a}, v{a}, v{VM}')
                g.i(f'v_sub_f32 v{b}, v{b}, v{VM}')
                g.i(f'v_cvt_pk_bf16_f32 v{d}, v{a}, v{b}')
                g.i(f'v_lshlrev_b32 v{a}, 16, v{d}')
                g.i(f'v_and_b32 v{b}, 0xffff0000, v{d}')
                g.i(f'v_mul_f32 v{a}, v{a}, v{VR}')
                g.i(f'v_mul_f32 v{b}, v{b}, v{VR}')
                g.i(f'v_cvt_pk_bf16_f32 v{d}, v{a}, v{b}')
            g.i(f's_lshr_b32 s{T0}, s21, 2')
            g.i(f's_mul_i32 s{T0}, s{T0}, 36864')
            g.i(f's_and_b32 s{T1}, s21, 3')
            g.i(f's_lshl_b32 s{T1}, s{T1}, 7')
            g.i(f's_add_u32 s{T0}, s{T0}, s{T1}')
            for i in range(9):
                g.i(f's_add_u32 s{T1}, s{T0}, {OFF_XN + 4096*i}')
                g.i(f'buffer_store_dwordx4 {vr(D + 36*u + 4*i, 4)}, v{VO}, {WS}, s{T1} offen sc1')
        g.label(done)
        g.wait_vm()
        g.i('s_barrier')
        sk = g.newlabel('lns')
        g.i(f's_cmp_lg_u32 s{S_W}, 0')
        g.i(f's_cbranch_scc1 {sk}')
        g.i('s_mov_b64 exec, 1')
        g.i(f'v_mov_b32 v2, {DBG_LN}')
        g.i('v_mov_b32 v3, 1')
        g.i(f'global_atomic_add v2, v3, s[{S_DBG}:{S_DBG+1}]')
        g.i('s_mov_b64 exec, -1')
        g.label(sk)

    def load_weights(self, ntile, nstep, s_off, s_pitch):
        g = self.g
        VA, VT, VX, VY = 2, 3, 4, 5
        seg = 64 * ntile
        lpr = seg // 16
        rpi = 1024 // seg
        spb = 4 * rpi // 16
        nblk = nstep // spb
        sh = lpr.bit_length() - 1
        g.i(f'v_lshrrev_b32 v{VX}, {sh}, v{V_L}')
        g.i(f'v_mul_lo_u32 v{VA}, v{VX}, s{s_pitch}')
        g.i(f'v_and_b32 v{VX}, {lpr-1}, v{V_L}')
        g.i(f'v_lshl_add_u32 v{VA}, v{VX}, 4, v{VA}')
        g.i(f'v_lshrrev_b32 v{VX}, 5, v{V_L}')
        g.i(f'v_bfe_u32 v{VY}, v{V_L}, 2, 2')
        g.i(f'v_lshl_add_u32 v{VX}, v{VX}, 3, v{VY}')
        g.i(f'v_mul_u32_u24 v{VT}, {seg}, v{VX}')
        g.i(f'v_bfe_u32 v{VX}, v{V_L}, 4, 1')
        g.i(f'v_lshl_add_u32 v{VT}, v{VX}, 5, v{VT}')
        g.i(f'v_and_b32 v{VX}, 3, v{V_L}')
        g.i(f'v_lshl_add_u32 v{VT}, v{VX}, 3, v{VT}')
        g.i(f's_mul_i32 s{T2}, s{S_W}, 36864')
        g.i(f'v_add_u32 v{VT}, s{T2}, v{VT}')
        g.i(f's_mul_i32 s{T1}, s{s_pitch}, {rpi}')
        g.i(f's_mov_b32 s{T0}, s{s_off}')
        g.vm_q = []

        def issue(n):
            for q in range(4):
                g.i(f's_add_u32 m0, s{T2}, {(n % 9) * 4096 + q * 1024}')
                g.i(f'buffer_load_dwordx4 v{VA}, {W8}, s{T0} offen lds', tag=('w', n))
                g.i(f's_add_u32 s{T0}, s{T0}, s{T1}')
        for n in range(min(9, nblk)):
            issue(n)
        for n in range(nblk):
            g.wait_vm(('w', n))
            for st in range(spb):
                for x in range(ntile):
                    r = 4 * ((n * spb + st) * ntile + x)
                    for hf in range(2):
                        off = (n % 9) * 4096 + (16 * st + 4 * hf) * seg + 64 * x
                        g.i(f'ds_read_b64_tr_b16 {wreg(r + 2*hf, 2)}, v{VT} offset:{off}')
            g.wait_lds()
            if n + 9 < nblk:
                issue(n + 9)

    def silu_ops(self, src, a, b, t):
        return [f'v_lshlrev_b32 v{a}, 16, v{src}', f'v_and_b32 v{b}, 0xffff0000, v{src}',
                f'v_mul_f32 v{t}, {f2u(-LOG2E):#x}, v{a}', f'v_mul_f32 v{t+1}, {f2u(-LOG2E):#x}, v{b}',
                f'v_exp_f32 v{t}, v{t}', f'v_exp_f32 v{t+1}, v{t+1}',
                f'v_add_f32 v{t}, 1.0, v{t}', f'v_add_f32 v{t+1}, 1.0, v{t+1}',
                f'v_rcp_f32 v{t}, v{t}', f'v_rcp_f32 v{t+1}, v{t+1}',
                f'v_mul_f32 v{a}, v{a}, v{t}', f'v_mul_f32 v{b}, v{b}, v{t+1}',
                f'v_cvt_pk_bf16_f32 v{src}, v{a}, v{b}']

    def project(self):
        g = self.g
        S_B, S_REP, S_OFF, S_PITCH, S_OUT, S_OSTR, S_A, S_N, S_I, S_FL, S_ST, S_LW, S_SW = range(16, 29)
        g.i(f's_sub_u32 s{S_B}, s{S_RANK}, {N_LN}')
        g.i(f's_mov_b32 s{S_REP}, 0')
        for _ in range(2):
            g.i(f's_cmp_ge_u32 s{S_B}, 66')
            g.i(f's_cselect_b32 s{T0}, 66, 0')
            g.i(f's_cselect_b32 s{T1}, 1, 0')
            g.i(f's_sub_u32 s{S_B}, s{S_B}, s{T0}')
            g.i(f's_add_u32 s{S_REP}, s{S_REP}, s{T1}')
        lq, lh, lv, go = [g.newlabel('pj') for _ in range(4)]
        g.i(f's_mov_b32 s{S_PITCH}, 8192')
        g.i(f's_mov_b32 s{S_OSTR}, {32 * 8192}')
        g.i(f's_and_b32 s{T2}, s{S_W}, 1')
        g.i(f's_cmp_ge_u32 s{S_B}, 48')
        g.i(f's_cbranch_scc1 {lh}')
        g.i(f's_cmp_ge_u32 s{S_B}, 32')
        g.i(f's_cbranch_scc1 {lq}')
        g.i(f's_lshl_b32 s{S_OFF}, s{S_B}, 8')
        g.i(f's_lshl_b32 s{T0}, s{T2}, 7')
        g.i(f's_add_u32 s{S_OFF}, s{S_OFF}, s{T0}')
        g.i(f's_lshl_b32 s{S_OUT}, s{S_B}, 13')
        g.i(f's_lshl_b32 s{T0}, s{T2}, 12')
        g.i(f's_add_u32 s{S_OUT}, s{S_OUT}, s{T0}')
        g.i(f's_cmp_ge_u32 s{S_W}, 2')
        g.i(f's_cbranch_scc1 {lv}')
        self.srd(S_W8, P_WK, 4718592)
        g.i(f's_add_u32 s{S_OUT}, s{S_OUT}, {OFF_KX}')
        g.i(f's_mov_b32 s{S_SW}, 0')
        g.i(f's_branch {go}')
        g.label(lv)
        self.srd(S_W8, P_WV, 4718592)
        g.i(f's_add_u32 s{S_OUT}, s{S_OUT}, {OFF_VX}')
        g.i(f's_mov_b32 s{S_SW}, 1')
        g.i(f's_branch {go}')
        g.label(lq)
        g.i(f's_sub_u32 s{T0}, s{S_B}, 32')
        g.i(f's_lshl_b32 s{T0}, s{T0}, 2')
        g.i(f's_add_u32 s{T0}, s{T0}, s{S_W}')
        g.i(f's_lshl_b32 s{S_OFF}, s{T0}, 7')
        g.i(f's_lshl_b32 s{S_OUT}, s{T0}, 12')
        g.i(f's_add_u32 s{S_OUT}, s{S_OUT}, {OFF_QX}')
        self.srd(S_W8, P_WQ, 4718592)
        g.i(f's_mov_b32 s{S_SW}, 0')
        g.i(f's_branch {go}')
        g.label(lh)
        g.i(f's_sub_u32 s{T0}, s{S_B}, 48')
        g.i(f's_lshl_b32 s{T0}, s{T0}, 2')
        g.i(f's_add_u32 s{T0}, s{T0}, s{S_W}')
        g.i(f's_lshl_b32 s{S_OFF}, s{T0}, 7')
        g.i(f's_lshl_b32 s{S_OUT}, s{T0}, 12')
        g.i(f's_add_u32 s{S_OUT}, s{S_OUT}, {OFF_H}')
        g.i(f's_mov_b32 s{S_PITCH}, 9216')
        g.i(f's_mov_b32 s{S_OSTR}, 294912')
        self.srd(S_W8, P_W1, 5308416)
        g.i(f's_mov_b32 s{S_SW}, 2')
        g.label(go)
        self.load_weights(2, 36, S_OFF, S_PITCH)
        g.i(f's_mul_i32 s{T0}, s{S_OSTR}, s{S_REP}')
        g.i(f's_add_u32 s{S_OUT}, s{S_OUT}, s{T0}')
        g.i(f's_mul_i32 s{S_OSTR}, s{S_OSTR}, 3')
        g.i(f's_sub_u32 s{S_OUT}, s{S_OUT}, s{S_OSTR}')
        g.i(f's_mul_i32 s{S_A}, s{S_REP}, 36864')
        g.i(f's_mul_i32 s{S_LW}, s{S_W}, 9216')
        g.i(f's_add_u32 s{S_A}, s{S_A}, s{S_LW}')
        g.i(f's_cmp_eq_u32 s{S_REP}, 0')
        g.i(f's_cselect_b32 s{S_N}, 22, 21')
        g.i(f's_lshl_b32 s{S_FL}, s{S_REP}, 7')
        g.i(f's_add_u32 s{S_FL}, s{S_FL}, s{S_B}')
        g.i(f's_lshl_b32 s{S_FL}, s{S_FL}, 2')
        g.i(f's_add_u32 s{S_FL}, s{S_FL}, {OFF_FLAG + FL_P1}')
        self.stamp()
        self.wait_ln(2)
        g.i('s_barrier')
        VA, VP = 2, 3
        ACC, PK, RING, TMP = 16, 48, 64, 96

        def dma(stage_sgpr):
            L = []
            for q in range(3):
                def f(q=q):
                    g.i(f's_add_u32 m0, s{stage_sgpr}, {q * 3072}')
                    g.i(f's_add_u32 s{T0}, s{S_A}, {OFF_XN + q * 3072}')
                    for z in range(3):
                        g.i(f'buffer_load_dwordx4 v{V_L16}, {WS}, s{T0} offen offset:{1024*z} sc1 lds')
                L.append(f)
            L.append(lambda: g.i(f's_add_u32 s{S_A}, s{S_A}, {3 * 36864}'))
            return L
        for st in range(2):
            g.i(f's_add_u32 s{T1}, s{S_LW}, {st * 36864}')
            for f in dma(T1):
                f()
        g.i(f's_mov_b32 s{S_I}, 0')
        g.i(f's_mov_b32 s{S_ST}, 0')
        labs = [g.newlabel('pv') for _ in range(3)]
        end = g.newlabel('pe')
        g.i(f's_cmp_eq_u32 s{S_SW}, 1')
        g.i(f's_cbranch_scc1 {labs[1]}')
        g.i(f's_cmp_eq_u32 s{S_SW}, 2')
        g.i(f's_cbranch_scc1 {labs[2]}')

        def epilogue_ops(silu):
            L = []
            if silu:
                for k in range(0, 16, 2):
                    A = self.silu_ops(PK + k, TMP, TMP + 1, TMP + 2)
                    B = self.silu_ops(PK + k + 1, TMP + 4, TMP + 5, TMP + 6)
                    for p, q in zip(A, B):
                        L += [p, q]
            for n in range(4):
                p = PK + 4 * n
                L += [f'v_permlane32_swap_b32 v{p}, v{p+2}', f'v_permlane32_swap_b32 v{p+1}, v{p+3}',
                      f'buffer_store_dwordx4 {vr(p,4)}, v{V_L16}, {WS}, s{S_OUT} offen offset:{1024*n} sc1']
            return L

        def publish(sval):
            sk = g.newlabel('pp')
            g.i(f's_cmp_lg_u32 s{S_W}, 0')
            g.i(f's_cbranch_scc1 {sk}')
            g.i(f'v_mov_b32 v{VP}, s{sval}')
            g.i('s_mov_b64 exec, 1')
            g.i(f'buffer_store_dword v{VP}, off, {WS}, s{S_FL} sc1')
            g.i('s_mov_b64 exec, -1')
            g.label(sk)

        for var in range(3):
            g.label(labs[var])
            g.forget()
            silu = var == 2
            first, top = g.newlabel('pf'), g.newlabel('pt')

            def body(with_epi):
                g.lds_q = []
                g.i(f's_waitcnt vmcnt({13 if with_epi else 9})')
                g.i('s_barrier')
                g.i(f'v_add_u32 v{VA}, s{S_ST}, v{V_L16}')
                for u in range(5):
                    g.i(f'ds_read_b128 {vr(RING + 4*u, 4)}, v{VA} offset:{1024*u}', tag=('a', u))
                g.i(f's_sub_u32 s{T2}, s{S_I}, 2')
                g.i(f's_max_i32 s{T2}, s{T2}, 0')
                publish(T2)
                g.i(f's_sub_u32 s{T1}, s{S_ST}, 36864')
                g.i(f's_cmp_eq_u32 s{S_ST}, 0')
                g.i(f's_cselect_b32 s{T1}, {2 * 36864}, s{T1}')
                g.i(f's_add_u32 s{T1}, s{T1}, s{S_LW}')
                fill = dma(T1) + (epilogue_ops(silu) if with_epi else [])
                per = 4 if silu else 1
                for u in range(36):
                    g.wait_lds(('a', u))
                    a = vr(RING + 4 * (u % 6), 4)
                    for x in range(2):
                        w = wreg(4 * (2 * u + x))
                        c = vr(ACC + 16 * x, 16) if u else '0'
                        ops = f'{a}, {w}' if var == 1 else f'{w}, {a}'
                        g.i(f'v_mfma_f32_32x32x16_bf16 {vr(ACC + 16*x, 16)}, {ops}, {c}')
                        if x == 0 and u + 5 < 36:
                            g.i(f'ds_read_b128 {vr(RING + 4*((u+5) % 6), 4)}, v{VA} offset:{1024*(u+5)}', tag=('a', u + 5))
                        for _ in range(per):
                            if fill:
                                f = fill.pop(0)
                                g.i(f) if isinstance(f, str) else f()
                assert not fill
                g.i(f's_add_u32 s{S_ST}, s{S_ST}, 36864')
                g.i(f's_cmp_eq_u32 s{S_ST}, {3 * 36864}')
                g.i(f's_cselect_b32 s{S_ST}, 0, s{S_ST}')
                g.i(f's_add_u32 s{S_OUT}, s{S_OUT}, s{S_OSTR}')
                g.i(f's_add_u32 s{S_I}, s{S_I}, 1')
                for k in range(16):
                    g.i(f'v_cvt_pk_bf16_f32 v{PK+k}, v{ACC+2*k}, v{ACC+2*k+1}')
            body(False)
            g.i('s_waitcnt vmcnt(9)')
            g.settle()
            g.label(top)
            body(True)
            g.i(f's_cmp_lt_u32 s{S_I}, s{S_N}')
            g.settle()
            g.i(f's_cbranch_scc1 {top}')
            for f in epilogue_ops(silu):
                g.i(f)
            g.i(f's_branch {end}')
        g.label(end)
        g.forget()
        g.wait_vm()
        g.i('s_barrier')
        publish(S_N)

    def stream_gemm(self, gate):
        g = self.g
        S_SL, S_RP, S_OFF, S_PITCH, S_RT, S_A, S_AN, S_FLG, S_NEED, S_GL, S_XO, S_PRE = range(16, 28)
        NS = 72 if gate else 64
        RN = NS // 2
        TILE = NS * 4 * 1024
        BASE = OFF_H if gate else OFF_O
        VF, VFA, VRW, VRR, VG, VXO, VT = 2, 3, 4, 5, 6, 7, 8
        ACC, RING = 16, 64
        L_RED, L_G = 0, 147456
        if gate:
            g.i(f's_sub_u32 s{T0}, s{S_RANK}, {N_ATT}')
            g.i(f's_mul_hi_u32 s{S_RP}, s{T0}, {(1 << 32) // 18 + 1}')
            g.i(f's_mul_i32 s{T1}, s{S_RP}, 18')
            g.i(f's_sub_u32 s{S_SL}, s{T0}, s{T1}')
        self.srd(S_W8, P_W2 if gate else P_WO, 5308416 if gate else 4718592)
        g.i(f's_mov_b32 s{S_PITCH}, 1152')
        g.i(f's_mul_i32 s{S_OFF}, s{S_W}, {NS * 16 * 1152}')
        g.i(f's_lshl_b32 s{T0}, s{S_SL}, 6')
        g.i(f's_add_u32 s{S_OFF}, s{S_OFF}, s{T0}')
        g.i('s_barrier')
        self.load_weights(1, NS, S_OFF, S_PITCH)
        self.stamp()
        g.i('s_barrier')
        g.i(f's_lshl_b32 s{T0}, s{S_W}, 12')
        g.i(f'v_add_u32 v{VRW}, s{T0}, v{V_L16}')
        g.i(f's_lshl_b32 s{T0}, s{S_W}, 10')
        g.i(f'v_add_u32 v{VRR}, s{T0}, v{V_L16}')
        g.i(f'v_lshrrev_b32 v{VG}, 1, v{VRR}')
        g.i(f'v_add_u32 v{VG}, {L_G}, v{VG}')
        g.i(f'v_and_b32 v{VT}, 31, v{V_L}')
        g.i(f'v_mul_u32_u24 v{VXO}, 1152, v{VT}')
        g.i(f'v_lshrrev_b32 v{VT}, 5, v{V_L}')
        g.i(f'v_lshl_add_u32 v{VXO}, v{VT}, 3, v{VXO}')
        g.i(f's_lshl_b32 s{T0}, s{S_SL}, 6')
        g.i(f's_lshl_b32 s{T1}, s{S_W}, 4')
        g.i(f's_add_u32 s{T0}, s{T0}, s{T1}')
        g.i(f'v_add_u32 v{VXO}, s{T0}, v{VXO}')
        g.i(f'v_min_u32 v{VFA}, 17, v{V_L}')
        g.i(f'v_lshlrev_b32 v{VFA}, 2, v{VFA}')
        g.i(f's_mov_b32 s{S_RT}, s{S_RP}')
        g.i(f's_mov_b32 s{S_GL}, 0')

        def flag_addr(rt):
            if gate:
                g.i(f's_mul_hi_u32 s{S_NEED}, s{rt}, {(1 << 32) // 3 + 1}')
                g.i(f's_mul_i32 s{T0}, s{S_NEED}, 3')
                g.i(f's_sub_u32 s{T0}, s{rt}, s{T0}')
                g.i(f's_lshl_b32 s{T0}, s{T0}, 9')
                g.i(f's_add_u32 s{S_FLG}, s{T0}, {OFF_FLAG + FL_P1 + 48 * 4}')
                g.i(f's_add_u32 s{S_NEED}, s{S_NEED}, 1')
            else:
                g.i(f's_lshl_b32 s{T0}, s{rt}, 6')
                g.i(f's_add_u32 s{S_FLG}, s{T0}, {OFF_FLAG + FL_O}')
                g.i(f's_mov_b32 s{S_NEED}, 32')

        def flag_load(tag=None):
            if gate:
                g.i(f'buffer_load_dword v{VF}, v{VFA}, {WS}, s{S_FLG} offen sc1', tag=tag)
            else:
                g.i(f'buffer_load_dword v{VF}, off, {WS}, s{S_FLG} sc1', tag=tag)

        def flag_test():
            g.i(f'v_cmp_gt_u32 vcc, s{S_NEED}, v{VF}')
            g.i(f's_cmp_eq_u64 vcc, 0')

        def aaddr(dst, rt):
            g.i(f's_mul_i32 s{dst}, s{rt}, {TILE}')
            g.i(f's_mul_i32 s{T0}, s{S_W}, {NS * 1024}')
            g.i(f's_add_u32 s{dst}, s{dst}, s{T0}')
            g.i(f's_add_u32 s{dst}, s{dst}, {BASE}')

        def aload(sreg, n):
            g.i(f'buffer_load_dwordx4 {vr(RING + 4*(n % RN), 4)}, v{V_L16}, {WS}, s{sreg} offen offset:{1024*(n%4)} sc1')
            if n % 4 == 3:
                g.i(f's_add_u32 s{sreg}, s{sreg}, 4096')

        def mm(n):
            g.i(f'v_mfma_f32_32x32x16_bf16 {vr(ACC + 16*(n&1), 16)}, {wreg(4*n)}, {vr(RING + 4*(n % RN), 4)}, '
                f'{vr(ACC + 16*(n&1), 16) if n > 1 else 0}')
        cold, warm, nopre, epi, end = [g.newlabel('sg') for _ in range(5)]
        g.label(cold)
        flag_addr(S_RT)

        def ld():
            flag_load(); g.wait_vm()
        self.spin(ld, flag_test, 2)
        aaddr(S_A, S_RT)
        for n in range(RN):
            aload(S_A, n)
        g.settle()
        g.label(warm)
        g.forget()
        g.i(f's_add_u32 s{T2}, s{S_RT}, {N_REP}')
        g.i(f's_min_u32 s{T2}, s{T2}, 63')
        flag_addr(T2)
        aaddr(S_AN, T2)
        g.i(f's_mul_i32 s{S_XO}, s{S_RT}, {32 * 1152}')
        for n in range(RN):
            g.i(f's_waitcnt vmcnt({RN - 1})')
            mm(n)
            aload(S_A, n + RN)
            if n == 0:
                flag_load()
                if not gate:
                    g.i(f'buffer_load_dwordx2 {vr(VT+6,2)}, v{VXO}, s[{S_X4}:{S_X4+3}], s{S_XO} offen')
        g.i(f's_waitcnt vmcnt({RN - 1})')
        flag_test()
        g.i(f's_cselect_b32 s{S_PRE}, 1, 0')
        g.i(f's_add_u32 s{T2}, s{S_RT}, {N_REP}')
        g.i(f's_cmp_lt_u32 s{T2}, 64')
        g.i(f's_cselect_b32 s{S_PRE}, s{S_PRE}, 0')
        g.i(f's_cmp_eq_u32 s{S_PRE}, 0')
        g.i(f's_cbranch_scc1 {nopre}')
        hist = list(g.hist)
        for n in range(RN, NS):
            g.i(f's_waitcnt vmcnt({RN - 1})')
            mm(n)
            aload(S_AN, n - RN)
        g.i(f's_mov_b32 s{S_A}, s{S_AN}')
        g.settle()
        g.i(f's_branch {epi}')
        g.label(nopre)
        g.hist = hist
        for n in range(RN, NS):
            g.i(f's_waitcnt vmcnt({NS - 1 - n})')
            mm(n)
        g.settle()
        g.label(epi)
        g.lds_q = []
        for r in range(0, 16, 2):
            g.i(f'v_pk_add_f32 {vr(ACC+r,2)}, {vr(ACC+r,2)}, {vr(ACC+16+r,2)}')
        for q in range(4):
            g.i(f'ds_write_b128 v{VRW}, {vr(ACC+4*q,4)} offset:{L_RED + 1024*q}')
        g.wait_lds()
        g.i('s_barrier')
        for w in range(4):
            g.i(f'ds_read_b128 {vr(ACC+4*w,4)}, v{VRR} offset:{L_RED + 4096*w}')
        if not gate:
            g.i(f'ds_read_b64 {vr(VT+4,2)}, v{VG}')
        g.i(f'v_xor_b32 v{VRW}, 0x4000, v{VRW}')
        g.i(f'v_xor_b32 v{VRR}, 0x4000, v{VRR}')
        g.wait_lds()
        for k in (0, 2):
            g.i(f'v_pk_add_f32 {vr(ACC+k,2)}, {vr(ACC+k,2)}, {vr(ACC+4+k,2)}')
            g.i(f'v_pk_add_f32 {vr(ACC+8+k,2)}, {vr(ACC+8+k,2)}, {vr(ACC+12+k,2)}')
        for k in (0, 2):
            g.i(f'v_pk_add_f32 {vr(ACC+k,2)}, {vr(ACC+k,2)}, {vr(ACC+8+k,2)}')
        g.i(f'v_cvt_pk_bf16_f32 v{ACC+4}, v{ACC}, v{ACC+1}')
        g.i(f'v_cvt_pk_bf16_f32 v{ACC+5}, v{ACC+2}, v{ACC+3}')
        if gate:
            A = self.silu_ops(ACC + 4, VT, VT + 1, VT + 2)
            B = self.silu_ops(ACC + 5, VT + 4, VT + 5, VT + 6)
            for p, q in zip(A, B):
                g.i(p); g.i(q)
            g.i(f'ds_write_b64 v{VG}, {vr(ACC+4,2)}')
        else:
            for k in range(2):
                s_, g_, x_ = ACC + 4 + k, VT + 4 + k, VT + 6 + k
                a, b, c, d = ACC + 8, ACC + 9, ACC + 10, ACC + 11
                g.i(f'v_lshlrev_b32 v{a}, 16, v{s_}')
                g.i(f'v_and_b32 v{b}, 0xffff0000, v{s_}')
                g.i(f'v_lshlrev_b32 v{c}, 16, v{g_}')
                g.i(f'v_and_b32 v{d}, 0xffff0000, v{g_}')
                g.i(f'v_mul_f32 v{a}, v{a}, v{c}')
                g.i(f'v_mul_f32 v{b}, v{b}, v{d}')
                g.i(f'v_cvt_pk_bf16_f32 v{s_}, v{a}, v{b}')
                g.i(f'v_lshlrev_b32 v{a}, 16, v{s_}')
                g.i(f'v_and_b32 v{b}, 0xffff0000, v{s_}')
                g.i(f'v_lshlrev_b32 v{c}, 16, v{x_}')
                g.i(f'v_and_b32 v{d}, 0xffff0000, v{x_}')
                g.i(f'v_add_f32 v{a}, v{a}, v{c}')
                g.i(f'v_add_f32 v{b}, v{b}, v{d}')
                g.i(f'v_cvt_pk_bf16_f32 v{s_}, v{a}, v{b}')
            g.i(f'buffer_store_dwordx2 {vr(ACC+4,2)}, v{VXO}, s[{S_O4}:{S_O4+3}], s{S_XO} offen')
        g.i(f'v_add_u32 v{VG}, 2048, v{VG}')
        g.i(f's_add_u32 s{S_RT}, s{S_RT}, {N_REP}')
        g.i(f's_cmp_eq_u32 s{S_PRE}, 1')
        g.settle()
        g.i(f's_cbranch_scc1 {warm}')
        g.i(f's_cmp_lt_u32 s{S_RT}, 64')
        g.i(f's_cbranch_scc1 {cold}')
        g.wait_lds()

    def attention(self):
        g = self.g
        S_U, S_S, S_HD, S_BLK, S_F1, S_NEED, S_C, S_LB = range(16, 24)
        VK, VF, VFA, VKW, VKR, VVR, VMX, VL, VT = 2, 3, 4, 5, 6, 7, 8, 9, 10
        MASK, Q, K, V, SX, SM, KM, VM, REC, PB, O = 16, 32, 64, 96, 128, 144, 160, 192, 200, 216, 32
        g.i(f's_lshl_b32 s{S_U}, s{S_RANK}, 2')
        g.i(f's_add_u32 s{S_U}, s{S_U}, s{S_W}')
        g.i(f's_mov_b32 s{S_C}, {f2u(128 ** -0.5 * LOG2E):#x}')
        g.i(f's_lshl_b32 s{S_LB}, s{S_W}, 12')
        J, HF = VT, VT + 1
        g.i(f'v_and_b32 v{J}, 31, v{V_L}')
        g.i(f'v_lshrrev_b32 v{HF}, 5, v{V_L}')
        g.i(f'v_and_b32 v{VK}, 19, v{J}')
        g.i(f'v_bfe_u32 v{VT+2}, v{J}, 2, 1')
        g.i(f'v_lshl_add_u32 v{VK}, v{VT+2}, 3, v{VK}')
        g.i(f'v_bfe_u32 v{VT+2}, v{J}, 3, 1')
        g.i(f'v_lshl_add_u32 v{VK}, v{VT+2}, 2, v{VK}')
        g.i(f'v_lshlrev_b32 v{VK}, 4, v{VK}')
        g.i(f'v_lshl_add_u32 v{VK}, v{HF}, 9, v{VK}')
        g.i(f'v_lshlrev_b32 v{VT+2}, 3, v{HF}')
        g.i(f'v_sub_u32 v{VT+2}, v{J}, v{VT+2}')
        g.i(f'v_mov_b32 v{VT+3}, {f2u(-1e30):#x}')
        for r in range(16):
            g.i(f'v_cmp_le_i32 vcc, {16*(r>>3) + (r&7)}, v{VT+2}')
            g.i(f'v_cndmask_b32 v{MASK+r}, v{VT+3}, 0, vcc')
        g.i(f'v_and_b32 v{VT+2}, 15, v{V_L}')
        g.i(f'v_lshrrev_b32 v{VT+3}, 4, v{V_L}')
        g.i(f'v_lshlrev_b32 v{VKW}, 4, v{VT+2}')
        g.i(f'v_lshl_add_u32 v{VKW}, v{VT+3}, 2, v{VKW}')
        g.i(f'v_add_u32 v{VKW}, s{S_LB}, v{VKW}')
        g.i(f'v_bfe_u32 v{VT+2}, v{V_L}, 2, 2')
        g.i(f'v_lshl_add_u32 v{VT+2}, v{HF}, 3, v{VT+2}')
        g.i(f'v_lshlrev_b32 v{VKR}, 4, v{VT+2}')
        g.i(f'v_and_b32 v{VT+2}, 1, v{V_L}')
        g.i(f'v_lshl_add_u32 v{VKR}, v{VT+2}, 3, v{VKR}')
        g.i(f'v_add_u32 v{VKR}, s{S_LB}, v{VKR}')
        g.i(f'v_lshlrev_b32 v{VVR}, 4, v{J}')
        g.i(f'v_lshl_add_u32 v{VVR}, v{HF}, 3, v{VVR}')
        g.i(f'v_add_u32 v{VVR}, s{S_LB}, v{VVR}')
        self.wait_ln(VT + 2)
        top, end = g.newlabel('at'), g.newlabel('ae')
        g.label(top)
        g.forget()
        g.i(f's_lshr_b32 s{S_S}, s{S_U}, 5')
        g.i(f's_and_b32 s{S_HD}, s{S_U}, 31')
        g.i(f's_lshl_b32 s{S_BLK}, s{S_U}, 13')
        g.i(f's_mul_hi_u32 s{S_NEED}, s{S_S}, {(1 << 32) // 3 + 1}')
        g.i(f's_mul_i32 s{T0}, s{S_NEED}, 3')
        g.i(f's_sub_u32 s{T0}, s{S_S}, s{T0}')
        g.i(f's_lshl_b32 s{T0}, s{T0}, 9')
        g.i(f's_add_u32 s{S_F1}, s{T0}, {OFF_FLAG + FL_P1}')
        g.i(f's_add_u32 s{S_NEED}, s{S_NEED}, 1')
        g.i(f's_lshr_b32 s{T0}, s{S_HD}, 1')
        g.i(f's_add_u32 s{T0}, s{T0}, 32')
        g.i(f's_lshl_b32 s{T0}, s{T0}, 2')
        g.i(f's_lshl_b32 s{T1}, s{S_HD}, 2')
        g.i(f'v_mov_b32 v{VFA}, s{T0}')
        g.i(f'v_writelane_b32 v{VFA}, s{T1}, 0')

        def ld():
            g.i(f'buffer_load_dword v{VF}, v{VFA}, {WS}, s{S_F1} offen sc1')
            g.wait_vm()

        def tst():
            g.i(f'v_cmp_gt_u32 vcc, s{S_NEED}, v{VF}')
            g.i(f's_cmp_eq_u64 vcc, 0')
        self.spin(ld, tst, 8)
        g.vm_q = []
        for base, dst, va, tg in ((OFF_QX, Q, V_L16, 'q'), (OFF_KX, K, VK, 'k'), (OFF_VX, V, V_L16, 'v')):
            for hb in range(2):
                g.i(f's_add_u32 s{T0}, s{S_BLK}, {base + 4096*hb}')
                for n in range(4):
                    g.i(f'buffer_load_dwordx4 {vr(dst + 16*hb + 4*n, 4)}, v{va}, {WS}, s{T0} offen offset:{1024*n} sc1', tag=tg)
        g.wait_vm('k')
        for u in range(8):
            g.i(f'v_mfma_f32_32x32x16_bf16 {vr(SX,16)}, {vr(K+4*u,4)}, {vr(Q+4*u,4)}, {vr(SX if u else MASK,16)}')
        g.i(f'v_max3_f32 v{VMX}, v{SX}, v{SX+1}, v{SX+2}')
        for r in range(3, 15, 2):
            g.i(f'v_max3_f32 v{VMX}, v{VMX}, v{SX+r}, v{SX+r+1}')
        g.i(f'v_max_f32 v{VMX}, v{VMX}, v{SX+15}')
        g.i(f's_lshl_b32 s{T2}, s{S_U}, 2')
        g.i(f's_add_u32 s{T2}, s{T2}, {OFF_FLAG + FL_KM}')
        self.wait_word(T2, 1, VF, 2)
        g.i(f's_lshl_b32 s{T0}, s{S_U}, 12')
        g.i(f's_add_u32 s{T0}, s{T0}, {OFF_KM}')
        g.vm_q = []; g.lds_q = []
        for w in range(4):
            g.i(f'buffer_load_dwordx4 {vr(REC+4*w,4)}, v{V_L16}, {WS}, s{T0} offen offset:{1024*w} sc1', tag=('r', w))
        for w in range(4):
            g.wait_vm(('r', w))
            g.i(f'ds_write2st64_b32 v{VKW}, v{REC+4*w}, v{REC+4*w+1} offset0:{2*w} offset1:{2*w+1}')
            g.i(f'ds_write2st64_b32 v{VKW}, v{REC+4*w+2}, v{REC+4*w+3} offset0:{8+2*w} offset1:{8+2*w+1}')
        g.wait_lds()
        for u in range(8):
            g.i(f'ds_read_b64_tr_b16 {vr(KM+4*u,2)}, v{VKR} offset:{256*u}', tag=('km', u))
            g.i(f'ds_read_b64_tr_b16 {vr(KM+4*u+2,2)}, v{VKR} offset:{256*u + 64}', tag=('km', u))
            if u >= 4:
                g.wait_lds(('km', u - 4))
                g.i(f'v_mfma_f32_32x32x16_bf16 {vr(SM,16)}, {vr(KM+4*(u-4),4)}, {vr(Q+4*(u-4),4)}, {vr(SM,16) if u > 4 else 0}')
        for nb in range(4):
            g.i(f'ds_read_b64 {vr(VM+2*nb,2)}, v{VVR} offset:{2048 + 512*nb}', tag='vm')
        for u in range(4, 8):
            g.wait_lds(('km', u))
            g.i(f'v_mfma_f32_32x32x16_bf16 {vr(SM,16)}, {vr(KM+4*u,4)}, {vr(Q+4*u,4)}, {vr(SM,16)}')
        g.i(f'v_max3_f32 v{VMX}, v{VMX}, v{SM}, v{SM+1}')
        g.i(f'v_max3_f32 v{VMX}, v{VMX}, v{SM+2}, v{SM+3}')
        g.i(f'v_mov_b32 v{VT}, v{VMX}')
        g.i(f'v_permlane32_swap_b32 v{VMX}, v{VT}')
        g.i(f'v_max_f32 v{VMX}, v{VMX}, v{VT}')
        g.i(f'v_mul_f32 v{VMX}, s{S_C}, v{VMX}')
        vals = list(range(SX, SX + 20))
        for r in vals:
            g.i(f'v_fma_f32 v{r}, v{r}, s{S_C}, -v{VMX}')
        for r in vals:
            g.i(f'v_exp_f32 v{r}, v{r}')
        for k in range(10):
            g.i(f'v_cvt_pk_bf16_f32 v{PB+k}, v{SX+2*k}, v{SX+2*k+1}')
        g.wait_lds()
        sums = [f'v_add_f32 v{VL}, v{SX}, v{SX+1}'] + [f'v_add_f32 v{VL}, v{VL}, v{r}' for r in vals[2:]] + \
            [f'v_mov_b32 v{VT}, v{VL}', 's_nop 1', f'v_permlane32_swap_b32 v{VL}, v{VT}', f'v_add_f32 v{VL}, v{VL}, v{VT}',
             f'v_rcp_f32 v{VL}, v{VL}']
        for st in range(3):
            for nb in range(4):
                o = vr(O + 16 * nb, 16)
                g.i([f'v_mfma_f32_32x32x16_bf16 {o}, {vr(V+8*nb,4)}, {vr(PB,4)}, 0',
                     f'v_mfma_f32_32x32x16_bf16 {o}, {vr(V+8*nb+4,4)}, {vr(PB+4,4)}, {o}',
                     f'v_mfma_f32_32x32x8_bf16 {o}, {vr(VM+2*nb,2)}, {vr(PB+8,2)}, {o}'][st])
                for _ in range(4):
                    if sums:
                        g.i(sums.pop(0))
        assert not sums
        g.i(f's_add_u32 s{T0}, s{S_BLK}, {OFF_O}')
        g.i(f's_add_u32 s{T1}, s{T0}, 4096')
        for n in range(8):
            o, p = O + 8 * n, KM + 4 * n
            for r in range(8):
                g.i(f'v_mul_f32 v{o+r}, v{o+r}, v{VL}')
            for k in range(4):
                g.i(f'v_cvt_pk_bf16_f32 v{p+k}, v{o+2*k}, v{o+2*k+1}')
            g.i(f'v_permlane32_swap_b32 v{p}, v{p+2}')
            g.i(f'v_permlane32_swap_b32 v{p+1}, v{p+3}')
            g.i(f'buffer_store_dwordx4 {vr(p,4)}, v{V_L16}, {WS}, s{T0 if n < 4 else T1} offen offset:{1024*(n%4)} sc1')
        g.i(f's_lshl_b32 s{T0}, s{S_S}, 6')
        g.i(f's_add_u32 s{T0}, s{T0}, {OFF_FLAG + FL_O}')
        g.i(f'v_mov_b32 v{VF}, 1')
        g.wait_vm()
        g.i('s_mov_b64 exec, 1')
        g.i(f'buffer_atomic_add v{VF}, off, {WS}, s{T0}')
        g.i('s_mov_b64 exec, -1')
        g.i(f's_add_u32 s{S_U}, s{S_U}, {4 * N_ATT}')
        g.i(f's_cmp_lt_u32 s{S_U}, 2048')
        g.settle()
        g.i(f's_cbranch_scc1 {top}')
```

```python
import math, struct
from asmgen import *
from layout import *

S_WS = 4
S_W8 = 8
S_DBG = 12
S_W, S_H, S_STEP = 14, 15, 16
S_MCUR, S_PST = 17, 18
S_KX, S_VX, S_KM = 21, 22, 23
S_RED = 24
S_MS, S_M1 = 28, 30
S_RDY, S_RNEED = 32, 39
S_XCC = 59
S_PF = 33
S_TAG, S_MRST, S_FLG = 46, 47, 58
S_ONE = 36
S_M3, S_SCR = 34, 38
S_C = 40
S_TRY = 41
S_T0, S_T1, S_T2, S_T3 = 42, 43, 44, 45
S_PTR = 48
S_ST = 60
V_L16, V_IDX, V_WL, V_QKW, V_QKR, V_SWX, V_SRM, V_OW, V_MW, V_RED, V_MST, V_KX, V_VX, V_SH = range(14)
V_ACC = 14
V_X0 = 30
V_T0, V_T1 = 34, 35
V_X1 = 36
V_KXD = 40
V_AR = 48
V_STG = 60
V_PUB = 76
L_M = 0
L_QK = 9216
L_SM = 13568
L_EL = 15360
L_W = 16384
LDS_BYTES = 163840
SPIN_MAX = 300000

def f2u(x):
    return struct.unpack('<I', struct.pack('<f', x))[0]

PAIRS = [('q', t) for t in range(9)] + [('k', t) for t in range(9)] + [('v', t) for t in range(9)] + \
        [('o', u, p) for p in range(5) for u in range(2)]
LDS_PAIRS = [('k', 1), ('q', 3), ('k', 4), ('q', 6), ('k', 7), ('v', 1), ('v', 4), ('o', 1, 1), ('o', 1, 3)]
STG_NEXT = {LDS_PAIRS[i]: LDS_PAIRS[i + 1] for i in (0, 1, 2, 3, 4, 5, 7)}
REG_PAIRS = [p for p in PAIRS if p not in LDS_PAIRS]

def build_regmap():
    m = {}
    slot = 0
    for p in REG_PAIRS:
        for x in range(2):
            if p[0] == 'o' and p[2] == 4 and x == 1:
                continue
            m[(p, x)] = ar(8 * slot, 8) if slot < 32 else vr(80 + 8 * (slot - 32), 8)
            m[(p, x, 'base')] = ('a', 8 * slot) if slot < 32 else ('v', 80 + 8 * (slot - 32))
            slot += 1
    assert slot == 54, slot
    return m
REGMAP = build_regmap()
SEQ = REG_PAIRS + LDS_PAIRS
LDS_BLOCK = {p: SEQ.index(p) % 9 for p in LDS_PAIRS}


class Chain:
    def __init__(self, g, diag=False, standalone=True, opt=()):
        self.opt = set(opt)
        self.g = g
        self.diag = diag
        self.standalone = standalone
        self.nst = 0
        self.names = []
        self.bp, self.mp, self.warm = 0, 15, 0
        self.dr, self.dm, self.dq = [0, 20, 50], [0, 0], 28

    def stamp(self, name='', lvl=0):
        if not self.diag or (lvl and lvl != self.diag):
            return
        g = self.g
        g.i(f's_memtime s[{S_ST + 2*self.nst}:{S_ST + 2*self.nst + 1}]')
        self.names.append(name)
        self.nst += 1
        assert self.nst <= 18

    def dump_stamps(self):
        if not self.diag:
            return
        g = self.g
        g.wait_lds()
        for k in range(self.nst):
            g.i(f'v_writelane_b32 v{V_T0}, s{S_ST + 2*k}, {k}')
        g.i(f'v_writelane_b32 v{V_T0}, s100, 29')
        g.i(f'v_writelane_b32 v{V_T0}, s98, 30')
        g.i(f'v_writelane_b32 v{V_T0}, s99, 31')
        g.i(f's_lshl_b32 s{S_T0}, s{S_STEP}, 5')
        g.i(f's_add_u32 s{S_T0}, s{S_T0}, s{S_H}')
        g.i(f's_lshl_b32 s{S_T0}, s{S_T0}, 2')
        g.i(f's_add_u32 s{S_T0}, s{S_T0}, s{S_W}')
        g.i(f's_lshl_b32 s{S_T0}, s{S_T0}, 7')
        g.i(f's_add_u32 s{S_T0}, s{S_T0}, {OFF_DIAG}')
        g.i(f'v_lshrrev_b32 v{V_T1}, 2, v{V_L16}')
        g.i(f's_mov_b64 exec, 0xffffffff')
        g.i(f'buffer_store_dword v{V_T0}, v{V_T1}, s[{S_WS}:{S_WS+3}], s{S_T0} offen')
        g.i(f's_mov_b64 exec, -1')
        g.i(f's_add_u32 s{S_STEP}, s{S_STEP}, 1')

    def lane_consts(self):
        g = self.g
        L, I_, G_, A, B, C, D = 14, 15, 16, 17, 18, 19, 20
        g.i(f'v_mov_b32 v{L}, v0')
        g.i(f'v_and_b32 v{I_}, 15, v{L}')
        g.i(f'v_lshrrev_b32 v{G_}, 4, v{L}')
        g.i(f'v_lshlrev_b32 v{V_L16}, 4, v{L}')
        g.i(f'v_bfe_u32 v{A}, v{I_}, 1, 1')
        g.i(f'v_mul_u32_u24 v{B}, 0xaaaa, v{A}')
        g.i(f'v_add_u32 v{V_IDX}, 0x4444, v{B}')
        g.i(f'v_lshrrev_b32 v{B}, 2, v{I_}')
        g.i(f'v_and_b32 v{C}, 1, v{I_}')
        g.i(f'v_lshl_add_u32 v{D}, v{B}, 1, v{C}')
        g.i(f's_mul_i32 s{S_T0}, s{S_W}, 36864')
        g.i(f's_add_u32 s{S_T0}, s{S_T0}, {L_W}')
        g.i(f'v_add_u32 v{V_WL}, s{S_T0}, v{V_L16}')
        g.i(f's_mul_i32 s{S_T0}, s{S_W}, 1088')
        g.i(f's_add_u32 s{S_T1}, s{S_T0}, {L_QK}')
        g.i(f'v_add_u32 v{V_QKW}, v{B}, v{G_}')
        g.i(f'v_lshlrev_b32 v{V_QKW}, 3, v{V_QKW}')
        g.i(f'v_lshl_add_u32 v{V_QKW}, v{I_}, 5, v{V_QKW}')
        g.i(f'v_add_u32 v{V_QKW}, s{S_T1}, v{V_QKW}')
        g.i(f'v_mul_u32_u24 v{V_QKR}, 272, v{G_}')
        g.i(f'v_lshl_add_u32 v{V_QKR}, v{I_}, 3, v{V_QKR}')
        g.i(f'v_add_u32 v{V_QKR}, s{S_T1}, v{V_QKR}')
        g.i(f'v_lshlrev_b32 v{V_SWX}, 8, v{G_}')
        g.i(f'v_lshl_add_u32 v{V_SWX}, v{D}, 4, v{V_SWX}')
        g.i(f'v_lshl_add_u32 v{V_SWX}, v{A}, 7, v{V_SWX}')
        g.i(f'v_add_u32 v{V_SWX}, s{S_T0}, v{V_SWX}')
        g.i(f'v_lshlrev_b32 v{V_SRM}, 2, v{L}')
        g.i(f'v_and_b32 v{B}, 7, v{I_}')
        g.i(f'v_lshrrev_b32 v{C}, 3, v{I_}')
        g.i(f'v_lshlrev_b32 v{V_SH}, 4, v{C}')
        g.i(f'v_lshlrev_b32 v{V_OW}, 8, v{C}')
        g.i(f'v_lshrrev_b32 v{C}, 1, v{B}')
        g.i(f'v_lshl_add_u32 v{V_OW}, v{C}, 6, v{V_OW}')
        g.i(f'v_and_b32 v{C}, 1, v{B}')
        g.i(f'v_lshl_add_u32 v{V_OW}, v{C}, 4, v{V_OW}')
        g.i(f'v_lshrrev_b32 v{C}, 1, v{G_}')
        g.i(f'v_lshl_add_u32 v{V_OW}, v{C}, 5, v{V_OW}')
        g.i(f'v_and_b32 v{C}, 1, v{G_}')
        g.i(f'v_lshl_add_u32 v{V_OW}, v{C}, 3, v{V_OW}')
        g.i(f's_lshl_b32 s{S_T1}, s{S_W}, 9')
        g.i(f'v_add_u32 v{V_OW}, s{S_T1}, v{V_OW}')
        g.i(f'v_add_u32 v{V_SRM}, {L_SM}, v{V_SRM}')
        g.i(f's_mul_i32 s{S_T1}, s{S_W}, 3072')
        g.i(f'v_add_u32 v{V_MW}, s{S_T1}, v{V_L16}')
        g.i(f's_lshl_b32 s{S_T1}, s{S_W}, 6')
        g.i(f's_lshl_b32 s{S_T1}, s{S_W}, 11')
        g.i(f'v_lshlrev_b32 v{V_VX}, 9, v{G_}')
        g.i(f'v_add_u32 v{V_VX}, s{S_T1}, v{V_VX}')
        g.i(f'v_lshrrev_b32 v{B}, 2, v{I_}')
        g.i(f'v_and_b32 v{C}, 3, v{I_}')
        g.i(f'v_lshl_add_u32 v{B}, v{B}, 3, v{C}')
        g.i(f'v_lshl_add_u32 v{V_KX}, v{B}, 4, v{V_VX}')
        g.i(f'v_lshl_add_u32 v{V_VX}, v{I_}, 4, v{V_VX}')
        GM, ETA, Y_, JJ, U, W_, D0, DS = 21, 22, 23, 24, 26, 27, 28, 29
        g.i(f's_lshl_b32 s{S_T0}, s{S_W}, 12')
        g.i(f's_lshl_b32 s{S_T1}, s{S_H}, 7')
        g.i(f's_add_u32 s{S_T0}, s{S_T0}, s{S_T1}')
        g.i(f'v_and_b32 v{GM}, 7, v{L}')
        g.i(f'v_lshrrev_b32 v{B}, 3, v{L}')
        g.i(f'v_mul_u32_u24 v{V_RED}, 12288, v{B}')
        g.i(f'v_lshl_add_u32 v{V_RED}, v{GM}, 4, v{V_RED}')
        g.i(f'v_add_u32 v{V_RED}, s{S_T0}, v{V_RED}')
        g.i(f'v_and_b32 v{ETA}, 3, v{L}')
        g.i(f'v_lshrrev_b32 v{Y_}, 2, v{GM}')
        g.i(f'v_lshrrev_b32 v{B}, 1, v{GM}')
        g.i(f'v_cmp_lt_u32 vcc, 31, v{L}')
        g.i(f'v_cndmask_b32 v{Y_}, v{Y_}, 2, vcc')
        g.i(f'v_cndmask_b32 v{JJ}, v{ETA}, v{B}, vcc')
        g.i(f'v_mov_b32 v{DS}, 32')
        g.i(f'v_cndmask_b32 v{DS}, v{DS}, 2, vcc')
        g.i(f'v_cndmask_b32 v{D0}, 0, 32, vcc')
        g.i(f'v_add_u32 v{D0}, v{D0}, v{GM}')
        g.i(f'v_and_b32 v{B}, 1, v{G_}')
        g.i(f'v_lshlrev_b32 v{U}, 10, v{Y_}')
        g.i(f'v_lshl_add_u32 v{U}, v{JJ}, 2, v{U}')
        g.i(f'v_lshl_add_u32 v{U}, v{B}, 4, v{U}')
        g.i(f's_mul_i32 s{S_T0}, s{S_W}, 3072')
        g.i(f's_lshl_b32 s{S_T1}, s{S_H}, 5')
        g.i(f's_add_u32 s{S_T0}, s{S_T0}, s{S_T1}')
        g.i(f'v_add_u32 v{V_MST}, s{S_T0}, v{U}')
        g.i(f's_lshr_b32 s{S_T0}, s{S_H}, 3')
        g.i(f's_mul_i32 s{S_T0}, s{S_T0}, 144')
        g.i(f's_mul_i32 s{S_T1}, s{S_W}, 48')
        g.i(f's_add_u32 s{S_T0}, s{S_T0}, s{S_T1}')
        g.i(f's_and_b32 s{S_T1}, s{S_H}, 1')
        g.i(f's_lshl_b32 s{S_T1}, s{S_T1}, 3')
        g.i(f's_add_u32 s{S_T0}, s{S_T0}, s{S_T1}')
        g.i(f's_bfe_u32 s{S_T1}, s{S_H}, 0x20001')
        g.i(f's_mul_i32 s{S_T1}, s{S_T1}, 1152')
        g.i(f's_add_u32 s{S_T0}, s{S_T0}, s{S_T1}')
        g.i(f'v_mul_u32_u24 v{B}, 576, v{B}')
        g.i(f'v_add3_u32 v{D0}, v{D0}, v{B}, s{S_T0}')
        g.i(f'v_lshlrev_b32 v{D0}, 1, v{D0}')
        LA, LB, LO, TR = 30, 31, 32, 33
        g.i(f'v_bfe_u32 v{B}, v{L}, 3, 1')
        g.i(f'v_bfe_u32 v{C}, v{L}, 2, 1')
        g.i(f'v_lshl_add_u32 v{LA}, v{B}, 3, v{G_}')
        g.i(f'v_add3_u32 v{LB}, v{LA}, v{G_}, v{C}')
        g.i(f'v_lshl_add_u32 v{LA}, v{C}, 4, v{LA}')
        g.i(f'v_lshlrev_b32 v{A}, 4, v{ETA}')
        g.i(f'v_mul_u32_u24 v{LO}, 1152, v{LB}')
        g.i(f'v_add_u32 v{LO}, v{LO}, v{A}')
        g.i(f'v_lshl_add_u32 v{LA}, v{LA}, 13, v{A}')
        g.i(f'v_lshl_add_u32 v{LB}, v{LB}, 13, v{A}')
        g.i(f'v_lshrrev_b32 v{B}, 2, v{I_}')
        g.i(f'v_lshl_add_u32 v{B}, v{G_}, 3, v{B}')
        g.i(f'v_lshlrev_b32 v{TR}, 6, v{B}')
        g.i(f'v_lshl_add_u32 v{TR}, v{ETA}, 3, v{TR}')
        g.i(f's_mul_i32 s{S_T0}, s{S_W}, 36864')
        g.i(f's_add_u32 s{S_T0}, s{S_T0}, {L_W}')
        g.i(f'v_add_u32 v{TR}, s{S_T0}, v{TR}')
        n3 = g.newlabel('n3')
        g.i(f's_cmp_lg_u32 s{S_W}, 3')
        g.i(f's_cbranch_scc1 {n3}')
        g.i(f'v_lshlrev_b32 v{V_MW}, 7, v{L}')
        g.label(n3)
        return dict(D0=D0, DS=DS, LA=LA, LB=LB, LO=LO, TR=TR)

    def scalar_consts(self):
        g = self.g
        g.i(f's_mov_b32 s{S_STEP}, 0')
        g.i(f's_mov_b32 s{S_MCUR}, {OFF_MB}')
        g.i(f's_mov_b32 s{S_MRST}, {OFF_MB + 3 * 16384}')
        g.i(f's_mov_b32 s{S_TAG}, 1')
        g.i(f's_mov_b32 s{S_SCR}, {OFF_FLAG}')
        g.i(f's_lshl_b32 s{S_FLG}, s{S_H}, 2')
        g.i(f's_add_u32 s{S_FLG}, s{S_FLG}, {OFF_FLAG + FL_KM - 256}')
        g.i(f's_mul_i32 s{S_T0}, s{S_H}, 12288')
        g.i(f's_lshl_b32 s{S_T1}, s{S_W}, 10')
        g.i(f's_add_u32 s{S_T0}, s{S_T0}, s{S_T1}')
        for j in range(3):
            g.i(f's_add_u32 s{S_PST+j}, s{S_T0}, {OFF_PART + 4096 * j}')
        for n in range(4):
            g.i(f's_mov_b32 s{S_RED + n}, {OFF_PART + n * 8 * 12288}')
        g.i(f's_mov_b32 s{S_MS}, 0x00ff00ff')
        g.i(f's_mov_b32 s{S_MS+1}, 0x00550055')
        g.i(f's_mov_b32 s{S_M1}, 0x00110011')
        g.i(f's_mov_b32 s{S_M1+1}, 0x00110011')
        g.i(f's_lshl_b32 s{S_T0}, s{S_H}, 13')
        g.i(f's_add_u32 s{S_KX}, s{S_T0}, {OFF_KX}')
        g.i(f's_add_u32 s{S_VX}, s{S_T0}, {OFF_VX}')
        g.i(f's_lshl_b32 s{S_T0}, s{S_H}, 12')
        g.i(f's_lshl_b32 s{S_T1}, s{S_W}, 10')
        g.i(f's_add_u32 s{S_T0}, s{S_T0}, s{S_T1}')
        g.i(f's_add_u32 s{S_KM}, s{S_T0}, {OFF_KM - 32 * 4096}')
        g.i(f's_mov_b32 s{S_M3}, 0x33333333')
        g.i(f's_mov_b32 s{S_M3+1}, 0x33333333')
        g.i(f's_mov_b32 s{S_ONE}, 0x3f803f80')
        g.i(f's_mov_b32 s{S_ONE+1}, 0x3f803f80')
        g.i(f's_mov_b32 s{S_C}, {f2u(128 ** -0.5 * math.log2(math.e)):#x}')

    def set_srd(self, ptr, nbytes):
        g = self.g
        g.i(f's_mov_b32 s{S_W8}, s{ptr}')
        g.i(f's_mov_b32 s{S_W8+1}, s{ptr+1}')
        g.i(f's_mov_b32 s{S_W8+2}, {nbytes}')
        g.i(f's_mov_b32 s{S_W8+3}, 0x20000')

    def init_exchange(self, R):
        g = self.g
        skip = g.newlabel('ci')
        WS = f's[{S_WS}:{S_WS+3}]'
        for k in range(4):
            g.i(f'v_mov_b32 v{V_PUB+k}, -1')
            g.i(f'v_mov_b32 v{V_KXD+k}, 0')
        self.set_srd(S_PTR, 9216)
        g.i(f's_cmp_eq_u32 s{S_W}, 3')
        g.i(f's_cbranch_scc1 {skip}')
        g.i(f'buffer_load_ushort v{V_AR}, v{R["D0"]}, s[{S_W8}:{S_W8+3}], 0 offen')
        g.i(f'v_add_u32 v{R["D0"]}, v{R["D0"]}, v{R["DS"]}')
        g.i(f'buffer_load_ushort v{V_AR+1}, v{R["D0"]}, s[{S_W8}:{S_W8+3}], 0 offen')
        for n in range(4):
            g.i(f'buffer_store_dwordx4 {vr(V_KXD,4)}, v{V_RED}, {WS}, s{S_RED+n} offen sc1')
            g.i(f's_xor_b32 s{S_T0}, s{S_RED+n}, 0x100000')
            g.i(f'buffer_store_dwordx4 {vr(V_KXD,4)}, v{V_RED}, {WS}, s{S_T0} offen sc1')
        g.i(f's_mov_b64 exec, s[{S_MS}:{S_MS+1}]')
        for k in range(1, 4):
            g.i(f's_mov_b32 s{S_T0}, {OFF_MB + 16384 * k}')
            g.i(f'buffer_store_dword v{V_PUB}, v{V_MST}, {WS}, s{S_T0} offen sc1')
        g.i('s_waitcnt vmcnt(11)')
        g.i(f'v_lshl_or_b32 v{V_T0}, v{V_AR+1}, 16, v{V_AR}')
        g.i(f'v_min_u32 v{V_T0}, -2, v{V_T0}')
        g.i(f's_mov_b32 s{S_T0}, {OFF_MB}')
        g.i(f'buffer_store_dword v{V_T0}, v{V_MST}, {WS}, s{S_T0} offen sc1')
        g.i('s_mov_b64 exec, -1')
        g.label(skip)
        g.wait_vm()
        g.i('s_barrier')
        s2 = g.newlabel('ci')
        g.i(f's_cmp_lg_u32 s{S_W}, 0')
        g.i(f's_cbranch_scc1 {s2}')
        g.i('s_mov_b64 exec, 1')
        if not self.standalone:
            g.i(f's_lshl_b32 s{S_T0}, 1, s{S_XCC}')
            g.i(f'v_mov_b32 v{V_T0}, {DBG_MASK}')
            g.i(f'v_mov_b32 v{V_T1}, s{S_T0}')
            g.i(f'global_atomic_or v{V_T0}, v{V_T1}, s[{S_DBG}:{S_DBG+1}]')
            g.i('s_waitcnt vmcnt(0)')
        g.i(f'v_mov_b32 v{V_T0}, {DBG_INIT}')
        g.i(f'v_mov_b32 v{V_T1}, 1')
        g.i(f'global_atomic_add v{V_T0}, v{V_T1}, s[{S_DBG}:{S_DBG+1}]')
        g.i('s_mov_b64 exec, -1')
        g.label(s2)
        g.vm_q = []

    def load_weights(self, R):
        g = self.g
        ptr = {'q': S_PTR + 2, 'k': S_PTR + 4, 'v': S_PTR + 6, 'o': S_PTR + 8}
        state = {'cur': None}
        g.i(f's_lshl_b32 s{S_T2}, s{S_H}, 8')
        g.i(f's_lshl_b32 s{S_T0}, s{S_W}, 6')
        g.i(f's_add_u32 s{S_T2}, s{S_T2}, s{S_T0}')
        g.i(f's_mul_i32 s{S_T3}, s{S_H}, {128*1152}')
        g.i(f's_mul_i32 s{S_T0}, s{S_W}, 288')
        g.i(f's_add_u32 s{S_T3}, s{S_T3}, s{S_T0}')
        g.i(f's_mul_i32 s{S_PF}, s{S_W}, 36864')
        g.i(f's_add_u32 s{S_PF}, s{S_PF}, {L_W}')

        def issue(n):
            p = SEQ[n]
            if state['cur'] != p[0]:
                self.set_srd(ptr[p[0]], 4718592)
                state['cur'] = p[0]
            blk = n % 9
            for q in range(4):
                if p[0] == 'o':
                    uni = (64 * p[1] + 16 * q) * 1152 + p[2] * 64
                    base, va = S_T3, R['LO']
                elif p[1] % 3 < 2:
                    uni = (16 * (9 * q + 3 * (p[1] // 3)) + 4 * (p[1] % 3)) * 8192
                    base, va = S_T2, R['LA']
                else:
                    uni = 16 * (9 * q + 3 * (p[1] // 3) + 2) * 8192
                    base, va = S_T2, R['LB']
                g.i(f's_add_u32 m0, s{S_PF}, {blk * 4096 + q * 1024}')
                g.i(f's_add_u32 s{S_T0}, s{base}, {uni}')
                g.i(f'buffer_load_dwordx4 v{va}, s[{S_W8}:{S_W8+3}], s{S_T0} offen lds', tag=('w', n))

        for n in range(9):
            issue(n)
        QOFF = [0, 256, 2048, 2304]
        for n, p in enumerate(SEQ):
            g.wait_vm(('w', n))
            blk = n % 9
            inlds = p in LDS_PAIRS
            for x in range(2):
                if p[0] == 'o' and p[2] == 4 and x == 1:
                    continue
                for q in range(4):
                    if inlds:
                        dst = vr(V_STG + 8 * x + 2 * q, 2)
                    else:
                        k, b = REGMAP[(p, x, 'base')]
                        dst = (ar if k == 'a' else vr)(b + 2 * q, 2)
                    g.i(f'ds_read_b64_tr_b16 {dst}, v{R["TR"]} offset:{blk * 4096 + QOFF[q] + 32 * x}')
            g.wait_lds()
            if inlds:
                for y in range(4):
                    g.i(f'ds_write_b128 v{V_WL}, {vr(V_STG + 4 * y, 4)} offset:{blk * 4096 + y * 1024}')
                g.wait_lds()
            elif n + 9 < len(SEQ):
                issue(n + 9)

    def wait_word(self, off, val, bail):
        g = self.g
        lp, ok = g.newlabel('ww'), g.newlabel('ww')
        g.i(f's_mov_b32 s{S_TRY}, 0')
        g.i(f'v_mov_b32 v{V_T0}, {off}')
        g.label(lp)
        g.i(f'global_load_dword v{V_T1}, v{V_T0}, s[{S_DBG}:{S_DBG+1}] sc1')
        g.wait_vm()
        g.i(f'v_readfirstlane_b32 s{S_T0}, v{V_T1}')
        g.i(f's_cmp_ge_u32 s{S_T0}, {val}')
        g.i(f's_cbranch_scc1 {ok}')
        g.i('s_sleep 2')
        g.i(f's_add_u32 s{S_TRY}, s{S_TRY}, 1')
        g.i(f's_cmp_lt_u32 s{S_TRY}, {SPIN_MAX}')
        g.i(f's_cbranch_scc1 {lp}')
        g.i(f's_branch {bail}')
        g.label(ok)

    def spin_ready(self, soff, sneed, bail, first_loaded=False):
        g = self.g
        lp, chk, ok = g.newlabel('rd'), g.newlabel('rd'), g.newlabel('rd')
        g.i(f's_mov_b32 s{S_TRY}, 0')
        if first_loaded:
            g.i(f's_branch {chk}')
        g.label(lp)
        g.i(f'buffer_load_dword v{V_MST}, off, s[{S_WS}:{S_WS+3}], s{soff} sc1')
        g.label(chk)
        g.wait_vm()
        g.i(f'v_readfirstlane_b32 s{S_T0}, v{V_MST}')
        g.i(f's_cmp_ge_u32 s{S_T0}, {sneed}')
        g.i(f's_cbranch_scc1 {ok}')
        g.i('s_sleep 4')
        g.i(f's_add_u32 s{S_TRY}, s{S_TRY}, 1')
        g.i(f's_cmp_lt_u32 s{S_TRY}, {SPIN_MAX}')
        g.i(f's_cbranch_scc1 {lp}')
        g.i(f's_branch {bail}')
        g.label(ok)

    def start(self, bail, done):
        g = self.g
        self.wait_word(DBG_INIT, 32, bail)
        g.i(f'v_mov_b32 v{V_T0}, {DBG_MASK}')
        g.i(f'global_load_dword v{V_T1}, v{V_T0}, s[{S_DBG}:{S_DBG+1}] sc1')
        g.wait_vm()
        g.i(f'v_readfirstlane_b32 s{S_XCC}, v{V_T1}')
        sk = g.newlabel('st')
        g.i(f's_lshl_b32 s{S_RDY}, s{S_H}, 2')
        g.i(f's_add_u32 s{S_RDY}, s{S_RDY}, {OFF_FLAG + FL_P1}')
        g.i(f's_mov_b32 s{S_RNEED}, 2')
        g.i(f's_mov_b32 s{S_PF}, 0')
        g.i(f's_cmp_lg_u32 s{S_W}, 3')
        g.i(f's_cbranch_scc1 {sk}')
        self.wait_word(DBG_LN, N_LN, bail)
        for r in range(3):
            g.i(f's_add_u32 s{S_T1}, s{S_RDY}, {512 * r}')
            self.spin_ready(S_T1, 1, bail)
        g.label(sk)
        self.after_wait()
        slow = g.newlabel('slow')
        g.i(f's_bcnt1_i32_b32 s{S_T0}, s{S_XCC}')
        g.i(f's_cmp_gt_u32 s{S_T0}, 1')
        g.i(f's_cbranch_scc1 {slow}')
        self.loops(bail, done, False)
        g.label(slow)
        self.loops(bail, done, True)

    def stage_list(self, p):
        def mk(y):
            return lambda: self.g.i(
                f'ds_read_b128 {vr(V_STG + 4 * y, 4)}, v{V_WL} offset:{LDS_BLOCK[p] * 4096 + y * 1024}',
                tag=('stg', p, y >> 1))
        return [mk(y) for y in range(4)]

    def stage(self, p):
        for f in self.stage_list(p):
            f()

    def bop(self, p, x):
        if p in LDS_PAIRS:
            self.g.wait_lds(('stg', p, x))
            return vr(V_STG + 8 * x, 8)
        return REGMAP[(p, x)]

    def smf(self, acc, a, p, x):
        b = self.bop(p, x)
        self.g.i(f'v_smfmac_f32_16x16x64_bf16 {vr(acc,4)}, {vr(a,4)}, {b}, v{V_IDX}')

    def aread(self, t, ph):
        self.g.i(f'ds_read_b128 {vr(V_AR + 4 * (t % 3), 4)}, v{V_L16} offset:{L_M + t * 1024}', tag=('a', ph, t))

    def flag_store(self):
        g = self.g
        g.i('s_mov_b64 exec, 1')
        g.i(f'buffer_store_dword v{V_IDX}, off, s[{S_WS}:{S_WS+3}], s{S_FLG} sc1')
        g.i('s_mov_b64 exec, -1')

    def loop(self, bail, done, role, slow=False):
        g = self.g
        opt = self.opt
        comm = role < 3
        WS = f's[{S_WS}:{S_WS+3}]'
        XS = 'sc1' if slow else ''
        top = g.newlabel('step')
        Q0, K0, Q1, K1 = [V_ACC + 4 * k for k in range(4)]
        VA0, VA1 = Q0, K0
        MA = [V_X0, V_X1, V_KXD]
        fill = []
        mq = []

        def run(f):
            if isinstance(f, str):
                g.i(f)
            else:
                f()

        def pop(n=1, m=1):
            for _ in range(m):
                if mq:
                    run(mq.pop(0))
            for _ in range(n):
                if fill:
                    run(fill.pop(0))

        def smf(acc, a, p, x):
            self.smf(acc, a, p, x)
            if p in STG_NEXT:
                k = 0
                while k < len(mq) and getattr(mq[k], 'stg', False):
                    k += 1
                for f in self.stage_list(STG_NEXT[p])[2 * x:2 * x + 2]:
                    f.stg = True
                    mq.insert(k, f)
                    k += 1

        MB = [V_STG, V_STG + 4, V_STG + 8]

        def mload(S, tg):
            for k in range(3):
                g.i(f'buffer_load_dwordx4 {vr(S[k],4)}, v{V_MW}, {WS}, s{S_MCUR} offen offset:{1024*k} sc1', tag=(tg, k))

        def mpiece(S, tg, k):
            g.wait_vm((tg, k))
            g.i(f'ds_write_b128 v{V_MW}, {vr(S[k],4)} offset:{L_M + 1024*k}', tag='mw')
            if k == 0:
                g.i(f'v_max3_u32 v{V_T0}, v{S[0]}, v{S[0]+1}, v{S[0]+2}')
                g.i(f'v_max_u32 v{V_T0}, v{V_T0}, v{S[0]+3}')
            else:
                g.i(f'v_max3_u32 v{V_T0}, v{V_T0}, v{S[k]}, v{S[k]+1}')
                g.i(f'v_max3_u32 v{V_T0}, v{V_T0}, v{S[k]+2}, v{S[k]+3}')
            if k == 2:
                g.i(f'v_cmp_eq_u32 vcc, -1, v{V_T0}')

        cold = []

        def count_try():
            g.i(f's_add_u32 s{S_TRY}, s{S_TRY}, 1')
            g.i(f's_cmp_gt_u32 s{S_TRY}, {SPIN_MAX}')
            g.i(f's_cbranch_scc1 {bail}')

        def pingpong(load, check, A, B, sdiag):
            again, ok = g.newlabel('pp'), g.newlabel('ok')
            check(A, 'A')
            g.i(f's_cbranch_vccnz {again}')
            g.label(ok)
            if self.diag:
                g.i(f's_mov_b32 s{sdiag}, s{S_TRY}')
            n = len([t for t in g.vm_q if t and t[0] == 'B'])

            def retry():
                g.label(again)
                g.vm_q = [('B', k) for k in range(n)]
                load(A, 'A')
                count_try()
                check(B, 'B')
                g.i(f's_cbranch_vccz {ok}')
                load(B, 'B')
                g.i(f's_add_u32 s{S_TRY}, s{S_TRY}, 1')
                check(A, 'A')
                g.i(f's_cbranch_vccz {ok}')
                g.i(f's_branch {again}')
                g.forget()
            cold.append(retry)

        def mcheck(S, tg):
            for k in range(3):
                mpiece(S, tg, k)

        def mverify():
            ml, ok = g.newlabel('ml'), g.newlabel('mok')
            g.i(f's_cbranch_vccnz {ml}')
            g.label(ok)
            if self.diag:
                g.i(f's_mov_b32 s99, s{S_TRY}')

            def retry():
                g.label(ml)
                g.vm_q = []
                mload(MA, 'A')
                count_try()
                mcheck(MA, 'A')
                g.i(f's_cbranch_vccnz {ml}')
                g.i(f's_branch {ok}')
                g.forget()
            cold.append(retry)

        kvx = [lambda: g.i(f'buffer_load_dwordx4 {vr(V_KXD,4)}, v{V_KX}, {WS}, s{S_KX} offen sc1', tag='kx'),
               lambda: g.i(f'buffer_load_dwordx4 {vr(V_KXD+4,4)}, v{V_KX}, {WS}, s{S_KX} offen offset:64 sc1', tag='kx'),
               lambda: g.i(f'buffer_load_dwordx4 {vr(V_X0,4)}, v{V_VX}, {WS}, s{S_VX} offen sc1', tag='vx'),
               lambda: g.i(f'buffer_load_dwordx4 {vr(V_X1,4)}, v{V_VX}, {WS}, s{S_VX} offen offset:256 sc1', tag='vx')]
        pub = lambda: g.i(f'buffer_store_dwordx4 {vr(V_PUB,4)}, v{V_L16}, {WS}, s{S_KM} offen sc1')

        def zero_acc():
            for k in range(0, 16, 2):
                g.i(f'v_mov_b64 {vr(V_ACC+k,2)}, 0')

        g.label(top)
        g.lds_q = []; g.vm_q = []
        self.nst = 0; self.names = []
        g.i(f's_mov_b32 s{S_TRY}, 0')
        self.stamp('top', 2)
        zero_acc()
        if role < 2:
            for k in range(self.dm[role]):
                g.i(f'v_mov_b32 v{V_T0}, 0')
            mload(MA, 'A')
            for k in range(self.dq):
                g.i(f'v_mov_b32 v{V_T0}, 0')
            mload(MB, 'B')
            self.stamp('mB issued', 2)
            pingpong(mload, mcheck, MA, MB, 99)
        else:
            self.stamp('mB issued', 2)
        g.wait_lds()
        self.stamp('m in lds')
        g.i('s_barrier')
        self.stamp('B1')
        if self.diag:
            g.i('s_memrealtime s[100:101]')
        ard = lambda t, ph: (lambda: self.aread(t, ph))
        for t in range(3):
            self.aread(t, 0)
        g.vm_q = []
        if role == 2:
            mload(MA, 'A')
        if role < 2:
            mq.append('s_waitcnt vmcnt(0)')
        mq += self.stage_list(LDS_PAIRS[0])
        if role >= 2:
            pop(0, 4)
        BP, MP = self.bp, self.mp
        for t in range(7):
            a = V_AR + 4 * (t % 3)
            if t == 2 and role != 2:
                mq += kvx
            for x, (acc, mat, tl) in enumerate([(Q0, 'q', 0), (Q1, 'q', 1), (K0, 'k', 0), (K1, 'k', 1)]):
                n = 4 * t + x
                if n == 20 + BP:
                    g.wait_lds('mw')
                    g.i('s_barrier')
                    self.aread(t + 1, 0)
                    self.aread(t + 2, 0)
                    if role == 2:
                        mq += kvx
                if x == 0:
                    g.wait_lds(('a', 0, t))
                smf(acc, a, (mat, t), tl)
                if x == 3:
                    if t in (0, 1, 2, 5):
                        self.aread(t + 3, 0)
                    if t == 6:
                        self.aread(0, 1)
                pop(1, 3 if n == 0 else 2 if n == 1 else 1)
                if role == 2 and 0 <= n - MP < 3:
                    mpiece(MA, 'A', n - MP)
                    if n - MP == 2:
                        mverify()
        g.i(f's_mov_b64 vcc, s[{S_M3}:{S_M3+1}]')
        a7, a8 = V_AR + 4 * (7 % 3), V_AR + 4 * (8 % 3)
        mq.append(pub)
        g.wait_lds(('a', 0, 7))
        smf(Q0, a7, ('q', 7), 0)
        pop()
        g.wait_lds(('a', 0, 8))
        smf(Q0, a8, ('q', 8), 0)
        pop()
        smf(K0, a8, ('k', 8), 0)
        pop()
        smf(Q1, a7, ('q', 7), 1)
        pop(0, 100)

        def half(x, dst):
            return [f'v_add_f32 v{x}, v{x}, v{x+2}', f'v_add_f32 v{x+1}, v{x+1}, v{x+3}',
                    f'v_cvt_pk_bf16_f32 v{dst}, v{x}, v{x+1}']
        fill += half(Q0, V_T0) + [f'v_mov_b64 {vr(Q0,2)}, 0', f'v_mov_b64 {vr(Q0+2,2)}, 0']
        pop(1)
        smf(K0, a7, ('k', 7), 0)
        pop(2)
        smf(Q1, a8, ('q', 8), 1)
        pop(2)
        smf(K1, a7, ('k', 7), 1)
        self.aread(1, 1)
        fill += half(K0, V_PUB) + [f'ds_write2_b32 v{V_QKW}, v{V_T0}, v{V_PUB} offset0:0 offset1:1']
        pop(2)
        smf(K1, a8, ('k', 8), 1)
        self.aread(2, 1)
        pop(2)
        self.stamp('qk done')
        vq = [(t, x) for t in range(9) for x in range(2)]

        def vs(n, f=1):
            for _ in range(n):
                t, x = vq.pop(0)
                a = V_AR + 4 * (t % 3)
                if x == 0:
                    g.wait_lds(('a', 1, t))
                smf(VA0 if x == 0 else VA1, a, ('v', t), x)
                if x == 1 and t + 3 < 9:
                    self.aread(t + 3, 1)
                pop(f)
        fill += half(Q1, V_T1)
        vs(1, 3)
        for f in half(K1, V_PUB + 1):
            g.i(f)
        g.i(f'ds_write2_b32 v{V_QKW}, v{V_T1}, v{V_PUB+1} offset0:136 offset1:137')
        QK, T0R = Q1, K1
        g.i(f'ds_read_b64_tr_b16 {vr(QK,2)}, v{V_QKR}', tag='qk')
        g.i(f'ds_read_b64_tr_b16 {vr(QK+2,2)}, v{V_QKR} offset:136', tag='qk')
        g.i(f'v_mov_b64 {vr(K0,2)}, 0')
        g.i(f'v_mov_b64 {vr(K0+2,2)}, 0')
        g.i(f'v_lshrrev_b32 v{V_T0}, 2, v{V_SWX}')
        pop(0, 100)
        if not comm:
            mq += self.slow_io()
        vs(5)
        self.stamp('pre qk wait', 1)
        g.wait_lds('qk')
        g.wait_vm('kx')
        g.i(f'v_mfma_f32_16x16x32_bf16 {vr(V_KXD,4)}, {vr(V_KXD,4)}, {vr(QK,4)}, 0')
        g.i(f'v_mfma_f32_16x16x32_bf16 {vr(V_KXD+4,4)}, {vr(V_KXD+4,4)}, {vr(QK,4)}, 0')
        g.i(f'v_mfma_f32_16x16x32_bf16 {vr(T0R,4)}, {vr(QK,4)}, {vr(QK,4)}, 0')
        vs(1)
        for r in range(4):
            g.i(f'v_cndmask_b32_dpp v{V_KXD+r}, v{V_KXD+4+r}, v{V_KXD+r}, vcc quad_perm:[0,1,0,1] row_mask:0xf bank_mask:0xf')
        g.i(f'ds_write_b128 v{V_SWX}, {vr(V_KXD,4)} offset:{L_QK}')
        g.i(f'v_cndmask_b32_dpp v{T0R+2}, v{T0R+3}, v{T0R+2}, vcc quad_perm:[0,1,0,1] row_mask:0xf bank_mask:0xf')
        g.i(f'ds_write_b32 v{V_T0}, v{T0R+2} offset:{L_SM}', tag='sw')
        vs(5)
        assert not mq
        g.wait_lds('sw')
        self.stamp('S written', 1)
        g.i('s_barrier')
        self.stamp('B2')
        X = V_STG
        M = Q1
        PB = V_KXD + 2
        WL_, WM, WR = V_X0 - 2, V_T0, V_KXD
        for w in range(4):
            g.i(f'ds_read_b128 {vr(X+4*w,4)}, v{V_L16} offset:{L_QK + 1088*w}', tag=('sx', w))
        g.i(f'ds_read2_b32 {vr(M,2)}, v{V_SRM} offset0:0 offset1:68', tag='sm')
        g.i(f'ds_read2_b32 {vr(M+2,2)}, v{V_SRM} offset0:136 offset1:204', tag='sm')
        fill += [f'v_mov_b32 v{PB}, 0', f'v_mov_b32 v{PB+5}, 0', f'v_mov_b32 v{WL_}, 0', f'v_mov_b32 v{WR+1}, 0']
        vs(4)
        g.wait_lds(('sx', 1))
        fill += [f'v_add_f32 v{X+r}, v{X+r}, v{X+4+r}' for r in range(4)]
        pop(1)
        vs(2)
        assert not vq
        pop(100)
        g.wait_lds('sm')
        g.i(f'v_add_f32 v{M}, v{M}, v{M+1}')
        g.i(f'v_add_f32 v{M+2}, v{M+2}, v{M+3}')
        g.i(f'v_pk_add_f32 {vr(X+8,2)}, {vr(X+8,2)}, {vr(X+12,2)}')
        g.i(f'v_pk_add_f32 {vr(X+10,2)}, {vr(X+10,2)}, {vr(X+14,2)}')
        g.i(f'v_add_f32 v{M}, v{M}, v{M+2}')
        g.i(f'v_pk_add_f32 {vr(X,2)}, {vr(X,2)}, {vr(X+8,2)}')
        g.i(f'v_pk_add_f32 {vr(X+2,2)}, {vr(X+2,2)}, {vr(X+10,2)}')
        MX, MY = M + 1, M + 2
        ONE = V_AR
        g.i(f'v_max3_f32 v{MX}, v{X}, v{X+1}, v{X+2}')
        g.i(f'v_max3_f32 v{MX}, v{MX}, v{X+3}, v{M}')
        g.i(f'v_add_f32 v{VA0}, v{VA0}, v{VA0+2}')
        g.i(f'v_add_f32 v{VA0+1}, v{VA0+1}, v{VA0+3}')
        g.i(f'v_max_f32_dpp v{MY}, v{MX}, v{MX} row_ror:8 row_mask:0xf bank_mask:0xf')
        g.i(f'v_max_f32_dpp v{MX}, v{MX}, v{MX} row_ror:8 row_mask:0xf bank_mask:0xf')
        g.i(f'v_add_f32 v{VA1}, v{VA1}, v{VA1+2}')
        g.i(f'v_add_f32 v{VA1+1}, v{VA1+1}, v{VA1+3}')
        g.i(f'v_permlane16_swap_b32 v{MX}, v{MY}')
        g.i(f'v_max_f32 v{M+3}, v{MX}, v{MY}')
        g.i(f'v_max_f32 v{MX}, v{MX}, v{MY}')
        g.i(f'v_cvt_pk_bf16_f32 v{WM}, v{VA0}, v{VA0+1}')
        g.i(f'v_cvt_pk_bf16_f32 v{WM+1}, v{VA1}, v{VA1+1}')
        g.i(f'v_permlane32_swap_b32 v{MX}, v{M+3}')
        g.i(f'v_max_f32 v{MX}, v{MX}, v{M+3}')
        g.i(f'v_mul_f32 v{MX}, s{S_C}, v{MX}')
        g.i(f'v_fma_f32 v{M}, v{M}, s{S_C}, -v{MX}')
        for r in range(4):
            g.i(f'v_fma_f32 v{X+r}, v{X+r}, s{S_C}, -v{MX}')
        g.i(f'v_exp_f32 v{M}, v{M}')
        for r in range(4):
            g.i(f'v_exp_f32 v{X+r}, v{X+r}')
        g.i(f'v_cvt_pk_bf16_f32 v{M}, v{M}, 0')
        g.i(f'v_cvt_pk_bf16_f32 v{PB+2}, v{X}, v{X+1}')
        g.i(f'v_lshlrev_b32 v{PB+4}, v{V_SH}, v{M}')
        g.i(f'v_cvt_pk_bf16_f32 v{PB+3}, v{X+2}, v{X+3}')
        g.i(f'v_lshlrev_b32 v{PB+1}, v{V_SH}, v{M}')
        g.i(f'v_mov_b32 v{WL_+1}, v{WM}')
        self.stamp('softmax done', 1)
        g.wait_vm('vx')
        DL = V_AR + 4
        D = V_STG
        g.i(f'v_mfma_f32_16x16x32_bf16 {vr(D+4,4)}, {vr(V_X0+2,4)}, {vr(PB+2,4)}, 0')
        g.i(f'v_mov_b64 {vr(ONE,2)}, s[{S_ONE}:{S_ONE+1}]')
        g.i(f'v_mov_b64 {vr(ONE+2,2)}, s[{S_ONE}:{S_ONE+1}]')
        g.i(f'v_mfma_f32_16x16x32_bf16 {vr(D,4)}, {vr(WL_,4)}, {vr(PB,4)}, 0')
        g.i(f'v_mov_b32 v{WR}, v{WM+1}')
        g.i(f'v_mov_b64 {vr(V_PUB+2,2)}, {vr(WM,2)}')
        g.i(f'v_mfma_f32_16x16x32_bf16 {vr(DL,4)}, {vr(ONE,4)}, {vr(PB,4)}, 0')
        g.i(f'v_mov_b64 {vr(V_ACC,2)}, 0')
        g.i(f'v_mov_b64 {vr(V_ACC+2,2)}, 0')
        g.i(f'v_mfma_f32_16x16x32_bf16 {vr(D+8,4)}, {vr(WM,4)}, {vr(PB,4)}, 0')
        O = V_AR + 8
        RL = V_AR
        g.i(f'v_add_f32_dpp v{O}, v{D+4}, v{D} row_ror:8 row_mask:0xf bank_mask:0x3')
        g.i(f'v_add_f32_dpp v{O+1}, v{D+5}, v{D+1} row_ror:8 row_mask:0xf bank_mask:0x3')
        g.i(f'v_mfma_f32_16x16x32_bf16 {vr(D+12,4)}, {vr(V_X1+2,4)}, {vr(PB+2,4)}, 0')
        g.i(f'v_add_f32_dpp v{RL}, v{DL}, v{DL} row_ror:8 row_mask:0xf bank_mask:0xf')
        g.i(f'v_add_f32_dpp v{O+2}, v{D+6}, v{D+2} row_ror:8 row_mask:0xf bank_mask:0x3')
        g.i(f'v_add_f32_dpp v{O+3}, v{D+7}, v{D+3} row_ror:8 row_mask:0xf bank_mask:0x3')
        g.i(f'v_rcp_f32 v{RL}, v{RL}')
        for k in range(4, 12, 2):
            g.i(f'v_mov_b64 {vr(V_ACC+k,2)}, 0')
        for r in range(4):
            g.i(f'v_add_f32_dpp v{O+r}, v{D+8+r}, v{D+12+r} row_ror:8 row_mask:0xf bank_mask:0xc')
        for r in range(4):
            g.i(f'v_mul_f32 v{O+r}, v{O+r}, v{RL}')
        g.i(f'v_cvt_pk_bf16_f32 v{O}, v{O}, v{O+1}')
        g.i(f'v_cvt_pk_bf16_f32 v{O+1}, v{O+2}, v{O+3}')
        g.i(f'ds_write_b64 v{V_OW}, {vr(O,2)} offset:{L_M}', tag='ow')
        self.stage(('o', 1, 1))
        g.i(f's_cmp_eq_u32 s{S_STEP}, {NSEG-1}')
        for k in range(12, 22):
            g.i(f'v_mov_b32 v{V_ACC+k}, 0')
        g.wait_lds('ow')
        self.stamp('o written', 1)
        g.i('s_barrier')
        self.stamp('B3', 1)
        AO = V_AR + 2
        TA, TB = V_AR + 10, V_AR + 11
        g.i(f'ds_read_b128 {vr(AO,4)}, v{V_L16} offset:{L_M}', tag=('oa', 0))
        g.i(f'ds_read_b128 {vr(AO+4,4)}, v{V_L16} offset:{L_M + 1024}', tag=('oa', 1))
        g.i(f'v_mov_b64 {vr(V_ACC+22,2)}, 0')
        g.i(f's_cbranch_scc1 {done}')
        for k in range(24, 36, 2):
            g.i(f'v_mov_b64 {vr(V_ACC+k,2)}, 0')
        R = V_ACC + 4

        def rload(S, tg):
            for n in range(4):
                g.i(f'buffer_load_dwordx4 {vr(S+4*n,4)}, v{V_RED}, {WS}, s{S_RED+n} offen sc1', tag=(tg, n))

        def post(pt):
            pa, OUT = V_ACC + 4 * pt, V_ACC + 12 * (pt // 3)
            L = half(pa, OUT + pt % 3)
            if pt % 3 == 0:
                L.append(f'v_mov_b32 v{OUT+3}, s{S_TAG}')
            if pt % 3 == 2:
                L.append(f'buffer_store_dwordx4 {vr(OUT,4)}, v{V_L16}, {WS}, s{S_PST + pt // 3} offen {XS}')
                if pt < 8:
                    L.append(lambda: self.stamp(f'store g{pt//3}', 2))
            return L
        self.stamp('wo start')
        g.vm_q = []
        for tile in range(9):
            acc = V_ACC + 4 * tile
            g.wait_lds(('oa', 0))
            self.smf(acc, AO, ('o', 0, tile >> 1), tile & 1)
            pop(2)
            g.wait_lds(('oa', 1))
            smf(acc, AO + 4, ('o', 1, tile >> 1), tile & 1)
            if tile >= 1:
                fill += post(tile - 1)
            pop(2)
        pop(100)
        fill += post(8)
        pop(100)
        self.stamp('wo done')
        if comm:
            SEL, RD = V_AR + 2, V_AR + 6
            SN = V_KXD + 6
            if role == 0:
                rload(R, 'A')
            g.i(f'v_bfe_u32 v{TA}, v{V_L16}, 6, 1')
            g.i(f'v_lshlrev_b32 v{TA}, 4, v{TA}')
            g.i(f'v_mov_b32 v{TB}, 0x3f80')
            g.i(f'v_lshlrev_b32 v{TA}, v{TA}, v{TB}')
            g.i(f'v_cndmask_b32 v{SEL}, 0, v{TA}, s[{S_M1}:{S_M1+1}]')
            g.i(f's_lshl_b64 vcc, s[{S_M1}:{S_M1+1}], 1')
            g.i(f'v_cndmask_b32 v{SEL+1}, 0, v{TA}, vcc')
            g.i(f's_lshl_b64 vcc, s[{S_M1}:{S_M1+1}], 8')
            g.i(f'v_cndmask_b32 v{SEL+2}, 0, v{TA}, vcc')
            g.i(f'v_mov_b32 v{SEL+3}, 0')
            g.i(f'v_mov_b32 v{SN}, -1')
            self.advance()
            g.i(f's_mov_b32 s{S_TRY}, 0')
            if role > 0:
                for k in range(self.dr[role]):
                    g.i(f'v_mov_b32 v{RD}, 0')
                rload(R, 'A')
            self.stamp('rB issued', 2)
            first = [True]

            def rsum(S, tg):
                for n in range(4):
                    g.wait_vm((tg, n))
                    if first[0] and n in (0, 3):
                        self.stamp(f'rA{n} here', 2)
                        first[0] = n == 0
                    g.i(f'v_mfma_f32_16x16x32_bf16 {vr(RD,4)}, {vr(SEL,4)}, {vr(S+4*n,4)}, {vr(RD,4) if n else 0}')
                    if n & 1:
                        g.i(f'v_bitop3_b32 v{TA + (n>>1)}, v{S+4*n-1}, v{S+4*n+3}, s{S_TAG} bitop3:0x7e')
                g.i(f'v_or_b32 v{TA}, v{TA}, v{TB}')
                g.i(f'v_cmp_ne_u32 vcc, 0, v{TA}')
            rl, rok = g.newlabel('rl'), g.newlabel('rok')
            rsum(R, 'A')
            g.i(f's_cbranch_vccnz {rl}')
            g.label(rok)
            if self.diag:
                g.i(f's_mov_b32 s98, s{S_TRY}')

            def rretry():
                g.label(rl)
                g.vm_q = []
                rload(R, 'A')
                count_try()
                rsum(R, 'A')
                g.i(f's_cbranch_vccnz {rl}')
                g.i(f's_branch {rok}')
                g.forget()
            cold.append(rretry)
            self.stamp('r ok', 2)
            g.i(f'v_add_f32_dpp v{RD}, v{RD}, v{RD} row_ror:8 row_mask:0xf bank_mask:0xf')
            g.i(f'v_add_f32_dpp v{RD+1}, v{RD+1}, v{RD+1} row_ror:8 row_mask:0xf bank_mask:0xf')
            g.i(f'v_mov_b32_dpp v{RD+1}, v{RD} quad_perm:[1,1,3,3] row_mask:0xc bank_mask:0xf')
            g.i(f's_mov_b64 exec, s[{S_MS}:{S_MS+1}]')
            g.i(f'v_cvt_pk_bf16_f32 v{TA}, v{RD}, v{RD+1}')
            g.i(f'v_min_u32 v{TA}, -2, v{TA}')
            g.i(f'buffer_store_dword v{TA}, v{V_MST}, {WS}, s{S_MCUR} offen {XS}')
            g.i(f'buffer_store_dword v{SN}, v{V_MST}, {WS}, s{S_MRST} offen {XS}')
            g.i('s_mov_b64 exec, -1')
            self.stamp('m stored')
            self.advance2()
        else:
            self.advance()
            self.advance2()
            if 'warm' in opt:
                for k in range(self.warm):
                    g.i(f'v_mov_b32 v{V_T0}, 0')
                    g.i('s_nop 1')
            for nm in ('rB issued', 'rA0 here', 'rA3 here', 'r ok'):
                self.stamp(nm, 2)
            if self.standalone:
                g.wait_vm()
            else:
                g.i(f's_cmp_ge_u32 s{S_TAG}, {NSEG - 1}')
                g.i(f's_cselect_b32 s{S_RNEED}, 0, s{S_RNEED}')
                self.spin_ready(S_RDY, f's{S_RNEED}', bail, True)
                g.i(f's_add_u32 s{S_RDY}, s{S_RDY}, 512')
                g.i(f's_add_u32 s{S_PF}, s{S_PF}, 1')
                g.i(f's_cmp_eq_u32 s{S_PF}, 3')
                g.i(f's_cselect_b32 s{S_T0}, 1536, 0')
                g.i(f's_cselect_b32 s{S_T1}, 1, 0')
                g.i(f's_cselect_b32 s{S_PF}, 0, s{S_PF}')
                g.i(f's_sub_u32 s{S_RDY}, s{S_RDY}, s{S_T0}')
                g.i(f's_add_u32 s{S_RNEED}, s{S_RNEED}, s{S_T1}')
            self.stamp('m stored')
        self.dump_stamps()
        g.settle()
        g.i(f's_branch {top}')
        g.forget()
        for f in cold:
            f()

    def slow_io(self):
        g = self.g
        WS = f's[{S_WS}:{S_WS+3}]'
        L = [self.flag_store]
        if 'nopf' not in self.opt:
            def pf(base, dst):
                def f():
                    g.i(f's_add_u32 s{S_T0}, s{base}, {2*32*8192}')
                    g.i(f'buffer_load_dword v{dst}, v{V_MW}, {WS}, s{S_T0} offen sc1')
                return f
            L += [pf(S_KX, V_RED), pf(S_VX, V_RED)]
        if not self.standalone:
            L.append(f'buffer_load_dword v{V_MST}, off, {WS}, s{S_RDY} sc1')
        return L

    def advance(self):
        g = self.g
        for j in range(3):
            g.i(f's_xor_b32 s{S_PST+j}, s{S_PST+j}, 0x100000')
        g.i(f's_add_u32 s{S_MCUR}, s{S_MCUR}, 0x4000')
        g.i(f's_and_b32 s{S_MCUR}, s{S_MCUR}, 0xfffeffff')
        g.i(f's_add_u32 s{S_KX}, s{S_KX}, {32*8192}')
        g.i(f's_add_u32 s{S_VX}, s{S_VX}, {32*8192}')
        g.i(f's_add_u32 s{S_KM}, s{S_KM}, {32*4096}')
        g.i(f's_add_u32 s{S_FLG}, s{S_FLG}, 128')

    def advance2(self):
        g = self.g
        for n in range(4):
            g.i(f's_xor_b32 s{S_RED+n}, s{S_RED+n}, 0x100000')
        g.i(f's_add_u32 s{S_MRST}, s{S_MRST}, 0x4000')
        g.i(f's_and_b32 s{S_MRST}, s{S_MRST}, 0xfffeffff')
        g.i(f's_add_u32 s{S_TAG}, s{S_TAG}, 1')
        if not self.diag:
            g.i(f's_add_u32 s{S_STEP}, s{S_STEP}, 1')

    def loops(self, bail, done, slow=False):
        g = self.g
        lab = [g.newlabel('role') for _ in range(4)]
        for w in range(1, 4):
            g.i(f's_cmp_eq_u32 s{S_W}, {w}')
            g.i(f's_cbranch_scc1 {lab[w]}')
        for w in range(4):
            g.label(lab[w])
            self.loop(bail, done, w, slow)

    def finish(self, fin):
        g = self.g
        g.i(f's_add_u32 s{S_KM}, s{S_KM}, {32*4096}')
        g.i(f'buffer_store_dwordx4 {vr(V_PUB,4)}, v{V_L16}, s[{S_WS}:{S_WS+3}], s{S_KM} offen sc1')
        g.i('s_waitcnt vmcnt(0) lgkmcnt(0)')
        g.i('s_barrier')
        g.i(f's_cmp_lg_u32 s{S_W}, 3')
        g.i(f's_cbranch_scc1 {fin}')
        g.i(f's_add_u32 s{S_FLG}, s{S_FLG}, 128')
        self.flag_store()
        g.i(f's_add_u32 s{S_FLG}, s{S_FLG}, 128')
        self.flag_store()
```

```python
OFF_XN   = 0x0000000
OFF_KX   = 0x0400000
OFF_VX   = 0x1400000
OFF_QX   = 0x2400000
OFF_H    = 0x3400000
OFF_O    = 0x4800000
OFF_G    = 0x5800000
OFF_KM   = 0x6000000
OFF_VM   = 0x6800000
OFF_PART = 0x6C00000
OFF_MB   = 0x6E00000
OFF_FLAG = 0x6F00000
OFF_DIAG = 0x7000000
WS_BYTES = 268435456
NSEG = 64

def colmap(t, k):
    j, y = divmod(t, 3)
    ga, jj, sg, b = k >> 4, (k >> 2) & 3, (k >> 1) & 1, k & 1
    if y < 2:
        return 16 * (9 * ga + 3 * j + b) + 8 * sg + 4 * y + jj
    return 16 * (9 * ga + 3 * j + 2) + 8 * sg + 2 * jj + b

assert sorted(colmap(t, k) for t in range(9) for k in range(64)) == list(range(576))
DBG_XCC = 0
DBG_PICK = 64
DBG_BULK = 0
DBG_LN = 64
DBG_CHAIN = 128
DBG_INIT = 192
DBG_MASK = 196
FL_KM = 1024
FL_P1 = 10240
FL_O = 12288
FL_BYTES = 16384
N_BULK = 224
N_LN = 26
N_P1 = 198
N_REP = 10
N_ATT = N_BULK - 18 * N_REP
```

```python
import sys
from asmgen import *
from layout import *
import chain as C
import bulk as B

NAME = 'recurrent_scan__memory_aug_recurrent_mem_tr__dense_activation_silu__prompt'


def dispatch(g, l_chain, l_bulk, force_slow):
    S_W, S_H, T0, T1, DBG, XCC = C.S_W, C.S_H, C.S_T0, C.S_T1, C.S_DBG, C.S_XCC
    g.i('v_lshrrev_b32 v1, 6, v0')
    g.i('v_and_b32 v0, 63, v0')
    g.i(f'v_readfirstlane_b32 s{S_W}, v1')
    g.i(f's_getreg_b32 s{XCC}, hwreg(HW_REG_XCC_ID, 0, 4)')
    rd, tb, tc, wr = [g.newlabel('el') for _ in range(4)]
    g.i(f'v_mov_b32 v2, {C.L_EL}')
    g.i(f's_cmp_lg_u32 s{S_W}, 0')
    g.i(f's_cbranch_scc1 {rd}')
    g.i('s_mov_b64 exec, 1')
    g.i('v_mov_b32 v4, 1')

    def ticket(off):
        g.i(f'v_mov_b32 v3, {off}')
        g.i(f'global_atomic_add v5, v3, v4, s[{DBG}:{DBG+1}] sc0')
        g.wait_vm()
        g.i(f'v_readfirstlane_b32 s{S_H}, v5')
    if force_slow:
        g.i('s_cmp_ge_u32 s2, 16')
    else:
        g.i(f's_cmp_lg_u32 s{XCC}, 0')
    g.i(f's_cbranch_scc1 {tb}')
    ticket(DBG_CHAIN)
    g.i(f's_cmp_lt_u32 s{S_H}, 32')
    g.i(f's_cbranch_scc1 {wr}')
    ticket(DBG_BULK)
    g.i(f's_add_u32 s{S_H}, s{S_H}, 32')
    g.i(f's_branch {wr}')
    g.label(tb)
    ticket(DBG_BULK)
    g.i(f's_add_u32 s{S_H}, s{S_H}, 32')
    g.i(f's_cmp_lt_u32 s{S_H}, 256')
    g.i(f's_cbranch_scc1 {wr}')
    ticket(DBG_CHAIN)
    g.label(wr)
    g.i(f'v_mov_b32 v5, s{S_H}')
    g.i('ds_write_b32 v2, v5')
    g.i('s_mov_b64 exec, -1')
    g.wait_lds()
    g.label(rd)
    g.i('s_barrier')
    g.i('ds_read_b32 v5, v2')
    g.wait_lds()
    g.i(f'v_readfirstlane_b32 s{S_H}, v5')
    g.i('s_barrier')
    g.i(f's_cmp_lt_u32 s{S_H}, 32')
    g.i(f's_cbranch_scc1 {l_chain}')
    g.i(f's_sub_u32 s{S_H}, s{S_H}, 32')


def build(out, diag=0, force_slow=False, prof=False, header='', **kw):
    g = Gen()
    name = NAME + '_kernel'
    g.raw(header + f'; @launch grid=(256,1,1) block=(256,1,1) lds={C.LDS_BYTES}')
    g.raw('.amdgcn_target "amdgcn-amd-amdhsa--gfx950"')
    g.raw('.text'); g.raw(f'.globl {name}'); g.raw('.p2align 8'); g.raw(f'.type {name},@function')
    g.label(name)
    g.i('s_cmp_ge_u32 s2, 256')
    g.i('s_cbranch_scc1 fin0')
    nprof = [0]

    def stamp():
        if prof:
            g.i('s_memrealtime s[100:101]')
            g.i('s_waitcnt lgkmcnt(0)')
            g.i(f's_mov_b32 s{88 + nprof[0]}, s100')
            nprof[0] += 1

    def dump(base):
        if prof:
            for k in range(8):
                g.i(f'v_writelane_b32 v14, s{88 + k}, {k}')
            g.i(f's_lshl_b32 s42, s{C.S_H}, 2')
            g.i(f's_add_u32 s42, s42, s{C.S_W}')
            g.i(f's_lshl_b32 s42, s42, 5')
            g.i(f's_add_u32 s42, s42, {OFF_DIAG + 0x200000 + base}')
            g.i('v_mbcnt_lo_u32_b32 v15, -1, 0')
            g.i('v_lshlrev_b32 v15, 2, v15')
            g.i('s_mov_b64 exec, 0xff')
            g.i(f'buffer_store_dword v14, v15, s[4:7], s42 offen')
    g.i(f's_load_dwordx2 s[{B.P_X}:{B.P_X+1}], s[0:1], 0')
    g.i(f's_load_dwordx2 s[{C.S_PTR}:{C.S_PTR+1}], s[0:1], 8')
    g.i(f's_load_dwordx2 s[{C.S_PTR+2}:{C.S_PTR+3}], s[0:1], 16')
    g.i(f's_load_dwordx4 s[{C.S_PTR+4}:{C.S_PTR+7}], s[0:1], 24')
    g.i(f's_load_dwordx2 s[{C.S_PTR+8}:{C.S_PTR+9}], s[0:1], 40')
    g.i(f's_load_dwordx2 s[{B.P_W1}:{B.P_W1+1}], s[0:1], 64')
    g.i(f's_load_dwordx4 s[{B.P_W2}:{B.P_W2+3}], s[0:1], 72')
    g.i(f's_load_dwordx2 s[{C.S_DBG}:{C.S_DBG+1}], s[0:1], 88')
    g.i(f's_load_dwordx2 s[{C.S_WS}:{C.S_WS+1}], s[0:1], 96')
    if prof:
        for k in range(8):
            g.i(f's_mov_b32 s{88+k}, 0')
    stamp()
    g.i('s_waitcnt lgkmcnt(0)')
    g.i(f's_mov_b32 s{C.S_WS+2}, {WS_BYTES}')
    g.i(f's_mov_b32 s{C.S_WS+3}, 0x20000')
    dispatch(g, 'chain_far', 'bulk', force_slow)
    g.i('s_branch bulk')
    g.label('chain_far')
    g.i('s_branch chain')
    g.label('fin0')
    g.i('s_endpgm')
    g.forget()
    g.label('chain')
    stamp()
    ch = C.Chain(g, diag=diag, standalone=False)
    for k_, v_ in kw.items():
        setattr(ch, k_, v_)
    R = ch.lane_consts()
    ch.scalar_consts()
    ch.init_exchange(R)
    ch.load_weights(R)
    stamp()
    ch.after_wait = stamp
    ch.start('fin1', 'done')
    g.label('done')
    ch.finish('done2')
    g.label('done2')
    stamp()
    dump(0)
    g.label('fin1')
    g.i('s_endpgm')
    g.forget()
    g.label('bulk')
    nprof[0] = 1
    stamp()
    b = B.Bulk(g, 'fin2')
    b.setup()
    g.i(f's_cmp_ge_u32 s{B.S_RANK}, {N_LN}')
    g.i('s_cbranch_scc1 proj')
    b.layernorm()
    stamp()
    g.i('s_branch attn')
    g.forget()
    g.label('proj')
    nprof[0] = 2
    b.stamp = stamp
    b.project()
    stamp()
    g.i(f's_cmp_lt_u32 s{B.S_RANK}, {N_ATT}')
    g.i('s_cbranch_scc1 attn')
    b.stream_gemm(True)
    stamp()
    b.stream_gemm(False)
    stamp()
    g.i('s_branch bend')
    g.label('fin2')
    g.i('s_endpgm')
    g.forget()
    g.label('attn')
    g.i('s_barrier')
    b.attention()
    nprof[0] = 7
    stamp()
    g.label('bend')
    dump(4096)
    g.i('s_endpgm')
    g.raw(f'''.section .rodata,"a"
.p2align 6
.amdhsa_kernel {name}
  .amdhsa_next_free_vgpr 512
  .amdhsa_next_free_sgpr 102
  .amdhsa_accum_offset 256
  .amdhsa_group_segment_fixed_size 0
  .amdhsa_kernarg_size 104
  .amdhsa_user_sgpr_count 2
  .amdhsa_user_sgpr_kernarg_segment_ptr 1
  .amdhsa_system_sgpr_workgroup_id_x 1
.end_amdhsa_kernel''')
    open(out, 'w').write(g.text())
    if diag:
        open(out[:-2] + '_names.txt', 'w').write('\n'.join(ch.names))
    print(out, 'nops', g.nops, 'lines', len(g.lines), 'bytes', len(g.text()))


if __name__ == '__main__':
    ref = open(f'cdna_kernels/{NAME}.s.ref').read()
    header = ref[:ref.index('; @launch')]
    build(f'cdna_kernels/{NAME}.s', header=header)
    build('full_prof.s', prof=True)
    build('full_slow.s', prof=True, force_slow=True)
```

```python
import re

_REG = re.compile(r'(?<![\w.])([vas])(?:\[(\d+):(\d+)\]|(\d+))(?![\w\[])')


def regs_of(tok):
    out = set()
    for m in _REG.finditer(tok):
        k = m.group(1)
        if m.group(2) is not None:
            for r in range(int(m.group(2)), int(m.group(3)) + 1):
                out.add((k, r))
        else:
            out.add((k, int(m.group(4))))
    if re.search(r'\bvcc(_lo|_hi)?\b', tok):
        out.add(('s', 106)); out.add(('s', 107))
    if re.search(r'\bexec\b', tok):
        out.add(('s', 126)); out.add(('s', 127))
    if re.search(r'\bm0\b', tok):
        out.add(('s', 124))
    return out


def split_ops(s):
    ops, depth, cur = [], 0, ''
    for ch in s:
        if ch in '[(':
            depth += 1
        if ch in '])':
            depth -= 1
        if ch == ',' and depth == 0:
            ops.append(cur.strip()); cur = ''
        else:
            cur += ch
    if cur.strip():
        ops.append(cur.strip())
    return ops


TRANS = ('v_exp_f32', 'v_log_f32', 'v_rcp_f32', 'v_rsq_f32', 'v_sqrt_f32', 'v_sin_f32', 'v_cos_f32')


class Ins:
    __slots__ = ('text', 'mn', 'w', 'r', 'kind', 'passes', 'srcc', 'states', 'dpp', 'sdata', 'ab')

    def __init__(self, text):
        self.text = text
        t = text.split(';')[0].strip()
        parts = t.split(None, 1)
        mn = parts[0]
        self.mn = mn
        ops = split_ops(parts[1]) if len(parts) > 1 else []
        self.w, self.r = set(), set()
        self.srcc = set(); self.sdata = set(); self.ab = set()
        self.passes = 0
        self.states = 1
        self.dpp = ('_dpp' in mn) or ('quad_perm' in t) or ('row_' in t and 'row_mask' in t)
        R = [regs_of(o) for o in ops]
        if mn.startswith('v_mfma') or mn.startswith('v_smfmac'):
            self.kind = 'mfma'
            self.passes = 8 if '32x32' in mn else 4
            if '4x4x4' in mn: self.passes = 2
            if mn.endswith('x4_f32'): self.passes = 8
            if mn.endswith('x2_f32'): self.passes = 16
            self.w = R[0]
            self.ab = R[1] | R[2]
            if mn.startswith('v_smfmac'):
                self.srcc = R[0]
                self.ab |= R[3]
            else:
                self.srcc = R[3]
            self.r = self.ab | self.srcc
        elif mn.startswith('v_'):
            self.kind = 'valu'
            if mn.startswith('v_cmp'):
                self.w = R[0]; self.r = set().union(*R[1:])
                if mn.startswith('v_cmpx'):
                    self.w |= {('s', 126), ('s', 127)}
            elif mn.startswith('v_permlane') and 'swap' in mn:
                self.w = R[0] | R[1]; self.r = R[0] | R[1]
            elif mn.startswith(('v_add_co', 'v_sub_co', 'v_addc_co', 'v_subb_co', 'v_subrev_co', 'v_mad_u64')):
                self.w = R[0] | R[1]; self.r = set().union(*R[2:])
            elif mn == 'v_nop':
                pass
            else:
                self.w = R[0]; self.r = set().union(*R[1:]) if len(R) > 1 else set()
                if mn.startswith(('v_fmac', 'v_dot2c', 'v_writelane')) or self.dpp or 'UNUSED_PRESERVE' in t:
                    self.r |= R[0]
        elif mn.startswith('ds_'):
            self.kind = 'ds'
            if mn.startswith(('ds_read', 'ds_bpermute', 'ds_permute', 'ds_swizzle')) or '_rtn' in mn:
                self.w = R[0]; self.r = set().union(*R[1:])
            else:
                self.r = set().union(*R)
        elif mn.startswith(('buffer_', 'global_', 'flat_')):
            self.kind = 'vmem'
            islds = bool(re.search(r'\blds\b', t)) or '_lds_' in mn
            if mn.startswith(('buffer_wbl2', 'buffer_inv')):
                pass
            elif 'load' in mn and not islds:
                self.w = R[0]; self.r = set().union(*R[1:])
            elif 'atomic' in mn and re.search(r'\bsc0\b', t):
                if mn.startswith('buffer'):
                    self.w = R[0]; self.r = set().union(*R)
                else:
                    self.w = R[0]; self.r = set().union(*R[1:])
            else:
                self.r = set().union(*R)
                if islds:
                    self.r.add(('s', 124))
                if 'store' in mn and ('x3' in mn or 'x4' in mn):
                    self.sdata = R[0] if mn.startswith('buffer') else R[1]
        elif mn.startswith('s_'):
            self.kind = 'salu'
            if mn == 's_nop':
                self.states = int(ops[0], 0) + 1
            elif mn.startswith(('s_cmp', 's_cbranch', 's_branch', 's_waitcnt', 's_barrier', 's_endpgm', 's_sleep',
                                's_setprio', 's_bitcmp', 's_wakeup')):
                self.r = set().union(*R) if R else set()
            else:
                if R:
                    self.w = R[0]; self.r = set().union(*R[1:]) if len(R) > 1 else set()
                if 'saveexec' in mn:
                    self.w |= {('s', 126), ('s', 127)}
        else:
            raise ValueError('unknown instruction ' + text)


def vregs(s):
    return {x for x in s if x[0] in 'va'}


def sregs(s):
    return {x for x in s if x[0] == 's'}


def need_states(p, c):
    n = 0
    pv, ps = vregs(p.w), sregs(p.w)
    if p.kind == 'valu':
        if c.kind == 'mfma' and pv & c.r: n = max(n, 2)
        if c.kind == 'valu':
            if c.dpp and pv & c.r: n = max(n, 2)
            if c.mn.startswith('v_permlane') and pv & c.r: n = max(n, 2)
            if c.mn.startswith(('v_readlane', 'v_readfirstlane')) and pv & c.r: n = max(n, 1)
            if p.mn.startswith(TRANS) and pv & c.r: n = max(n, 1)
            if ps & c.r:
                n = max(n, 4 if c.mn.startswith(('v_readlane', 'v_writelane')) else 2)
            if ('s', 126) in ps:
                if c.dpp: n = max(n, 5)
                if c.mn.startswith(('v_readlane', 'v_readfirstlane', 'v_writelane', 'v_permlane')): n = max(n, 4)
            if ('sdwa' in p.mn or ('op_sel' in p.text and not p.mn.startswith('v_pk_'))) and pv & (c.r | c.w): n = max(n, 1)
        if c.kind == 'mfma' and ('s', 126) in ps: n = max(n, 4)
        if c.kind == 'vmem' and ps & c.r: n = max(n, 5)
        if c.kind == 'salu' and ps & c.r: n = max(n, 1)
    if p.kind == 'salu':
        if ('s', 124) in p.w and ('s', 124) in c.r and c.kind in ('vmem', 'ds'): n = max(n, 1)
    if p.kind == 'mfma':
        P = p.passes
        big = {2: 5, 4: 8, 8: 12, 16: 20}[P]
        if c.kind == 'mfma':
            if p.w & c.ab: n = max(n, big)
            if p.w & c.srcc:
                if p.w == c.srcc and c.mn == p.mn:
                    n = max(n, 2 if P == 2 else 0)
                else:
                    n = max(n, {2: 4, 4: 6, 8: 10, 16: 18}[P])
            elif p.w & c.w:
                n = max(n, big)
        elif c.kind in ('valu', 'ds', 'vmem'):
            if p.w & (c.r | c.w): n = max(n, big)
            if c.kind == 'valu' and p.srcc & c.w: n = max(n, {2: 1, 4: 3, 8: 7, 16: 15}[P])
    if p.kind == 'vmem' and p.sdata:
        if p.sdata & c.w: n = max(n, 2)
    return n


class Gen:
    def __init__(self):
        self.lines = []
        self.hist = []
        self.lds_q = []
        self.vm_q = []
        self.nlabel = 0
        self.nops = 0

    def raw(self, s):
        self.lines.append(s)

    def c(self, s):
        self.lines.append('    ; ' + s)

    def newlabel(self, base='L'):
        self.nlabel += 1
        return f'{base}_{self.nlabel}'

    def label(self, name):
        self.lines.append(name + ':')

    def pad(self, n):
        while n > 0:
            k = min(n, 16)
            self._put(Ins(f's_nop {k-1}'))
            self.nops += k
            n -= k

    def _put(self, ins):
        self.lines.append('    ' + ins.text)
        self.hist.append(ins)
        if len(self.hist) > 26:
            self.hist.pop(0)

    def _dists(self, nxt_is_mfma):
        out = []
        H = self.hist
        for k in range(len(H)):
            t, free = 0, 0
            for q in H[k:]:
                if q.kind == 'mfma':
                    t = max(t, free)
                    free = t + q.passes
                t += q.states
            plain = t
            if nxt_is_mfma:
                t = max(t, free)
            out.append((H[k], t - 1, plain - 1))
        return out

    def i(self, text, tag=None):
        ins = Ins(text)
        need = 0
        for p, have, plain in self._dists(ins.kind == 'mfma'):
            n = need_states(p, ins)
            if n > have:
                need = max(need, n - plain)
        if need > 0:
            self.pad(need)
        self._put(ins)
        if ins.kind == 'ds':
            self.lds_q.append(tag)
        elif ins.kind == 'vmem':
            self.vm_q.append(tag)
        return ins

    def settle(self):
        need = 0
        for p, have, plain in self._dists(False):
            if p.kind == 'mfma':
                n = {2: 5, 4: 8, 8: 12, 16: 20}[p.passes]
            elif p.kind == 'valu':
                n = 5 if sregs(p.w) else 2
            elif p.kind == 'vmem' and p.sdata:
                n = 2
            elif p.kind == 'salu' and ('s', 124) in p.w:
                n = 1
            else:
                n = 0
            need = max(need, n - have)
        if need > 0:
            self.pad(need)

    def forget(self):
        self.hist = []

    def _cnt(self, q, tag):
        idx = [k for k, t in enumerate(q) if t == tag]
        if not idx:
            return None
        return len(q) - 1 - idx[-1]

    def wait_lds(self, tag=None):
        if tag is None:
            n = 0
        else:
            n = self._cnt(self.lds_q, tag)
            if n is None:
                return
        assert n <= 15, n
        self.i(f's_waitcnt lgkmcnt({n})')
        self.lds_q = self.lds_q[len(self.lds_q) - n:] if n else []

    def wait_lds2(self, *tags):
        c = [n for n in (self._cnt(self.lds_q, t) for t in tags if t is not None) if n is not None]
        if c:
            n = min(c)
            assert n <= 15
            self.i(f's_waitcnt lgkmcnt({n})')
            self.lds_q = self.lds_q[len(self.lds_q) - n:] if n else []

    def wait_vm(self, tag=None):
        if tag is None:
            n = 0
        else:
            n = self._cnt(self.vm_q, tag)
            if n is None:
                return
        assert n <= 63, n
        self.i(f's_waitcnt vmcnt({n})')
        self.vm_q = self.vm_q[len(self.vm_q) - n:] if n else []

    def text(self):
        return '\n'.join(self.lines) + '\n'


def vr(b, n=1):
    return f'v{b}' if n == 1 else f'v[{b}:{b+n-1}]'


def ar(b, n=1):
    return f'a{b}' if n == 1 else f'a[{b}:{b+n-1}]'


def sr(b, n=1):
    return f's{b}' if n == 1 else f's[{b}:{b+n-1}]'
```

```python
import math
from asmgen import *
from layout import *
from chain import S_WS, S_W8, S_DBG, S_W, S_PTR, SPIN_MAX, f2u

S_RANK = 15
P_MEM0, P_WQ, P_WK, P_WV, P_WO = S_PTR, S_PTR + 2, S_PTR + 4, S_PTR + 6, S_PTR + 8
P_X, P_W1, P_W2, P_OUT = 60, 62, 64, 66
S_X4, S_O4 = 68, 72
T0, T1, T2, T3 = 42, 43, 44, 45
S_TRY = 41
WS = f's[{S_WS}:{S_WS+3}]'
W8 = f's[{S_W8}:{S_W8+3}]'
LOG2E = math.log2(math.e)
V_L, V_L16 = 0, 1


def wreg(n, cnt=4):
    return ar(n, cnt) if n < 256 else vr(224 + n - 256, cnt)


class Bulk:
    def __init__(self, g, bail, opt=()):
        self.opt = set(opt)
        self.g = g
        self.bail = bail

    def srd(self, dst, ptr, nbytes):
        g = self.g
        g.i(f's_mov_b32 s{dst}, s{ptr}')
        g.i(f's_mov_b32 s{dst+1}, s{ptr+1}')
        g.i(f's_mov_b32 s{dst+2}, {nbytes}')
        g.i(f's_mov_b32 s{dst+3}, 0x20000')

    def spin(self, load, test, sleep=4):
        g = self.g
        lp, ok = g.newlabel('sp'), g.newlabel('sp')
        g.i(f's_mov_b32 s{S_TRY}, 0')
        g.settle()
        g.label(lp)
        load()
        test()
        g.i(f's_cbranch_scc1 {ok}')
        g.i(f's_sleep {sleep}')
        g.i(f's_add_u32 s{S_TRY}, s{S_TRY}, 1')
        g.i(f's_cmp_lt_u32 s{S_TRY}, {SPIN_MAX}')
        g.i(f's_cbranch_scc1 {lp}')
        g.i(f's_branch {self.bail}')
        g.label(ok)

    def wait_word(self, soff, need, vt, sleep=4):
        g = self.g

        def load():
            g.i(f'buffer_load_dword v{vt}, off, {WS}, s{soff} sc1')
            g.wait_vm()

        def test():
            g.i(f'v_readfirstlane_b32 s{T3}, v{vt}')
            g.i(f's_cmp_ge_u32 s{T3}, {need}')
        self.spin(load, test, sleep)

    def wait_ln(self, vt):
        g = self.g
        sk = g.newlabel('wl')
        g.i(f's_cmp_lg_u32 s{S_W}, 0')
        g.i(f's_cbranch_scc1 {sk}')
        g.i(f'v_mov_b32 v{vt+1}, {DBG_LNOK}')

        def load():
            g.i(f'global_load_dword v{vt}, v{vt+1}, s[{S_DBG}:{S_DBG+1}] sc1')
            g.wait_vm()

        def test():
            g.i(f'v_readfirstlane_b32 s{T3}, v{vt}')
            g.i(f's_cmp_lg_u32 s{T3}, 0')
        self.spin(load, test, 8)
        g.label(sk)
        g.i('s_barrier')

    def setup(self):
        g = self.g
        g.i(f'v_lshlrev_b32 v{V_L16}, 4, v{V_L}')
        self.srd(S_X4, P_X, 2359296)
        self.srd(S_O4, P_OUT, 2359296)

    def layernorm(self):
        g = self.g
        VA, VO, VS, VQ, VM, VR, VT, VU = 2, 3, 4, 5, 6, 8, 10, 12
        D, F = 16, 64
        g.i(f'v_and_b32 v{VT}, 7, v{V_L}')
        g.i(f'v_lshrrev_b32 v{VU}, 3, v{V_L}')
        g.i(f'v_mul_u32_u24 v{VA}, 1152, v{VU}')
        g.i(f'v_lshl_add_u32 v{VA}, v{VT}, 4, v{VA}')
        g.i(f's_lshl_b32 s20, s{S_RANK}, 2')
        g.i(f's_add_u32 s20, s20, s{S_W}')
        g.i(f's_mul_i32 s{T0}, s20, 9216')
        g.vm_q = []
        for i in range(9):
            g.i(f'buffer_load_dwordx4 {vr(D + 4*i, 4)}, v{VA}, s[{S_X4}:{S_X4+3}], s{T0} offen offset:{128*i}', tag=('x', i))
        g.i(f'v_lshlrev_b32 v{VO}, 9, v{VT}')
        g.i(f'v_lshl_add_u32 v{VO}, v{VU}, 4, v{VO}')
        g.i(f'v_mov_b32 v{VS}, 0')
        g.i(f'v_lshlrev_b32 v{VQ}, 2, v{V_L}')
        g.i(f's_lshl_b32 s{T0}, s20, 6')
        g.i(f's_add_u32 s{T0}, s{T0}, {OFF_FLAG}')
        g.i('s_mov_b64 exec, 0xffff')
        g.i(f'buffer_store_dword v{VS}, v{VQ}, {WS}, s{T0} offen sc1')
        g.i('s_mov_b64 exec, -1')

        def allsum(r):
            g.i(f'v_add_f32_dpp v{r}, v{r}, v{r} quad_perm:[1,0,3,2] row_mask:0xf bank_mask:0xf')
            g.i(f'v_add_f32_dpp v{r}, v{r}, v{r} quad_perm:[2,3,0,1] row_mask:0xf bank_mask:0xf')
            g.i(f'v_add_f32_dpp v{r}, v{r}, v{r} row_half_mirror row_mask:0xf bank_mask:0xf')

        def rnd(r):
            g.i(f'v_cvt_pk_bf16_f32 v{r}, v{r}, v{r}')
            g.i(f'v_and_b32 v{r}, 0xffff0000, v{r}')
        for k in range(36):
            if k % 4 == 0:
                g.wait_vm(('x', k // 4))
            g.i(f'v_lshlrev_b32 v{F+2*k}, 16, v{D+k}')
            g.i(f'v_and_b32 v{F+2*k+1}, 0xffff0000, v{D+k}')
            if k == 1:
                g.i(f'v_pk_add_f32 {vr(VT,2)}, {vr(F,2)}, {vr(F+2,2)}')
            elif k > 1:
                g.i(f'v_pk_add_f32 {vr(VT,2)}, {vr(VT,2)}, {vr(F+2*k,2)}')
        g.i(f'v_add_f32 v{VS}, v{VT}, v{VT+1}')
        allsum(VS)
        g.i(f'v_mul_f32 v{VM}, {f2u(1/576):#x}, v{VS}')
        for k in range(36):
            g.i(f'v_pk_add_f32 {vr(VU,2)}, {vr(F+2*k,2)}, {vr(VM,2)} op_sel_hi:[1,0] neg_lo:[0,1] neg_hi:[0,1]')
            if k == 0:
                g.i(f'v_pk_mul_f32 {vr(VT,2)}, {vr(VU,2)}, {vr(VU,2)}')
            else:
                g.i(f'v_pk_fma_f32 {vr(VT,2)}, {vr(VU,2)}, {vr(VU,2)}, {vr(VT,2)}')
        g.i(f'v_add_f32 v{VQ}, v{VT}, v{VT+1}')
        allsum(VQ)
        g.i(f'v_mul_f32 v{VQ}, {f2u(1/576):#x}, v{VQ}')
        rnd(VQ)
        g.i(f'v_add_f32 v{VQ}, {f2u(1e-5):#x}, v{VQ}')
        rnd(VQ)
        g.i(f'v_sqrt_f32 v{VQ}, v{VQ}')
        rnd(VQ)
        g.i(f'v_rcp_f32 v{VR}, v{VQ}')
        rnd(VM)
        g.i(f's_mul_i32 s{T0}, s{S_RANK}, 36864')
        g.i(f's_lshl_b32 s{T1}, s{S_W}, 7')
        g.i(f's_add_u32 s{T0}, s{T0}, s{T1}')
        for k in range(36):
            a, d = F + 2 * k, D + k
            g.i(f'v_pk_add_f32 {vr(a,2)}, {vr(a,2)}, {vr(VM,2)} op_sel_hi:[1,0] neg_lo:[0,1] neg_hi:[0,1]')
            g.i(f'v_cvt_pk_bf16_f32 v{d}, v{a}, v{a+1}')
            g.i(f'v_lshlrev_b32 v{a}, 16, v{d}')
            g.i(f'v_and_b32 v{a+1}, 0xffff0000, v{d}')
            g.i(f'v_pk_mul_f32 {vr(a,2)}, {vr(a,2)}, {vr(VR,2)} op_sel_hi:[1,0]')
            g.i(f'v_cvt_pk_bf16_f32 v{d}, v{a}, v{a+1}')
            if k % 4 == 3:
                g.i(f's_add_u32 s{T1}, s{T0}, {OFF_XN + 4096*(k//4)}')
                g.i(f'buffer_store_dwordx4 {vr(d-3, 4)}, v{VO}, {WS}, s{T1} offen sc1')
        g.wait_vm()
        g.i('s_barrier')
        sk = g.newlabel('lns')
        g.i(f's_cmp_lg_u32 s{S_W}, 0')
        g.i(f's_cbranch_scc1 {sk}')
        g.i('s_mov_b64 exec, 1')
        g.i(f'v_mov_b32 v2, {DBG_LN}')
        g.i('v_mov_b32 v3, 1')
        g.i(f'global_atomic_add v4, v2, v3, s[{S_DBG}:{S_DBG+1}] sc0')
        g.i(f'v_mov_b32 v2, {DBG_LNOK}')
        g.wait_vm()
        g.i(f'v_readfirstlane_b32 s{T0}, v4')
        nl = g.newlabel('lns')
        g.i(f's_cmp_lg_u32 s{T0}, {N_LN - 1}')
        g.i(f's_cbranch_scc1 {nl}')
        g.i(f'global_store_dword v2, v3, s[{S_DBG}:{S_DBG+1}] sc1')
        g.label(nl)
        g.i('s_mov_b64 exec, -1')
        g.label(sk)

    def load_weights(self, ntile, nstep, s_off, s_pitch):
        g = self.g
        VA, VT, VX, VY = 2, 3, 4, 5
        seg = 64 * ntile
        lpr = seg // 16
        rpi = 1024 // seg
        spb = 4 * rpi // 16
        nblk = nstep // spb
        sh = lpr.bit_length() - 1
        g.i(f'v_lshrrev_b32 v{VX}, {sh}, v{V_L}')
        g.i(f'v_mul_lo_u32 v{VA}, v{VX}, s{s_pitch}')
        g.i(f'v_and_b32 v{VX}, {lpr-1}, v{V_L}')
        g.i(f'v_lshl_add_u32 v{VA}, v{VX}, 4, v{VA}')
        g.i(f'v_lshrrev_b32 v{VX}, 5, v{V_L}')
        g.i(f'v_bfe_u32 v{VY}, v{V_L}, 2, 2')
        g.i(f'v_lshl_add_u32 v{VX}, v{VX}, 3, v{VY}')
        g.i(f'v_mul_u32_u24 v{VT}, {seg}, v{VX}')
        g.i(f'v_bfe_u32 v{VX}, v{V_L}, 4, 1')
        g.i(f'v_lshl_add_u32 v{VT}, v{VX}, 5, v{VT}')
        g.i(f'v_and_b32 v{VX}, 3, v{V_L}')
        g.i(f'v_lshl_add_u32 v{VT}, v{VX}, 3, v{VT}')
        g.i(f's_mul_i32 s{T2}, s{S_W}, 36864')
        g.i(f'v_add_u32 v{VT}, s{T2}, v{VT}')
        g.i(f's_mul_i32 s{T1}, s{s_pitch}, {rpi}')
        g.i(f's_mov_b32 s{T0}, s{s_off}')
        g.vm_q = []

        def issue(n):
            for q in range(4):
                g.i(f's_add_u32 m0, s{T2}, {(n % 9) * 4096 + q * 1024}')
                g.i(f'buffer_load_dwordx4 v{VA}, {W8}, s{T0} offen lds', tag=('w', n))
                g.i(f's_add_u32 s{T0}, s{T0}, s{T1}')
        for n in range(min(9, nblk)):
            issue(n)
        for n in range(nblk):
            g.wait_vm(('w', n))
            for st in range(spb):
                for x in range(ntile):
                    r = 4 * ((n * spb + st) * ntile + x)
                    for hf in range(2):
                        off = (n % 9) * 4096 + (16 * st + 4 * hf) * seg + 64 * x
                        g.i(f'ds_read_b64_tr_b16 {wreg(r + 2*hf, 2)}, v{VT} offset:{off}')
            g.wait_lds()
            if n + 9 < nblk:
                issue(n + 9)

    def silu_ops(self, src, a, b, t):
        return [f'v_lshlrev_b32 v{a}, 16, v{src}', f'v_and_b32 v{b}, 0xffff0000, v{src}',
                f'v_mul_f32 v{t}, {f2u(-LOG2E):#x}, v{a}', f'v_mul_f32 v{t+1}, {f2u(-LOG2E):#x}, v{b}',
                f'v_exp_f32 v{t}, v{t}', f'v_exp_f32 v{t+1}, v{t+1}',
                f'v_add_f32 v{t}, 1.0, v{t}', f'v_add_f32 v{t+1}, 1.0, v{t+1}',
                f'v_rcp_f32 v{t}, v{t}', f'v_rcp_f32 v{t+1}, v{t+1}',
                f'v_mul_f32 v{a}, v{a}, v{t}', f'v_mul_f32 v{b}, v{b}, v{t+1}',
                f'v_cvt_pk_bf16_f32 v{src}, v{a}, v{b}']

    def project(self):
        g = self.g
        S_B, S_REP, S_OFF, S_PITCH, S_OUT, S_OSTR, S_A, S_N, S_I, S_FL, S_ST, S_LW, S_SW = range(16, 29)
        kv, dec = g.newlabel('pj'), g.newlabel('pj')
        g.i(f's_sub_u32 s{T0}, s{S_RANK}, 64')
        g.i(f's_cmp_lt_u32 s{T0}, 96')
        g.i(f's_cbranch_scc1 {kv}')
        g.i(f's_cmp_lt_u32 s{S_RANK}, 64')
        g.i(f's_cselect_b32 s{T0}, {N_NOP}, {160 - 38}')
        g.i(f's_sub_u32 s{T0}, s{S_RANK}, s{T0}')
        g.i(f's_mul_hi_u32 s{S_B}, s{T0}, {(1 << 32) // 3 + 1}')
        g.i(f's_mul_i32 s{T1}, s{S_B}, 3')
        g.i(f's_sub_u32 s{S_REP}, s{T0}, s{T1}')
        g.i(f's_sub_u32 s{S_B}, 65, s{S_B}')
        if 'nowarm' not in self.opt:
            nw = g.newlabel('nw')
            g.i(f's_cmp_lt_u32 s{S_RANK}, 160')
            g.i(f's_cbranch_scc1 {nw}')
            lab = [g.newlabel('nw') for _ in range(5)]
            for w in range(1, 4):
                g.i(f's_cmp_eq_u32 s{S_W}, {w}')
                g.i(f's_cbranch_scc1 {lab[w]}')
            for w, p in enumerate((P_WQ, P_WK, P_WV, P_WO)):
                g.label(lab[w])
                self.srd(S_W8, p, 4718592)
                g.i(f's_branch {lab[4]}')
            g.label(lab[4])
            g.i(f's_sub_u32 s{T0}, s{S_RANK}, 160')
            g.i(f's_lshl_b32 s{T0}, s{T0}, 13')
            g.i(f'v_lshlrev_b32 v8, 7, v{V_L}')
            for n in range(9):
                g.i(f'buffer_load_dword v9, v8, {W8}, s{T0} offen')
                g.i(f's_add_u32 s{T0}, s{T0}, {64 * 8192}')
            g.wait_vm()
            g.label(nw)
        if 'eager' not in self.opt:
            self.wait_ln(2)
        g.i(f's_branch {dec}')
        g.label(kv)
        g.i(f's_and_b32 s{S_B}, s{T0}, 31')
        g.i(f's_lshr_b32 s{S_REP}, s{T0}, 5')
        g.label(dec)
        lq, lh, lv, go = [g.newlabel('pj') for _ in range(4)]
        VST = 6
        g.i(f'v_mov_b32 v{VST}, v{V_L16}')
        g.i(f's_mov_b32 s{S_PITCH}, 8192')
        g.i(f's_mov_b32 s{S_OSTR}, {32 * 8192}')
        g.i(f's_and_b32 s{T2}, s{S_W}, 1')
        g.i(f's_cmp_ge_u32 s{S_B}, 48')
        g.i(f's_cbranch_scc1 {lh}')
        g.i(f's_cmp_ge_u32 s{S_B}, 32')
        g.i(f's_cbranch_scc1 {lq}')
        g.i(f's_lshl_b32 s{S_OFF}, s{S_B}, 8')
        g.i(f's_lshl_b32 s{T0}, s{T2}, 7')
        g.i(f's_add_u32 s{S_OFF}, s{S_OFF}, s{T0}')
        g.i(f's_lshl_b32 s{S_OUT}, s{S_B}, 13')
        g.i(f's_lshl_b32 s{T0}, s{T2}, 12')
        g.i(f's_add_u32 s{S_OUT}, s{S_OUT}, s{T0}')
        g.i(f's_cmp_ge_u32 s{S_W}, 2')
        g.i(f's_cbranch_scc1 {lv}')
        self.srd(S_W8, P_WK, 4718592)
        g.i(f's_add_u32 s{S_OUT}, s{S_OUT}, {OFF_KX}')
        g.i(f'v_and_b32 v{VST}, 35, v{V_L}')
        g.i(f'v_bfe_u32 v2, v{V_L}, 3, 2')
        g.i(f'v_lshl_add_u32 v{VST}, v2, 2, v{VST}')
        g.i(f'v_bfe_u32 v2, v{V_L}, 2, 1')
        g.i(f'v_lshl_add_u32 v{VST}, v2, 4, v{VST}')
        g.i(f'v_lshlrev_b32 v{VST}, 4, v{VST}')
        g.i(f's_mov_b32 s{S_SW}, 0')
        g.i(f's_branch {go}')
        g.label(lv)
        self.srd(S_W8, P_WV, 4718592)
        g.i(f's_add_u32 s{S_OUT}, s{S_OUT}, {OFF_VX}')
        g.i(f's_mov_b32 s{S_SW}, 1')
        g.i(f's_branch {go}')
        g.label(lq)
        g.i(f's_sub_u32 s{T0}, s{S_B}, 32')
        g.i(f's_lshl_b32 s{T0}, s{T0}, 2')
        g.i(f's_add_u32 s{T0}, s{T0}, s{S_W}')
        g.i(f's_lshl_b32 s{S_OFF}, s{T0}, 7')
        g.i(f's_lshl_b32 s{S_OUT}, s{T0}, 12')
        g.i(f's_add_u32 s{S_OUT}, s{S_OUT}, {OFF_QX}')
        self.srd(S_W8, P_WQ, 4718592)
        g.i(f's_mov_b32 s{S_SW}, 0')
        g.i(f's_branch {go}')
        g.label(lh)
        g.i(f's_sub_u32 s{T0}, s{S_B}, 48')
        g.i(f's_lshl_b32 s{T0}, s{T0}, 2')
        g.i(f's_add_u32 s{T0}, s{T0}, s{S_W}')
        g.i(f's_lshl_b32 s{S_OFF}, s{T0}, 7')
        g.i(f's_lshl_b32 s{S_OUT}, s{T0}, 12')
        g.i(f's_add_u32 s{S_OUT}, s{S_OUT}, {OFF_H}')
        g.i(f's_mov_b32 s{S_PITCH}, 9216')
        g.i(f's_mov_b32 s{S_OSTR}, 294912')
        self.srd(S_W8, P_W1, 5308416)
        g.i(f's_mov_b32 s{S_SW}, 2')
        g.label(go)
        self.load_weights(2, 36, S_OFF, S_PITCH)
        g.i(f's_mul_i32 s{T0}, s{S_OSTR}, s{S_REP}')
        g.i(f's_add_u32 s{S_OUT}, s{S_OUT}, s{T0}')
        g.i(f's_mul_i32 s{S_OSTR}, s{S_OSTR}, 3')
        g.i(f's_sub_u32 s{S_OUT}, s{S_OUT}, s{S_OSTR}')
        g.i(f's_mul_i32 s{S_A}, s{S_REP}, 36864')
        g.i(f's_mul_i32 s{S_LW}, s{S_W}, 9216')
        g.i(f's_add_u32 s{S_A}, s{S_A}, s{S_LW}')
        g.i(f's_cmp_eq_u32 s{S_REP}, 0')
        g.i(f's_cselect_b32 s{S_N}, 22, 21')
        g.i(f's_lshl_b32 s{S_FL}, s{S_REP}, 7')
        g.i(f's_add_u32 s{S_FL}, s{S_FL}, s{S_B}')
        g.i(f's_lshl_b32 s{S_FL}, s{S_FL}, 2')
        g.i(f's_add_u32 s{S_FL}, s{S_FL}, {OFF_FLAG + FL_P1}')
        self.stamp()
        self.wait_ln(2)
        VA, VP = 2, 3
        ACC, PK, RING, TMP = 16, 48, 64, 96

        def dma(stage_sgpr):
            L = []
            for q in range(3):
                for z in range(3):
                    def f(q=q, z=z):
                        if z == 0:
                            g.i(f's_add_u32 m0, s{stage_sgpr}, {q * 3072}')
                            g.i(f's_add_u32 s{T0}, s{S_A}, {OFF_XN + q * 3072}')
                        g.i(f'buffer_load_dwordx4 v{V_L16}, {WS}, s{T0} offen offset:{1024*z} sc1 lds')
                    L.append(f)
            L.append(lambda: g.i(f's_add_u32 s{S_A}, s{S_A}, {3 * 36864}'))
            return L
        for st in range(2):
            g.i(f's_add_u32 s{T1}, s{S_LW}, {st * 36864}')
            for f in dma(T1):
                f()
        if 'cyc' in self.opt:
            g.i('s_memtime s[96:97]')
            g.i('s_memrealtime s[98:99]')
            g.i('s_waitcnt lgkmcnt(0)')
        g.i(f's_mov_b32 s{S_I}, 0')
        g.i(f's_mov_b32 s{S_ST}, 0')
        labs = [g.newlabel('pv') for _ in range(3)]
        end = g.newlabel('pe')
        g.i(f's_cmp_eq_u32 s{S_SW}, 1')
        g.i(f's_cbranch_scc1 {labs[1]}')
        g.i(f's_cmp_eq_u32 s{S_SW}, 2')
        g.i(f's_cbranch_scc1 {labs[2]}')

        def epilogue_ops(silu):
            L = []
            if silu:
                for k in range(0, 16, 2):
                    A = self.silu_ops(PK + k, TMP, TMP + 1, TMP + 2)
                    B = self.silu_ops(PK + k + 1, TMP + 4, TMP + 5, TMP + 6)
                    for p, q in zip(A, B):
                        L += [p, q]
            for n in range(4):
                p = PK + 4 * n
                L += [f'v_permlane32_swap_b32 v{p}, v{p+2}', f'v_permlane32_swap_b32 v{p+1}, v{p+3}',
                      f'buffer_store_dwordx4 {vr(p,4)}, v{VST}, {WS}, s{S_OUT} offen offset:{1024*n} {"" if "plainst" in self.opt else "sc1"}']
            return L

        def publish(sval):
            sk = g.newlabel('pp')
            g.i(f's_cmp_lg_u32 s{S_W}, 0')
            g.i(f's_cbranch_scc1 {sk}')
            g.i(f'v_mov_b32 v{VP}, s{sval}')
            g.i('s_mov_b64 exec, 1')
            g.i(f'buffer_store_dword v{VP}, off, {WS}, s{S_FL} sc1')
            g.i('s_mov_b64 exec, -1')
            g.label(sk)

        for var in range(3):
            g.label(labs[var])
            g.forget()
            silu = var == 2
            first, top = g.newlabel('pf'), g.newlabel('pt')

            def body(with_epi):
                g.lds_q = []
                g.i(f's_waitcnt vmcnt({13 if with_epi else 9})')
                g.i('s_barrier')
                g.i(f'v_add_u32 v{VA}, s{S_ST}, v{V_L16}')
                for u in range(5):
                    g.i(f'ds_read_b128 {vr(RING + 4*u, 4)}, v{VA} offset:{1024*u}', tag=('a', u))
                g.i(f's_sub_u32 s{T2}, s{S_I}, 2')
                g.i(f's_max_i32 s{T2}, s{T2}, 0')
                publish(T2)
                g.i(f's_sub_u32 s{T1}, s{S_ST}, 36864')
                g.i(f's_cmp_eq_u32 s{S_ST}, 0')
                g.i(f's_cselect_b32 s{T1}, {2 * 36864}, s{T1}')
                g.i(f's_add_u32 s{T1}, s{T1}, s{S_LW}')
                dq = dma(T1)
                fill = epilogue_ops(silu) if with_epi else []
                per = 4 if silu else 1
                for u in range(36):
                    g.wait_lds(('a', u))
                    a = vr(RING + 4 * (u % 6), 4)
                    for x in range(2):
                        w = wreg(4 * (2 * u + x))
                        c = vr(ACC + 16 * x, 16) if u else '0'
                        ops = f'{a}, {w}' if var == 1 else f'{w}, {a}'
                        g.i(f'v_mfma_f32_32x32x16_bf16 {vr(ACC + 16*x, 16)}, {ops}, {c}')
                        if x == 0 and u + 5 < 36:
                            g.i(f'ds_read_b128 {vr(RING + 4*((u+5) % 6), 4)}, v{VA} offset:{1024*(u+5)}', tag=('a', u + 5))
                        if x == 1 and dq:
                            dq.pop(0)()
                        for _ in range(per):
                            if fill and not (dq and fill[0].startswith('buffer')):
                                g.i(fill.pop(0))
                assert not fill
                g.i(f's_add_u32 s{S_ST}, s{S_ST}, 36864')
                g.i(f's_cmp_eq_u32 s{S_ST}, {3 * 36864}')
                g.i(f's_cselect_b32 s{S_ST}, 0, s{S_ST}')
                g.i(f's_add_u32 s{S_OUT}, s{S_OUT}, s{S_OSTR}')
                g.i(f's_add_u32 s{S_I}, s{S_I}, 1')
                for k in range(16):
                    g.i(f'v_cvt_pk_bf16_f32 v{PK+k}, v{ACC+2*k}, v{ACC+2*k+1}')
            body(False)
            g.i('s_waitcnt vmcnt(9)')
            g.settle()
            g.label(top)
            body(True)
            g.i(f's_cmp_lt_u32 s{S_I}, s{S_N}')
            g.settle()
            g.i(f's_cbranch_scc1 {top}')
            for f in epilogue_ops(silu):
                g.i(f)
            g.i(f's_branch {end}')
        g.label(end)
        g.forget()
        if 'cyc' in self.opt:
            g.i('s_memtime s[76:77]')
            g.i('s_memrealtime s[78:79]')
            g.i('s_waitcnt lgkmcnt(0)')
            g.i('s_sub_u32 s88, s76, s96')
            g.i('s_sub_u32 s89, s78, s98')
        g.wait_vm()
        g.i('s_barrier')
        publish(S_N)

    def stream_gemm(self, gate):
        g = self.g
        S_SL, S_RP, S_OFF, S_PITCH, S_RT, S_A, S_AN, S_FLG, S_NEED, S_GL, S_XO, S_PRE = range(16, 28)
        NS = 72 if gate else 64
        RN = NS // 2
        TILE = NS * 4 * 1024
        BASE = OFF_H if gate else OFF_O
        VF, VFA, VRW, VRR, VG, VXO, VT = 2, 3, 4, 5, 6, 7, 8
        ACC, RING = 16, 64
        L_RED, L_G = 0, 147456
        if gate:
            g.i(f's_sub_u32 s{T0}, s{S_RANK}, {N_ATT}')
            g.i(f's_mul_hi_u32 s{S_RP}, s{T0}, {(1 << 32) // 18 + 1}')
            g.i(f's_mul_i32 s{T1}, s{S_RP}, 18')
            g.i(f's_sub_u32 s{S_SL}, s{T0}, s{T1}')
        self.srd(S_W8, P_W2 if gate else P_WO, 5308416 if gate else 4718592)
        g.i(f's_mov_b32 s{S_PITCH}, 1152')
        g.i(f's_mul_i32 s{S_OFF}, s{S_W}, {NS * 16 * 1152}')
        g.i(f's_lshl_b32 s{T0}, s{S_SL}, 6')
        g.i(f's_add_u32 s{S_OFF}, s{S_OFF}, s{T0}')
        g.i('s_barrier')
        self.load_weights(1, NS, S_OFF, S_PITCH)
        self.stamp()
        g.i('s_barrier')
        g.i(f's_lshl_b32 s{T0}, s{S_W}, 12')
        g.i(f'v_add_u32 v{VRW}, s{T0}, v{V_L16}')
        g.i(f's_lshl_b32 s{T0}, s{S_W}, 10')
        g.i(f'v_add_u32 v{VRR}, s{T0}, v{V_L16}')
        g.i(f'v_lshrrev_b32 v{VG}, 1, v{VRR}')
        g.i(f'v_add_u32 v{VG}, {L_G}, v{VG}')
        g.i(f'v_and_b32 v{VT}, 31, v{V_L}')
        g.i(f'v_mul_u32_u24 v{VXO}, 1152, v{VT}')
        g.i(f'v_lshrrev_b32 v{VT}, 5, v{V_L}')
        g.i(f'v_lshl_add_u32 v{VXO}, v{VT}, 3, v{VXO}')
        g.i(f's_lshl_b32 s{T0}, s{S_SL}, 6')
        g.i(f's_lshl_b32 s{T1}, s{S_W}, 4')
        g.i(f's_add_u32 s{T0}, s{T0}, s{T1}')
        g.i(f'v_add_u32 v{VXO}, s{T0}, v{VXO}')
        g.i(f'v_min_u32 v{VFA}, 17, v{V_L}')
        g.i(f'v_lshlrev_b32 v{VFA}, 2, v{VFA}')
        g.i(f's_mov_b32 s{S_RT}, s{S_RP}')
        g.i(f's_mov_b32 s{S_GL}, 0')

        def flag_addr(rt):
            if gate:
                g.i(f's_mul_hi_u32 s{S_NEED}, s{rt}, {(1 << 32) // 3 + 1}')
                g.i(f's_mul_i32 s{T0}, s{S_NEED}, 3')
                g.i(f's_sub_u32 s{T0}, s{rt}, s{T0}')
                g.i(f's_lshl_b32 s{T0}, s{T0}, 9')
                g.i(f's_add_u32 s{S_FLG}, s{T0}, {OFF_FLAG + FL_P1 + 48 * 4}')
                g.i(f's_add_u32 s{S_NEED}, s{S_NEED}, 1')
            else:
                g.i(f's_lshl_b32 s{T0}, s{rt}, 6')
                g.i(f's_add_u32 s{S_FLG}, s{T0}, {OFF_FLAG + FL_O}')
                g.i(f's_mov_b32 s{S_NEED}, 32')

        def flag_load(tag=None):
            if gate:
                g.i(f'buffer_load_dword v{VF}, v{VFA}, {WS}, s{S_FLG} offen sc1', tag=tag)
            else:
                g.i(f'buffer_load_dword v{VF}, off, {WS}, s{S_FLG} sc1', tag=tag)

        def flag_test():
            g.i(f'v_cmp_gt_u32 vcc, s{S_NEED}, v{VF}')
            g.i(f's_cmp_eq_u64 vcc, 0')

        def aaddr(dst, rt):
            g.i(f's_mul_i32 s{dst}, s{rt}, {TILE}')
            g.i(f's_mul_i32 s{T0}, s{S_W}, {NS * 1024}')
            g.i(f's_add_u32 s{dst}, s{dst}, s{T0}')
            g.i(f's_add_u32 s{dst}, s{dst}, {BASE}')

        def aload(sreg, n):
            g.i(f'buffer_load_dwordx4 {vr(RING + 4*(n % RN), 4)}, v{V_L16}, {WS}, s{sreg} offen offset:{1024*(n%4)} sc1')
            if n % 4 == 3:
                g.i(f's_add_u32 s{sreg}, s{sreg}, 4096')

        def mm(n):
            g.i(f'v_mfma_f32_32x32x16_bf16 {vr(ACC + 16*(n&1), 16)}, {wreg(4*n)}, {vr(RING + 4*(n % RN), 4)}, '
                f'{vr(ACC + 16*(n&1), 16) if n > 1 else 0}')
        cold, warm, nopre, epi, end = [g.newlabel('sg') for _ in range(5)]
        g.label(cold)
        flag_addr(S_RT)

        def ld():
            flag_load(); g.wait_vm()
        self.spin(ld, flag_test, 40 if gate else 4)
        aaddr(S_A, S_RT)
        for n in range(RN):
            aload(S_A, n)
        g.settle()
        g.label(warm)
        g.forget()
        g.i(f's_add_u32 s{T2}, s{S_RT}, {N_REP}')
        g.i(f's_min_u32 s{T2}, s{T2}, 63')
        flag_addr(T2)
        aaddr(S_AN, T2)
        g.i(f's_mul_i32 s{S_XO}, s{S_RT}, {32 * 1152}')
        for n in range(RN):
            g.i(f's_waitcnt vmcnt({RN - 1})')
            mm(n)
            aload(S_A, n + RN)
            if n == 0:
                flag_load()
                if not gate:
                    g.i(f'buffer_load_dwordx2 {vr(VT+6,2)}, v{VXO}, s[{S_X4}:{S_X4+3}], s{S_XO} offen')
        g.i(f's_waitcnt vmcnt({RN - 1})')
        flag_test()
        g.i(f's_cselect_b32 s{S_PRE}, 1, 0')
        g.i(f's_add_u32 s{T2}, s{S_RT}, {N_REP}')
        g.i(f's_cmp_lt_u32 s{T2}, 64')
        g.i(f's_cselect_b32 s{S_PRE}, s{S_PRE}, 0')
        g.i(f's_cmp_eq_u32 s{S_PRE}, 0')
        g.i(f's_cbranch_scc1 {nopre}')
        hist = list(g.hist)
        for n in range(RN, NS):
            g.i(f's_waitcnt vmcnt({RN - 1})')
            mm(n)
            aload(S_AN, n - RN)
        g.i(f's_mov_b32 s{S_A}, s{S_AN}')
        g.settle()
        g.i(f's_branch {epi}')
        g.label(nopre)
        g.hist = hist
        for n in range(RN, NS):
            g.i(f's_waitcnt vmcnt({NS - 1 - n})')
            mm(n)
        g.settle()
        g.label(epi)
        g.lds_q = []
        for r in range(0, 16, 2):
            g.i(f'v_pk_add_f32 {vr(ACC+r,2)}, {vr(ACC+r,2)}, {vr(ACC+16+r,2)}')
        for q in range(4):
            g.i(f'ds_write_b128 v{VRW}, {vr(ACC+4*q,4)} offset:{L_RED + 1024*q}')
        g.wait_lds()
        g.i('s_barrier')
        for w in range(4):
            g.i(f'ds_read_b128 {vr(ACC+4*w,4)}, v{VRR} offset:{L_RED + 4096*w}')
        if not gate:
            g.i(f'ds_read_b64 {vr(VT+4,2)}, v{VG}')
        g.i(f'v_xor_b32 v{VRW}, 0x4000, v{VRW}')
        g.i(f'v_xor_b32 v{VRR}, 0x4000, v{VRR}')
        g.wait_lds()
        for k in (0, 2):
            g.i(f'v_pk_add_f32 {vr(ACC+k,2)}, {vr(ACC+k,2)}, {vr(ACC+4+k,2)}')
            g.i(f'v_pk_add_f32 {vr(ACC+8+k,2)}, {vr(ACC+8+k,2)}, {vr(ACC+12+k,2)}')
        for k in (0, 2):
            g.i(f'v_pk_add_f32 {vr(ACC+k,2)}, {vr(ACC+k,2)}, {vr(ACC+8+k,2)}')
        g.i(f'v_cvt_pk_bf16_f32 v{ACC+4}, v{ACC}, v{ACC+1}')
        g.i(f'v_cvt_pk_bf16_f32 v{ACC+5}, v{ACC+2}, v{ACC+3}')
        if gate:
            A = self.silu_ops(ACC + 4, VT, VT + 1, VT + 2)
            B = self.silu_ops(ACC + 5, VT + 4, VT + 5, VT + 6)
            for p, q in zip(A, B):
                g.i(p); g.i(q)
            g.i(f'ds_write_b64 v{VG}, {vr(ACC+4,2)}')
        else:
            for k in range(2):
                s_, g_, x_ = ACC + 4 + k, VT + 4 + k, VT + 6 + k
                a, b, c, d = ACC + 8, ACC + 9, ACC + 10, ACC + 11
                g.i(f'v_lshlrev_b32 v{a}, 16, v{s_}')
                g.i(f'v_and_b32 v{b}, 0xffff0000, v{s_}')
                g.i(f'v_lshlrev_b32 v{c}, 16, v{g_}')
                g.i(f'v_and_b32 v{d}, 0xffff0000, v{g_}')
                g.i(f'v_mul_f32 v{a}, v{a}, v{c}')
                g.i(f'v_mul_f32 v{b}, v{b}, v{d}')
                g.i(f'v_cvt_pk_bf16_f32 v{s_}, v{a}, v{b}')
                g.i(f'v_lshlrev_b32 v{a}, 16, v{s_}')
                g.i(f'v_and_b32 v{b}, 0xffff0000, v{s_}')
                g.i(f'v_lshlrev_b32 v{c}, 16, v{x_}')
                g.i(f'v_and_b32 v{d}, 0xffff0000, v{x_}')
                g.i(f'v_add_f32 v{a}, v{a}, v{c}')
                g.i(f'v_add_f32 v{b}, v{b}, v{d}')
                g.i(f'v_cvt_pk_bf16_f32 v{s_}, v{a}, v{b}')
            g.i(f'buffer_store_dwordx2 {vr(ACC+4,2)}, v{VXO}, s[{S_O4}:{S_O4+3}], s{S_XO} offen')
        g.i(f'v_add_u32 v{VG}, 2048, v{VG}')
        g.i(f's_add_u32 s{S_RT}, s{S_RT}, {N_REP}')
        g.i(f's_cmp_eq_u32 s{S_PRE}, 1')
        g.settle()
        g.i(f's_cbranch_scc1 {warm}')
        g.i(f's_cmp_lt_u32 s{S_RT}, 64')
        g.i(f's_cbranch_scc1 {cold}')
        g.wait_lds()

    def attention(self):
        g = self.g
        S_U, S_S, S_HD, S_BLK, S_F1, S_NEED, S_C, S_LB = range(16, 24)
        VK, VF, VFA, VKW, VKR, VVR, VMX, VL, VT, VKK = 2, 3, 4, 5, 6, 7, 8, 9, 10, 15
        MASK, Q, K, V, SX, SM, KM, VM, REC, PB, O = 16, 32, 64, 96, 128, 144, 160, 192, 200, 216, 32
        g.i(f's_lshl_b32 s{S_U}, s{S_RANK}, 2')
        g.i(f's_add_u32 s{S_U}, s{S_U}, s{S_W}')
        g.i(f's_mov_b32 s{S_C}, {f2u(128 ** -0.5 * LOG2E):#x}')
        g.i(f's_lshl_b32 s{S_LB}, s{S_W}, 12')
        J, HF = VT, VT + 1
        g.i(f'v_and_b32 v{J}, 31, v{V_L}')
        g.i(f'v_lshrrev_b32 v{HF}, 5, v{V_L}')
        g.i(f'v_and_b32 v{VK}, 7, v{J}')
        g.i(f'v_bfe_u32 v{VT+2}, v{J}, 3, 1')
        g.i(f'v_lshl_add_u32 v{VK}, v{VT+2}, 4, v{VK}')
        g.i(f'v_bfe_u32 v{VT+2}, v{J}, 4, 1')
        g.i(f'v_lshl_add_u32 v{VK}, v{VT+2}, 3, v{VK}')
        g.i(f'v_lshlrev_b32 v{VK}, 4, v{VK}')
        g.i(f'v_lshl_add_u32 v{VK}, v{HF}, 9, v{VK}')
        g.i(f'v_lshlrev_b32 v{VT+2}, 3, v{HF}')
        g.i(f'v_sub_u32 v{VT+2}, v{J}, v{VT+2}')
        g.i(f'v_mov_b32 v{VT+3}, {f2u(-1e30):#x}')
        for r in range(16):
            g.i(f'v_cmp_le_i32 vcc, {16*(r>>3) + (r&7)}, v{VT+2}')
            g.i(f'v_cndmask_b32 v{MASK+r}, v{VT+3}, 0, vcc')
        g.i(f'v_and_b32 v{VT+2}, 15, v{V_L}')
        g.i(f'v_lshrrev_b32 v{VT+3}, 4, v{V_L}')
        g.i(f'v_lshlrev_b32 v{VKW}, 4, v{VT+2}')
        g.i(f'v_lshl_add_u32 v{VKW}, v{VT+3}, 2, v{VKW}')
        g.i(f'v_add_u32 v{VKW}, s{S_LB}, v{VKW}')
        g.i(f'v_and_b32 v{VT+2}, 12, v{V_L}')
        g.i(f'v_lshl_add_u32 v{VKK}, v{VT+2}, 4, v{VKW}')
        g.i(f'v_bfe_u32 v{VT+2}, v{V_L}, 2, 2')
        g.i(f'v_lshl_add_u32 v{VT+2}, v{HF}, 3, v{VT+2}')
        g.i(f'v_lshlrev_b32 v{VKR}, 4, v{VT+2}')
        g.i(f'v_and_b32 v{VT+2}, 1, v{V_L}')
        g.i(f'v_lshl_add_u32 v{VKR}, v{VT+2}, 3, v{VKR}')
        g.i(f'v_add_u32 v{VKR}, s{S_LB}, v{VKR}')
        g.i(f'v_lshlrev_b32 v{VVR}, 4, v{J}')
        g.i(f'v_lshl_add_u32 v{VVR}, v{HF}, 3, v{VVR}')
        g.i(f'v_add_u32 v{VVR}, s{S_LB}, v{VVR}')
        self.wait_ln(VT + 2)
        top, end = g.newlabel('at'), g.newlabel('ae')
        g.label(top)
        g.forget()
        g.i(f's_lshr_b32 s{S_S}, s{S_U}, 5')
        g.i(f's_and_b32 s{S_HD}, s{S_U}, 31')
        g.i(f's_lshl_b32 s{S_BLK}, s{S_U}, 13')
        g.i(f's_mul_hi_u32 s{S_NEED}, s{S_S}, {(1 << 32) // 3 + 1}')
        g.i(f's_mul_i32 s{T0}, s{S_NEED}, 3')
        g.i(f's_sub_u32 s{T0}, s{S_S}, s{T0}')
        g.i(f's_lshl_b32 s{T0}, s{T0}, 9')
        g.i(f's_add_u32 s{S_F1}, s{T0}, {OFF_FLAG + FL_P1}')
        g.i(f's_add_u32 s{S_NEED}, s{S_NEED}, 1')
        g.i(f's_lshr_b32 s{T0}, s{S_HD}, 1')
        g.i(f's_add_u32 s{T0}, s{T0}, 32')
        g.i(f's_lshl_b32 s{T0}, s{T0}, 2')
        g.i(f's_lshl_b32 s{T1}, s{S_HD}, 2')
        g.i(f'v_mov_b32 v{VFA}, s{T0}')
        g.i(f'v_writelane_b32 v{VFA}, s{T1}, 0')

        def ld():
            g.i(f'buffer_load_dword v{VF}, v{VFA}, {WS}, s{S_F1} offen sc1')
            g.wait_vm()

        def tst():
            g.i(f'v_cmp_gt_u32 vcc, s{S_NEED}, v{VF}')
            g.i(f's_cmp_eq_u64 vcc, 0')
        self.spin(ld, tst, 40)
        g.vm_q = []
        for base, dst, va, tg in ((OFF_QX, Q, V_L16, 'q'), (OFF_KX, K, VK, 'k'), (OFF_VX, V, V_L16, 'v')):
            for hb in range(2):
                g.i(f's_add_u32 s{T0}, s{S_BLK}, {base + 4096*hb}')
                for n in range(4):
                    g.i(f'buffer_load_dwordx4 {vr(dst + 16*hb + 4*n, 4)}, v{va}, {WS}, s{T0} offen offset:{1024*n} sc1', tag=tg)
        g.wait_vm('k')
        for u in range(8):
            g.i(f'v_mfma_f32_32x32x16_bf16 {vr(SX,16)}, {vr(K+4*u,4)}, {vr(Q+4*u,4)}, {vr(SX if u else MASK,16)}')
        g.i(f'v_max3_f32 v{VMX}, v{SX}, v{SX+1}, v{SX+2}')
        for r in range(3, 15, 2):
            g.i(f'v_max3_f32 v{VMX}, v{VMX}, v{SX+r}, v{SX+r+1}')
        g.i(f'v_max_f32 v{VMX}, v{VMX}, v{SX+15}')
        g.i(f's_lshl_b32 s{T2}, s{S_U}, 2')
        g.i(f's_add_u32 s{T2}, s{T2}, {OFF_FLAG + FL_KM}')
        self.wait_word(T2, 1, VF, 4)
        g.i(f's_lshl_b32 s{T0}, s{S_U}, 12')
        g.i(f's_add_u32 s{T0}, s{T0}, {OFF_KM}')
        g.vm_q = []; g.lds_q = []
        for w in range(4):
            g.i(f'buffer_load_dwordx4 {vr(REC+4*w,4)}, v{V_L16}, {WS}, s{T0} offen offset:{1024*w} sc1', tag=('r', w))
        for w in range(4):
            g.wait_vm(('r', w))
            g.i(f'ds_write_b32 v{VKK}, v{REC+4*w+1} offset:{512*w}')
            g.i(f'ds_write_b32 v{VKK}, v{REC+4*w+3} offset:{512*w + 64}')
            g.i(f'ds_write2st64_b32 v{VKW}, v{REC+4*w}, v{REC+4*w+2} offset0:{8+2*w} offset1:{8+2*w+1}')
        g.wait_lds()
        for u in range(8):
            g.i(f'ds_read_b64_tr_b16 {vr(KM+4*u,2)}, v{VKR} offset:{256*u}', tag=('km', u))
            g.i(f'ds_read_b64_tr_b16 {vr(KM+4*u+2,2)}, v{VKR} offset:{256*u + 64}', tag=('km', u))
            if u >= 4:
                g.wait_lds(('km', u - 4))
                g.i(f'v_mfma_f32_32x32x16_bf16 {vr(SM,16)}, {vr(KM+4*(u-4),4)}, {vr(Q+4*(u-4),4)}, {vr(SM,16) if u > 4 else 0}')
        for nb in range(4):
            g.i(f'ds_read_b64 {vr(VM+2*nb,2)}, v{VVR} offset:{2048 + 512*nb}', tag='vm')
        for u in range(4, 8):
            g.wait_lds(('km', u))
            g.i(f'v_mfma_f32_32x32x16_bf16 {vr(SM,16)}, {vr(KM+4*u,4)}, {vr(Q+4*u,4)}, {vr(SM,16)}')
        g.i(f'v_max3_f32 v{VMX}, v{VMX}, v{SM}, v{SM+1}')
        g.i(f'v_max3_f32 v{VMX}, v{VMX}, v{SM+2}, v{SM+3}')
        g.i(f'v_mov_b32 v{VT}, v{VMX}')
        g.i(f'v_permlane32_swap_b32 v{VMX}, v{VT}')
        g.i(f'v_max_f32 v{VMX}, v{VMX}, v{VT}')
        g.i(f'v_mul_f32 v{VMX}, s{S_C}, v{VMX}')
        vals = list(range(SX, SX + 20))
        for r in vals:
            g.i(f'v_fma_f32 v{r}, v{r}, s{S_C}, -v{VMX}')
        for r in vals:
            g.i(f'v_exp_f32 v{r}, v{r}')
        for k in range(10):
            g.i(f'v_cvt_pk_bf16_f32 v{PB+k}, v{SX+2*k}, v{SX+2*k+1}')
        g.wait_lds()
        sums = [f'v_add_f32 v{VL}, v{SX}, v{SX+1}'] + [f'v_add_f32 v{VL}, v{VL}, v{r}' for r in vals[2:]] + \
            [f'v_mov_b32 v{VT}, v{VL}', 's_nop 1', f'v_permlane32_swap_b32 v{VL}, v{VT}', f'v_add_f32 v{VL}, v{VL}, v{VT}',
             f'v_rcp_f32 v{VL}, v{VL}']
        for st in range(3):
            for nb in range(4):
                o = vr(O + 16 * nb, 16)
                g.i([f'v_mfma_f32_32x32x16_bf16 {o}, {vr(V+8*nb,4)}, {vr(PB,4)}, 0',
                     f'v_mfma_f32_32x32x16_bf16 {o}, {vr(V+8*nb+4,4)}, {vr(PB+4,4)}, {o}',
                     f'v_mfma_f32_32x32x8_bf16 {o}, {vr(VM+2*nb,2)}, {vr(PB+8,2)}, {o}'][st])
                for _ in range(4):
                    if sums:
                        g.i(sums.pop(0))
        assert not sums
        g.i(f's_add_u32 s{T0}, s{S_BLK}, {OFF_O}')
        g.i(f's_add_u32 s{T1}, s{T0}, 4096')
        for n in range(8):
            o, p = O + 8 * n, KM + 4 * n
            for r in range(8):
                g.i(f'v_mul_f32 v{o+r}, v{o+r}, v{VL}')
            for k in range(4):
                g.i(f'v_cvt_pk_bf16_f32 v{p+k}, v{o+2*k}, v{o+2*k+1}')
            g.i(f'v_permlane32_swap_b32 v{p}, v{p+2}')
            g.i(f'v_permlane32_swap_b32 v{p+1}, v{p+3}')
            g.i(f'buffer_store_dwordx4 {vr(p,4)}, v{V_L16}, {WS}, s{T0 if n < 4 else T1} offen offset:{1024*(n%4)} sc1')
        g.i(f's_lshl_b32 s{T0}, s{S_S}, 6')
        g.i(f's_add_u32 s{T0}, s{T0}, {OFF_FLAG + FL_O}')
        g.i(f'v_mov_b32 v{VF}, 1')
        g.wait_vm()
        g.i('s_mov_b64 exec, 1')
        g.i(f'buffer_atomic_add v{VF}, off, {WS}, s{T0}')
        g.i('s_mov_b64 exec, -1')
        g.i(f's_add_u32 s{S_U}, s{S_U}, {4 * N_ATT}')
        g.i(f's_cmp_lt_u32 s{S_U}, 2048')
        g.settle()
        g.i(f's_cbranch_scc1 {top}')
```

```python
import math, struct
from asmgen import *
from layout import *

S_C2 = 2
S_WS = 4
S_W8 = 8
S_DBG = 12
S_W, S_H, S_STEP = 14, 15, 16
S_MCUR = 17
S_PST = 18
S_KX, S_VX, S_KM = 21, 22, 23
S_RED = 24
S_MS, S_M1 = 28, 30
S_RDY, S_PF = 32, 33
S_M3, S_ONE = 34, 36
S_MP, S_RNEED = 38, 39
S_C = 40
S_TRY = 41
S_T0, S_T1, S_T2, S_T3 = 42, 43, 44, 45
S_TAG, S_MRST = 46, 47
S_PTR = 48
S_FLG, S_XCC = 58, 59
S_ST = 60
S_SYN, S_SYO = 84, 85
S_MG = 86
V_L16, V_IDX, V_ID0, V_ID1, V_WL, V_SW, V_OW, V_RED, V_MST, V_KV = range(10)
V_G2 = 10
V_ACC = 14
V_X0 = 30
V_T0, V_T1 = 34, 35
V_X1 = 36
V_KXD = 40
V_AR = 48
V_STG = 60
V_PUB = 76
L_M = 0
L_QK = 9216
L_SM = 13312
L_EL = 15360
L_W = 16384
LDS_BYTES = 163840
SPIN_MAX = 300000
HS = 9216
WS = f's[{S_WS}:{S_WS+3}]'


def f2u(x):
    return struct.unpack('<I', struct.pack('<f', x))[0]


CHUNKS = [('q', t) for t in range(9)] + [('k', t) for t in range(9)] + [('v', t) for t in range(9)] + \
         [('o', u, p) for p in range(4) for u in range(2)] + [('l',)]
LDS_PAIRS = [('k', 1), ('k', 3), ('k', 5), ('k', 7), ('v', 2), ('o', 0, 0), ('o', 1, 1), ('o', 1, 2), ('o', 1, 3)]
STG_NEXT = {LDS_PAIRS[i]: LDS_PAIRS[i + 1] for i in (0, 1, 2, 3, 5, 6, 7)}
REG_PAIRS = [p for p in CHUNKS if p not in LDS_PAIRS]
SEQ = REG_PAIRS + LDS_PAIRS
LDS_BLOCK = {p: SEQ.index(p) % 9 for p in LDS_PAIRS}
REGBASE = {}
for _n, _p in enumerate(REG_PAIRS):
    for _x in range(2):
        _s = 2 * _n + _x
        REGBASE[(_p, _x)] = ('a', 8 * _s) if _s < 32 else ('v', 80 + 8 * (_s - 32))
assert len(REG_PAIRS) == 27 and len(SEQ) == 36


def wfrag(p, x, off=0, n=8):
    k, b = REGBASE[(p, x)]
    return (ar if k == 'a' else vr)(b + off, n)


class Chain:
    def __init__(self, g, diag=0, standalone=True, opt=()):
        self.g = g
        self.diag = diag
        self.standalone = standalone
        self.opt = set(opt)
        self.nst = 0
        self.names = []
        self.staged = [None] * 4
        self.ring = [None] * 3
        self.mp, self.nb, self.io, self.bp = 13, 5, 9, 0
        self.dr, self.dm, self.dq = [None, None], [0, 0, 0, 0], None
        self.sync = None
        self.wake = 0
        self.after_wait = lambda: None

    def stamp(self, name='', lvl=0):
        if not self.diag or (lvl and lvl != self.diag):
            return
        op = 's_memrealtime' if self.diag == 3 else 's_memtime'
        self.g.i(f'{op} s[{S_ST + 2*self.nst}:{S_ST + 2*self.nst + 1}]')
        self.names.append(name)
        self.nst += 1
        assert self.nst <= 12

    def dump_stamps(self):
        if not self.diag:
            return
        g = self.g
        g.wait_lds()
        for k in range(self.nst):
            g.i(f'v_writelane_b32 v{V_T0}, s{S_ST + 2*k}, {k}')
        g.i(f'v_writelane_b32 v{V_T0}, s100, 29')
        g.i(f'v_writelane_b32 v{V_T0}, s98, 30')
        g.i(f'v_writelane_b32 v{V_T0}, s99, 31')
        g.i(f's_lshl_b32 s{S_T0}, s{S_STEP}, 5')
        g.i(f's_add_u32 s{S_T0}, s{S_T0}, s{S_H}')
        g.i(f's_lshl_b32 s{S_T0}, s{S_T0}, 2')
        g.i(f's_add_u32 s{S_T0}, s{S_T0}, s{S_W}')
        g.i(f's_lshl_b32 s{S_T0}, s{S_T0}, 7')
        g.i(f's_add_u32 s{S_T0}, s{S_T0}, {OFF_DIAG - 32*4*128}')
        g.i(f'v_lshrrev_b32 v{V_T1}, 2, v{V_L16}')
        g.i(f's_mov_b64 exec, 0xffffffff')
        g.i(f'buffer_store_dword v{V_T0}, v{V_T1}, {WS}, s{S_T0} offen')
        g.i(f's_mov_b64 exec, -1')

    def set_srd(self, ptr, nbytes):
        g = self.g
        g.i(f's_mov_b32 s{S_W8}, s{ptr}')
        g.i(f's_mov_b32 s{S_W8+1}, s{ptr+1}')
        g.i(f's_mov_b32 s{S_W8+2}, {nbytes}')
        g.i(f's_mov_b32 s{S_W8+3}, 0x20000')

    def prologue(self):
        g = self.g
        L, I_, G_, A, B, C, D, E = range(14, 22)
        LA, LB, LO, LL, TR0, TR1, TQ0, TQ1, TL0, TL1, D0, DS = range(22, 34)
        g.i(f'v_mov_b32 v{L}, v0')
        g.i(f'v_and_b32 v{I_}, 15, v{L}')
        g.i(f'v_lshrrev_b32 v{G_}, 4, v{L}')
        g.i(f'v_lshrrev_b32 v{A}, 1, v{G_}')
        g.i(f'v_and_b32 v{B}, 1, v{G_}')
        g.i(f'v_lshlrev_b32 v{C}, 2, v{G_}')
        g.i(f'v_xor_b32 v{C}, v{C}, v{I_}')
        g.i(f'v_lshlrev_b32 v{C}, 4, v{C}')
        g.i(f'v_lshlrev_b32 v{LA}, 1, v{A}')
        g.i(f'v_lshl_add_u32 v{LA}, v{B}, 4, v{LA}')
        g.i(f'v_lshl_add_u32 v{LA}, v{LA}, 13, v{C}')
        g.i(f'v_lshl_add_u32 v{D}, v{A}, 3, v{B}')
        g.i(f'v_lshl_add_u32 v{LB}, v{D}, 13, v{C}')
        g.i(f'v_mul_u32_u24 v{LO}, 1152, v{D}')
        g.i(f'v_add_u32 v{LO}, v{LO}, v{C}')
        g.i(f's_lshl_b32 s{S_T2}, s{S_H}, 8')
        g.i(f's_lshl_b32 s{S_T0}, s{S_W}, 15')
        g.i(f's_add_u32 s{S_MG}, s{S_T2}, s{S_T0}')
        g.i(f's_lshl_b32 s{S_T0}, s{S_W}, 17')
        g.i(f's_add_u32 s{S_T2}, s{S_T2}, s{S_T0}')
        g.i(f's_lshl_b32 s{S_T3}, s{S_H}, 3')
        g.i(f's_add_u32 s{S_T3}, s{S_T3}, s{S_W}')
        g.i(f's_mul_i32 s{S_T3}, s{S_T3}, {16*1152}')
        g.i(f's_mul_i32 s{S_PF}, s{S_W}, 36864')
        g.i(f's_add_u32 s{S_PF}, s{S_PF}, {L_W}')
        ptr = {'q': S_PTR + 2, 'k': S_PTR + 4, 'v': S_PTR + 6, 'o': S_PTR + 8, 'l': S_PTR + 8}
        cur = [None]

        def issue(n):
            p = SEQ[n]
            if cur[0] != ptr[p[0]]:
                self.set_srd(ptr[p[0]], 4718592)
                cur[0] = ptr[p[0]]
            for q in range(4):
                hh, x1 = q >> 1, q & 1
                if p[0] == 'o':
                    uni, base, va = (64 * p[1] + 2 * q) * 1152 + 256 * p[2], S_T3, LO
                elif p[0] == 'l':
                    uni, base, va = (64 * hh + 4 * x1) * 1152 + 1024, S_T3, LL
                elif p[1] == 4:
                    uni, base, va = (512 + 2 * q) * 8192, S_T2, LB
                else:
                    qd, w = (0, p[1]) if p[1] < 4 else (1, p[1] - 5)
                    uni, base, va = (256 * qd + 32 * w + 128 * x1 + hh) * 8192, S_MG, LA
                g.i(f's_add_u32 m0, s{S_PF}, {(n % 9) * 4096 + q * 1024}')
                g.i(f's_add_u32 s{S_T0}, s{base}, {uni}')
                g.i(f'buffer_load_dwordx4 v{va}, s[{S_W8}:{S_W8+3}], s{S_T0} offen lds', tag=('w', n))
        if 'nocode' not in self.opt:
            g.i('s_getpc_b64 s[70:71]')
            g.i(f'v_lshlrev_b32 v{E}, 7, v{L}')
            g.i(f's_lshl_b32 s{S_T0}, s{S_W}, 13')
            g.i(f'v_add_u32 v{E}, s{S_T0}, v{E}')
            g.i(f'global_load_dword v{V_AR+4}, v{E}, s[70:71]')
        g.vm_q = []
        for n in range(8):
            issue(n)
        g.i(f'v_lshlrev_b32 v{V_L16}, 4, v{L}')
        g.i(f'v_bfe_u32 v{A}, v{L}, 4, 1')
        g.i(f'v_bfe_u32 v{B}, v{L}, 3, 1')
        g.i(f'v_lshl_add_u32 v{A}, v{A}, 3, v{B}')
        g.i(f'v_lshrrev_b32 v{B}, 5, v{L}')
        g.i(f'v_lshl_add_u32 v{A}, v{B}, 1, v{A}')
        g.i(f'v_mul_u32_u24 v{LL}, 1152, v{A}')
        g.i(f'v_and_b32 v{B}, 7, v{L}')
        g.i(f'v_lshl_add_u32 v{LL}, v{B}, 4, v{LL}')
        g.i(f'v_lshrrev_b32 v{A}, 1, v{G_}')
        g.i(f'v_mul_u32_u24 v{E}, 36864, v{A}')
        g.i(f'v_add_u32 v{E}, {L_W}, v{E}')
        g.i(f'v_and_b32 v{A}, 1, v{G_}')
        g.i(f'v_lshrrev_b32 v{B}, 2, v{I_}')
        g.i(f'v_lshl_add_u32 v{A}, v{A}, 3, v{B}')
        g.i(f'v_and_b32 v{C}, 3, v{I_}')
        g.i(f'v_lshl_add_u32 v{TL0}, v{A}, 7, v{E}')
        g.i(f'v_lshl_add_u32 v{TL0}, v{C}, 3, v{TL0}')
        g.i(f's_lshl_b32 s{S_T0}, s{S_W}, 5')
        g.i(f'v_add_u32 v{TL0}, s{S_T0}, v{TL0}')
        g.i(f'v_lshl_add_u32 v{TR0}, v{A}, 8, v{E}')
        g.i(f'v_xor_b32 v{D}, s{S_W}, v{B}')
        g.i(f'v_lshl_add_u32 v{TR0}, v{D}, 6, v{TR0}')
        g.i(f'v_lshl_add_u32 v{TQ0}, v{C}, 4, v{TR0}')
        g.i(f'v_lshl_add_u32 v{TR0}, v{C}, 3, v{TR0}')
        for r in (TR0, TQ0, TL0):
            g.i(f'v_add_u32 v{r+1}, {2*36864}, v{r}')
        g.i(f'v_add_u32 v{V_WL}, s{S_PF}, v{V_L16}')
        g.i(f'v_bfe_u32 v{A}, v{I_}, 1, 1')
        g.i(f'v_mul_u32_u24 v{D}, 0xaaaa, v{A}')
        g.i(f'v_add_u32 v{V_IDX}, 0x4444, v{D}')
        g.i(f'v_and_b32 v{C}, 1, v{I_}')
        g.i(f'v_lshlrev_b32 v{D}, 4, v{C}')
        g.i(f'v_mov_b32 v{E}, 0x3f80')
        g.i(f'v_lshlrev_b32 v{D}, v{D}, v{E}')
        g.i(f'v_cmp_eq_u32 vcc, v{B}, v{G_}')
        g.i(f'v_cndmask_b32 v{D}, 0, v{D}, vcc')
        g.i(f'v_cmp_eq_u32 vcc, 0, v{A}')
        g.i(f'v_cndmask_b32 v{V_ID0}, 0, v{D}, vcc')
        g.i(f'v_cndmask_b32 v{V_ID1}, v{D}, 0, vcc')
        g.i(f'v_lshl_add_u32 v{D}, v{B}, 1, v{C}')
        g.i(f'v_lshlrev_b32 v{V_SW}, 8, v{G_}')
        g.i(f'v_lshl_add_u32 v{V_SW}, v{D}, 4, v{V_SW}')
        g.i(f'v_lshl_add_u32 v{V_SW}, v{A}, 7, v{V_SW}')
        g.i(f'v_lshrrev_b32 v{D}, 1, v{I_}')
        g.i(f'v_lshlrev_b32 v{V_OW}, 6, v{D}')
        g.i(f'v_lshl_add_u32 v{V_OW}, v{C}, 4, v{V_OW}')
        g.i(f'v_lshrrev_b32 v{D}, 1, v{G_}')
        g.i(f'v_lshl_add_u32 v{V_OW}, v{D}, 5, v{V_OW}')
        g.i(f'v_and_b32 v{D}, 1, v{G_}')
        g.i(f'v_lshl_add_u32 v{V_OW}, v{D}, 3, v{V_OW}')
        g.i(f'v_lshlrev_b32 v{V_KV}, 9, v{G_}')
        g.i(f'v_lshl_add_u32 v{V_KV}, v{I_}, 4, v{V_KV}')
        self.scalar_consts()
        lq, lx, l3 = g.newlabel('rq'), g.newlabel('rx'), g.newlabel('r3')
        g.i(f's_lshr_b32 s{S_T0}, s{S_H}, 3')
        g.i(f's_bfe_u32 s{S_T1}, s{S_H}, 0x20001')
        g.i(f'v_mul_u32_u24 v{D0}, 576, v{D}')
        g.i(f's_mul_i32 s{S_TRY}, s{S_T1}, 1152')
        g.i(f'v_add_u32 v{D0}, s{S_TRY}, v{D0}')
        g.i(f's_cmp_lt_u32 s{S_W}, 2')
        g.i(f's_cbranch_scc1 {lq}')
        g.i(f's_cmp_eq_u32 s{S_W}, 3')
        g.i(f's_cbranch_scc1 {l3}')
        g.i(f'v_lshrrev_b32 v{B}, 1, v{L}')
        g.i(f'v_mul_u32_u24 v{V_RED}, {HS}, v{B}')
        g.i(f'v_lshl_add_u32 v{V_RED}, v{C}, 4, v{V_RED}')
        g.i(f's_lshl_b32 s{S_TRY}, s{S_H}, 5')
        g.i(f'v_add_u32 v{V_RED}, s{S_TRY}, v{V_RED}')
        g.i(f'v_add_u32 v{V_RED}, 8192, v{V_RED}')
        g.i(f'v_lshlrev_b32 v{V_MST}, 4, v{D}')
        g.i(f'v_lshl_add_u32 v{V_MST}, v{C}, 3, v{V_MST}')
        g.i(f'v_add_u32 v{V_MST}, s{S_TRY}, v{V_MST}')
        g.i(f'v_add_u32 v{V_MST}, 4096, v{V_MST}')
        g.i(f's_lshl_b32 s{S_T0}, s{S_T0}, 4')
        g.i(f's_and_b32 s{S_T1}, s{S_H}, 1')
        g.i(f's_lshl_b32 s{S_T1}, s{S_T1}, 3')
        g.i(f's_add_u32 s{S_T0}, s{S_T0}, s{S_T1}')
        g.i(f's_add_u32 s{S_T0}, s{S_T0}, 512')
        g.i(f'v_lshl_add_u32 v{D0}, v{C}, 2, v{D0}')
        g.i(f'v_add_lshl_u32 v{D0}, v{D0}, s{S_T0}, 1')
        g.i(f's_mov_b32 s{S_MS}, 0x00030003')
        g.i(f's_mov_b32 s{S_T0}, 2')
        g.i(f's_mov_b32 s{S_T1}, 4')
        g.i(f's_branch {lx}')
        g.label(l3)
        g.i(f'v_lshlrev_b32 v{V_RED}, 7, v{L}')
        g.i(f'v_mov_b32 v{V_MST}, 0')
        g.i(f's_branch {lx}')
        g.label(lq)
        g.i(f'v_lshrrev_b32 v{B}, 3, v{L}')
        g.i(f'v_mul_u32_u24 v{V_RED}, {HS}, v{B}')
        g.i(f'v_and_b32 v{B}, 7, v{L}')
        g.i(f'v_lshl_add_u32 v{V_RED}, v{B}, 4, v{V_RED}')
        g.i(f's_lshl_b32 s{S_TRY}, s{S_W}, 5')
        g.i(f's_add_u32 s{S_TRY}, s{S_TRY}, s{S_H}')
        g.i(f's_lshl_b32 s{S_TRY}, s{S_TRY}, 7')
        g.i(f'v_add_u32 v{V_RED}, s{S_TRY}, v{V_RED}')
        g.i(f'v_bfe_u32 v{E}, v{L}, 2, 1')
        g.i(f'v_lshlrev_b32 v{V_MST}, 8, v{E}')
        g.i(f'v_lshl_add_u32 v{V_MST}, v{A}, 5, v{V_MST}')
        g.i(f'v_lshl_add_u32 v{V_MST}, v{D}, 4, v{V_MST}')
        g.i(f'v_lshl_add_u32 v{V_MST}, v{C}, 3, v{V_MST}')
        g.i(f's_mul_i32 s{S_TRY}, s{S_W}, 5')
        g.i(f's_add_u32 s{S_TRY}, s{S_TRY}, s{S_T0}')
        g.i(f's_lshl_b32 s{S_TRY}, s{S_TRY}, 10')
        g.i(f's_lshl_b32 s{S_T1}, s{S_T1}, 6')
        g.i(f's_add_u32 s{S_TRY}, s{S_TRY}, s{S_T1}')
        g.i(f's_and_b32 s{S_T1}, s{S_H}, 1')
        g.i(f's_lshl_b32 s{S_RNEED}, s{S_T1}, 9')
        g.i(f's_add_u32 s{S_TRY}, s{S_TRY}, s{S_RNEED}')
        g.i(f'v_add_u32 v{V_MST}, s{S_TRY}, v{V_MST}')
        g.i(f's_lshl_b32 s{S_T0}, s{S_T0}, 5')
        g.i(f's_lshl_b32 s{S_T1}, s{S_T1}, 3')
        g.i(f's_add_u32 s{S_T0}, s{S_T0}, s{S_T1}')
        g.i(f's_lshl_b32 s{S_T1}, s{S_W}, 8')
        g.i(f's_add_u32 s{S_T0}, s{S_T0}, s{S_T1}')
        g.i(f'v_add_u32 v{D0}, v{D0}, v{B}')
        g.i(f'v_add_lshl_u32 v{D0}, v{D0}, s{S_T0}, 1')
        g.i(f's_mov_b32 s{S_T0}, 32')
        g.i(f's_mov_b32 s{S_T1}, 256')
        g.label(lx)
        P0 = 68
        g.i(f's_mov_b32 s{P0}, s{S_PTR}')
        g.i(f's_mov_b32 s{P0+1}, s{S_PTR+1}')
        g.i(f's_mov_b32 s{P0+2}, 9216')
        g.i(f's_mov_b32 s{P0+3}, 0x20000')
        for k in range(4):
            g.i(f'v_mov_b32 v{V_KXD+k}, 0')
        g.i(f'v_mov_b64 {vr(V_PUB,2)}, -1')
        g.i(f'v_mov_b64 {vr(V_PUB+2,2)}, 0')
        g.i(f's_add_u32 s{S_TRY}, s{S_T0}, s{S_T1}')
        sk = g.newlabel('ix')
        g.i(f's_cmp_eq_u32 s{S_W}, 3')
        g.i(f's_cbranch_scc1 {sk}')
        g.i(f'buffer_load_ushort v{V_AR}, v{D0}, s[{P0}:{P0+3}], 0 offen')
        g.i(f'buffer_load_ushort v{V_AR+1}, v{D0}, s[{P0}:{P0+3}], s{S_T0} offen')
        g.i(f'buffer_load_ushort v{V_AR+2}, v{D0}, s[{P0}:{P0+3}], s{S_T1} offen')
        g.i(f'buffer_load_ushort v{V_AR+3}, v{D0}, s[{P0}:{P0+3}], s{S_TRY} offen')
        g.i(f's_mov_b64 exec, s[{S_MS}:{S_MS+1}]')
        for k in range(1, 4):
            g.i(f's_mov_b32 s{S_T0}, {OFF_MB + 16384 * k}')
            g.i(f'buffer_store_dwordx2 {vr(V_PUB,2)}, v{V_MST}, {WS}, s{S_T0} offen sc1')
        g.i('s_mov_b64 exec, -1')
        g.label(sk)
        for j in range(3):
            if j == 2:
                g.i(f's_mov_b64 exec, 0xffff')
            g.i(f'buffer_store_dwordx4 {vr(V_KXD,4)}, v{V_L16}, {WS}, s{S_PST+j} offen sc1')
            g.i(f's_xor_b32 s{S_T0}, s{S_PST+j}, 0x100000')
            g.i(f'buffer_store_dwordx4 {vr(V_KXD,4)}, v{V_L16}, {WS}, s{S_T0} offen sc1')
        g.i('s_mov_b64 exec, 1')
        g.i(f'buffer_store_dword v{V_KXD}, off, {WS}, s{S_SYO} sc1')
        g.i('s_mov_b64 exec, -1')
        g.vm_q = [t for t in g.vm_q if t]
        for n, p in enumerate(SEQ):
            g.wait_vm(('w', n))
            g.i('s_barrier')
            if n + 8 < len(SEQ):
                issue(n + 8)
            if n == 9:
                s2 = g.newlabel('m0')
                g.i(f's_cmp_eq_u32 s{S_W}, 3')
                g.i(f's_cbranch_scc1 {s2}')
                g.i(f'v_lshl_or_b32 v{V_T0}, v{V_AR+1}, 16, v{V_AR}')
                g.i(f'v_lshl_or_b32 v{V_T1}, v{V_AR+3}, 16, v{V_AR+2}')
                g.i(f'v_min_u32 v{V_T0}, -2, v{V_T0}')
                g.i(f's_mov_b64 exec, s[{S_MS}:{S_MS+1}]')
                g.i(f'buffer_store_dwordx2 {vr(V_T0,2)}, v{V_MST}, {WS}, s{S_MCUR} offen sc1')
                g.i('s_mov_b64 exec, -1')
                g.label(s2)
                g.vm_q = [t for t in g.vm_q if t]
            if n == 19:
                s2 = g.newlabel('si')
                g.i(f's_cmp_lg_u32 s{S_W}, 0')
                g.i(f's_cbranch_scc1 {s2}')
                if self.standalone:
                    g.i(f's_mov_b32 s{S_T0}, 1')
                else:
                    g.i(f's_cmp_eq_u32 s{S_XCC}, 0')
                    g.i(f's_cselect_b32 s{S_T0}, 1, 0x10001')
                g.i('s_mov_b64 exec, 1')
                g.i(f'v_mov_b32 v{V_T0}, {DBG_INIT}')
                g.i(f'v_mov_b32 v{V_T1}, s{S_T0}')
                g.i(f'global_atomic_add v{V_T0}, v{V_T1}, s[{S_DBG}:{S_DBG+1}]')
                g.i('s_mov_b64 exec, -1')
                g.label(s2)
                g.vm_q = [t for t in g.vm_q if t]
            blk = (n % 9) * 4096
            inlds = p in LDS_PAIRS
            for x in range(2):
                for q in range(4):
                    dst = vr(V_STG + 8 * x + 2 * q, 2) if inlds else wfrag(p, x, 2 * q, 2)
                    if p[0] in 'qk':
                        va, off = TQ0, 1024 * (q & 1) + 8 * x
                    elif p[0] == 'l':
                        va, off = TL0, 512 * (q & 1) + 2048 * x
                    else:
                        va, off = TR0, 1024 * (q & 1) + 32 * x
                    g.i(f'ds_read_b64_tr_b16 {dst}, v{va + (q >> 1)} offset:{blk + off}')
            g.wait_lds()
            if inlds:
                g.i('s_barrier')
                for y in range(4):
                    g.i(f'ds_write_b128 v{V_WL}, {vr(V_STG + 4 * y, 4)} offset:{blk + y * 1024}')
                g.wait_lds()

    def scalar_consts(self):
        g = self.g
        g.i(f's_mov_b32 s{S_STEP}, 0')
        g.i(f's_mov_b32 s{S_MCUR}, {OFF_MB}')
        g.i(f's_mov_b32 s{S_MRST}, {OFF_MB + 3 * 16384}')
        g.i(f's_mov_b32 s{S_TAG}, 1')
        g.i(f's_mov_b32 s{S_SYN}, {OFF_SYNC}')
        g.i(f's_lshl_b32 s{S_SYO}, s{S_H}, 4')
        g.i(f's_add_u32 s{S_SYO}, s{S_SYO}, {OFF_SYNC}')
        g.i(f's_lshl_b32 s{S_FLG}, s{S_H}, 2')
        g.i(f's_add_u32 s{S_RDY}, s{S_FLG}, {OFF_FLAG + FL_P1}')
        g.i(f's_add_u32 s{S_FLG}, s{S_FLG}, {OFF_FLAG + FL_KM - 256}')
        g.i(f's_mul_i32 s{S_T0}, s{S_H}, {HS}')
        g.i(f's_lshl_b32 s{S_T1}, s{S_W}, 8')
        g.i(f's_add_u32 s{S_PST+2}, s{S_T0}, s{S_T1}')
        g.i(f's_add_u32 s{S_PST+2}, s{S_PST+2}, {OFF_PART + 8192}')
        g.i(f's_lshl_b32 s{S_T1}, s{S_W}, 10')
        g.i(f's_add_u32 s{S_T0}, s{S_T0}, s{S_T1}')
        g.i(f's_add_u32 s{S_PST}, s{S_T0}, {OFF_PART}')
        g.i(f's_add_u32 s{S_PST+1}, s{S_T0}, {OFF_PART + 4096}')
        for n in range(4):
            g.i(f's_mov_b32 s{S_RED + n}, {OFF_PART + n * 8 * HS}')
        g.i(f's_mov_b32 s{S_MS}, 0x00ff00ff')
        g.i(f's_mov_b32 s{S_MS+1}, 0')
        g.i(f's_mov_b32 s{S_M1}, 0x11111111')
        g.i(f's_mov_b32 s{S_M1+1}, 0x11111111')
        g.i(f's_lshl_b32 s{S_T0}, s{S_H}, 12')
        g.i(f's_add_u32 s{S_T0}, s{S_T0}, s{S_T1}')
        g.i(f's_add_u32 s{S_KM}, s{S_T0}, {OFF_KM - 32 * 4096}')
        g.i(f's_lshl_b32 s{S_T0}, s{S_T0}, 1')
        g.i(f's_add_u32 s{S_KX}, s{S_T0}, {OFF_KX}')
        g.i(f's_add_u32 s{S_VX}, s{S_T0}, {OFF_VX}')
        g.i(f's_mov_b32 s{S_M3}, 0x33333333')
        g.i(f's_mov_b32 s{S_M3+1}, 0x33333333')
        g.i(f's_mov_b32 s{S_ONE}, 0x3f803f80')
        g.i(f's_mov_b32 s{S_ONE+1}, 0x3f803f80')
        g.i(f's_mov_b32 s{S_C}, {f2u(128 ** -0.5 * math.log2(math.e)):#x}')
        g.i(f's_mov_b32 s{S_C2}, s{S_C}')
        g.i(f's_mov_b32 s{S_C2+1}, s{S_C}')

    def wait_word(self, off, val, bail, mask=None):
        g = self.g
        lp, ok = g.newlabel('ww'), g.newlabel('ww')
        g.i(f's_mov_b32 s{S_TRY}, 0')
        g.i(f'v_mov_b32 v{V_T0}, {off}')
        g.label(lp)
        g.i(f'global_load_dword v{V_T1}, v{V_T0}, s[{S_DBG}:{S_DBG+1}] sc1')
        g.wait_vm()
        g.i(f'v_readfirstlane_b32 s{S_T1}, v{V_T1}')
        g.i(f's_and_b32 s{S_T0}, s{S_T1}, {mask if mask else -1}')
        g.i(f's_cmp_ge_u32 s{S_T0}, {val}')
        g.i(f's_cbranch_scc1 {ok}')
        g.i('s_sleep 2')
        g.i(f's_add_u32 s{S_TRY}, s{S_TRY}, 1')
        g.i(f's_cmp_lt_u32 s{S_TRY}, {SPIN_MAX}')
        g.i(f's_cbranch_scc1 {lp}')
        g.i(f's_branch {bail}')
        g.label(ok)

    def spin_ready(self, soff, sneed, bail):
        g = self.g
        lp, ok = g.newlabel('rd'), g.newlabel('rd')
        g.i(f's_mov_b32 s{S_TRY}, 0')
        g.label(lp)
        g.i(f'buffer_load_dword v{V_MST}, off, {WS}, s{soff} sc1')
        g.wait_vm()
        g.i(f'v_readfirstlane_b32 s{S_T0}, v{V_MST}')
        g.i(f's_cmp_ge_u32 s{S_T0}, {sneed}')
        g.i(f's_cbranch_scc1 {ok}')
        g.i('s_sleep 4')
        g.i(f's_add_u32 s{S_TRY}, s{S_TRY}, 1')
        g.i(f's_cmp_lt_u32 s{S_TRY}, {SPIN_MAX}')
        g.i(f's_cbranch_scc1 {lp}')
        g.i(f's_branch {bail}')
        g.label(ok)

    def start(self, bail, done):
        g = self.g
        self.wait_word(DBG_INIT, 32, bail, 0xffff)
        g.i(f's_lshr_b32 s{S_XCC}, s{S_T1}, 16')
        g.i(f's_mov_b32 s{S_RNEED}, 2')
        g.i(f's_mov_b32 s{S_PF}, 0')
        if not self.standalone:
            sk = g.newlabel('st')
            g.i(f's_cmp_lg_u32 s{S_W}, 3')
            g.i(f's_cbranch_scc1 {sk}')
            self.wait_word(DBG_LNOK, 1, bail)
            for r in range(3):
                g.i(f's_add_u32 s{S_T1}, s{S_RDY}, {512 * r}')
                self.spin_ready(S_T1, 1, bail)
            g.label(sk)
        self.after_wait()
        if self.standalone:
            self.loops(bail, done, False)
            return
        slow = g.newlabel('slow')
        g.i(f's_cmp_lg_u32 s{S_XCC}, 0')
        g.i(f's_cbranch_scc1 {slow}')
        self.loops(bail, done, False)
        g.label(slow)
        self.loops(bail, done, True)

    def loops(self, bail, done, slow):
        g = self.g
        lab = [g.newlabel('role') for _ in range(4)]
        for w in range(1, 4):
            g.i(f's_cmp_eq_u32 s{S_W}, {w}')
            g.i(f's_cbranch_scc1 {lab[w]}')
        for w in range(4):
            g.label(lab[w])
            self.loop(bail, done, w, slow)

    def stage_list(self, p):
        def mk(y):
            def f():
                self.g.i(f'ds_read_b128 {vr(V_STG + 4 * y, 4)}, v{V_WL} offset:{LDS_BLOCK[p] * 4096 + y * 1024}',
                         tag=('stg', p, y >> 1))
                self.staged[y] = p
            f.stg = True
            return f
        return [mk(y) for y in range(4)]

    def aread(self, t, ph):
        self.ring[t % 3] = t
        self.g.i(f'ds_read_b128 {vr(V_AR + 4 * (t % 3), 4)}, v{V_L16} offset:{L_M + t * 1024}', tag=('a', ph, t))

    def flag_store(self):
        g = self.g
        g.i('s_mov_b64 exec, 1')
        g.i(f'buffer_store_dword v{V_IDX}, off, {WS}, s{S_FLG} sc1')
        g.i('s_mov_b64 exec, -1')

    def slow_io(self):
        g = self.g
        L = [self.flag_store] if 'plainpub' not in self.opt else []
        if 'nopf' not in self.opt:
            def pf(base):
                def f():
                    g.i(f's_add_u32 s{S_T0}, s{base}, {2*32*8192 - 3*2048}')
                    g.i(f'buffer_load_dword v{V_MST}, v{V_RED}, {WS}, s{S_T0} offen sc1')
                return f
            L += [pf(S_KX), pf(S_VX)]
        if not self.standalone:
            L.append(f'buffer_load_dword v{V_MST}, off, {WS}, s{S_RDY} sc1')
        return L

    def advance(self):
        g = self.g
        for j in range(3):
            g.i(f's_xor_b32 s{S_PST+j}, s{S_PST+j}, 0x100000')
        g.i(f's_add_u32 s{S_MCUR}, s{S_MCUR}, 0x4000')
        g.i(f's_and_b32 s{S_MCUR}, s{S_MCUR}, 0xfffeffff')
        if 'fixkv' not in self.opt:
            g.i(f's_add_u32 s{S_KX}, s{S_KX}, {32*8192}')
            g.i(f's_add_u32 s{S_VX}, s{S_VX}, {32*8192}')
        if 'plainpub' not in self.opt:
            g.i(f's_add_u32 s{S_KM}, s{S_KM}, {32*4096}')
        g.i(f's_add_u32 s{S_FLG}, s{S_FLG}, 128')

    def advance2(self, role):
        g = self.g
        if role < 3:
            for n in range(4 if role < 2 else 1):
                g.i(f's_xor_b32 s{S_RED+n}, s{S_RED+n}, 0x100000')
            g.i(f's_add_u32 s{S_MRST}, s{S_MRST}, 0x4000')
            g.i(f's_and_b32 s{S_MRST}, s{S_MRST}, 0xfffeffff')
        g.i(f's_and_b32 s{S_T0}, s{S_STEP}, 1')
        g.i(f's_xor_b32 s{S_TAG}, s{S_TAG}, s{S_T0}')
        g.i(f's_add_u32 s{S_STEP}, s{S_STEP}, 1')

    def finish(self, fin):
        g = self.g
        g.i(f's_add_u32 s{S_KM}, s{S_KM}, {32*4096}')
        g.i(f'buffer_store_dwordx4 {vr(V_PUB,4)}, v{V_L16}, {WS}, s{S_KM} offen sc1')
        g.i('s_waitcnt vmcnt(0) lgkmcnt(0)')
        g.i('s_barrier')
        g.i(f's_cmp_lg_u32 s{S_W}, 3')
        g.i(f's_cbranch_scc1 {fin}')
        g.i(f's_add_u32 s{S_FLG}, s{S_FLG}, 128')
        self.flag_store()
        g.i(f's_add_u32 s{S_FLG}, s{S_FLG}, 128')
        self.flag_store()

    def loop(self, bail, done, role, slow):
        g = self.g
        opt = self.opt
        XS = 'sc1' if slow else ''
        top = g.newlabel('step')
        Q0, K0, Q1, K1 = [V_ACC + 4 * k for k in range(4)]
        VA0, VA1 = Q0, K0
        fill, mq, cold = [], [], []

        def run(f):
            g.i(f) if isinstance(f, str) else f()

        def pop(n=1, m=1):
            for _ in range(m):
                if mq:
                    run(mq.pop(0))
            for _ in range(n):
                if fill:
                    run(fill.pop(0))

        def smf(acc, a, p, x, atag=None):
            if p[0] in 'qkv':
                assert self.ring[(a - V_AR) // 4] == p[1], (p, self.ring)
            if p in LDS_PAIRS:
                assert self.staged[2 * x] == p and self.staged[2 * x + 1] == p, (p, x, self.staged)
                g.wait_lds2(atag, ('stg', p, x))
                b = vr(V_STG + 8 * x, 8)
            else:
                g.wait_lds2(atag)
                b = wfrag(p, x)
            g.i(f'v_smfmac_f32_16x16x64_bf16 {vr(acc,4)}, {vr(a,4)}, {b}, v{V_IDX}')
            if p in STG_NEXT:
                k = 0
                while k < len(mq) and getattr(mq[k], 'stg', False):
                    k += 1
                mq[k:k] = self.stage_list(STG_NEXT[p])[2 * x:2 * x + 2]

        def ard(t, ph):
            f = lambda: self.aread(t, ph)
            f.stg = True
            return f

        def count_try():
            g.i(f's_add_u32 s{S_TRY}, s{S_TRY}, 1')
            g.i(f's_cmp_gt_u32 s{S_TRY}, {SPIN_MAX}')
            g.i(f's_cbranch_scc1 {bail}')

        def note(sdiag, sstat):
            if self.diag:
                g.i(f's_mov_b32 s{sdiag}, s{S_TRY}')
            if 'stat' in opt:
                g.i(f's_add_u32 s{sstat}, s{sstat}, s{S_TRY}')

        def attempt(load, check, sets, sdiag, sstat, drain=False):
            again, ok = g.newlabel('pp'), g.newlabel('ok')
            check(sets[0], 'A')
            g.i(f's_cbranch_vccnz {again}')
            g.label(ok)
            note(sdiag, sstat)
            nb = len([t for t in g.vm_q if t and t[0] == 'B'])

            def retry():
                g.label(again)
                g.vm_q = [('B', k) for k in range(nb)]
                load(sets[0], 'A')
                count_try()
                if len(sets) > 1:
                    check(sets[1], 'B')
                    g.i(f's_cbranch_vccz {ok}')
                    load(sets[1], 'B')
                    g.i(f's_add_u32 s{S_TRY}, s{S_TRY}, 1')
                check(sets[0], 'A')
                g.i(f's_cbranch_vccnz {again}')
                if drain:
                    g.wait_lds()
                g.i(f's_branch {ok}')
                g.forget()
            cold.append(retry)

        FR = {0: (0, 1), 3: (2, 3), 2: (4,), 1: ()}[role]

        def mload(S, tg):
            for k, t in enumerate(FR):
                g.i(f'buffer_load_dwordx4 {vr(S+4*k,4)}, v{V_L16}, {WS}, s{S_MP if t == 4 else S_MCUR} offen '
                    f'offset:{1024*(t % 4)} sc1', tag=(tg, k))

        def mcheck(S, tg):
            for k, t in enumerate(FR):
                g.wait_vm((tg, k))
                g.i(f'ds_write_b128 v{V_L16}, {vr(S+4*k,4)} offset:{L_M + 1024*t}')
                if k == 0:
                    g.i(f'v_max_u32 v{V_T0}, v{S}, v{S+2}')
                else:
                    g.i(f'v_max3_u32 v{V_T0}, v{V_T0}, v{S+4}, v{S+6}')
            g.i(f'v_cmp_eq_u32 vcc, -1, v{V_T0}')

        def g2load(S=None, tg='A'):
            g.i(f'buffer_load_dwordx4 {vr(V_G2,4)}, v{V_L16}, {WS}, s{S_MG} offen offset:{1024*role} sc1', tag=(tg, 0))

        def g2check(S=None, tg='A'):
            g.wait_vm((tg, 0))
            g.i(f'ds_write_b128 v{V_L16}, {vr(V_G2,4)} offset:{L_M + 1024*(5+role)}', tag='mw')
            g.i(f'v_max_u32 v{V_T0}, v{V_G2}, v{V_G2+2}')
            g.i(f'v_cmp_eq_u32 vcc, -1, v{V_T0}')

        def syload():
            g.i(f'buffer_load_dword v{V_G2}, v{V_L16}, {WS}, s{S_SYN} offen sc1', tag='sy')

        def hook(n):
            if role != 3 or not self.sync:
                return
            if n == self.sync[0]:
                g.i(f'v_mov_b32 v{V_G2+1}, s{S_T2}')
                g.i(f'buffer_store_dword v{V_G2+1}, off, {WS}, s{S_SYO} {XS}')
            if n in self.sync[1]:
                syload()

        def hold(bridge):
            if role != 3 or not self.sync:
                return
            K = len(self.sync[1])
            sp, ok = g.newlabel('sy'), g.newlabel('sok')

            def test():
                g.i(f's_waitcnt vmcnt({K-1})')
                g.i(f'v_cmp_gt_u32 vcc, s{S_T2}, v{V_G2}')
                g.i('s_cmp_lg_u32 vcc_lo, 0')
                g.i(f's_cbranch_scc1 {sp}')
            test()
            g.label(ok)

            def spin():
                g.label(sp)
                syload()
                g.i(bridge)
                count_try()
                test()
                g.i(f's_branch {ok}')
                g.forget()
            cold.append(spin)

        kvx = [lambda: g.i(f'buffer_load_dwordx4 {vr(V_KXD,4)}, v{V_KV}, {WS}, s{S_KX} offen sc1', tag='kx'),
               lambda: g.i(f'buffer_load_dwordx4 {vr(V_KXD+4,4)}, v{V_KV}, {WS}, s{S_KX} offen offset:256 sc1', tag='kx'),
               lambda: g.i(f'buffer_load_dwordx4 {vr(V_X0,4)}, v{V_KV}, {WS}, s{S_VX} offen sc1', tag='vx'),
               lambda: g.i(f'buffer_load_dwordx4 {vr(V_X1,4)}, v{V_KV}, {WS}, s{S_VX} offen offset:256 sc1', tag='vx')]
        pub = lambda: g.i(f'buffer_store_dwordx4 {vr(V_PUB,4)}, v{V_L16}, {WS}, s{S_KM} offen '
                          f'{"" if "plainpub" in opt else "sc1"}')

        def half(x, dst):
            return [f'v_add_f32 v{x}, v{x}, v{x+2}', f'v_add_f32 v{x+1}, v{x+1}, v{x+3}',
                    f'v_cvt_pk_bf16_f32 v{dst}, v{x}, v{x+1}']

        g.label(top)
        g.lds_q = []; g.vm_q = []
        self.nst = 0; self.names = []
        g.i(f's_mov_b32 s{S_TRY}, 0')
        g.i(f's_add_u32 s{S_MP}, s{S_MCUR}, 4096')
        g.i(f's_add_u32 s{S_MG}, s{S_MCUR}, 5120')
        g.i(f's_add_u32 s{S_T2}, s{S_STEP}, 1')
        for k in range(0, 16, 2):
            g.i(f'v_mov_b64 {vr(V_ACC+k,2)}, 0')
        MA = V_KXD
        if FR:
            if self.dm[role] is None:
                g.i('s_waitcnt vmcnt(0)')
            else:
                g.pad(self.dm[role])
            self.stamp('m issue', 3)
            mload(MA, 'A')
            if self.dq is not None:
                g.pad(self.dq)
                mload(V_STG, 'B')
                attempt(mload, mcheck, [MA, V_STG], 99, 94)
            else:
                attempt(mload, mcheck, [MA], 99, 94)
        else:
            self.stamp('m issue', 3)
        g.wait_lds()
        self.stamp('m in lds')
        g.i('s_barrier')
        g.vm_q = []
        g2load()
        self.stamp('B1')
        if self.diag:
            g.i('s_memrealtime s[100:101]')
        for t in range(3):
            self.aread(t, 0)
        g.i(f's_mov_b32 s{S_TRY}, 0')
        if FR and self.dq is not None:
            mq.append('s_waitcnt vmcnt(1)')
        mq += self.stage_list(LDS_PAIRS[0])
        if not (FR and self.dq is not None):
            pop(0, 2)
        mq += kvx
        for t in range(7):
            a = V_AR + 4 * (t % 3)
            for x, (acc, mat, tl) in enumerate([(Q0, 'q', 0), (Q1, 'q', 1), (K0, 'k', 0), (K1, 'k', 1)]):
                n = 4 * t + x
                if n == self.io:
                    mq.append(pub)
                    if role == 3:
                        mq += self.slow_io()
                if n == 16 + self.bp:
                    g.wait_lds('mw')
                    g.i('s_barrier')
                    self.aread(5, 0)
                    mq[0:0] = [ard(6, 0)]
                smf(acc, a, (mat, t), tl, ('a', 0, t))
                if x == 3:
                    if t in (0, 1, 4, 5):
                        mq[0:0] = [ard(t + 3, 0)]
                    if t == 6:
                        mq[0:0] = [ard(0, 1)]
                if n == self.mp:
                    attempt(g2load, g2check, [None], 97, 93, drain=True)
                else:
                    pop(1, 3 if n == 0 else 2 if n == 1 else 1)
        g.i(f's_mov_b64 vcc, s[{S_M3}:{S_M3+1}]')
        a7, a8 = V_AR + 4 * (7 % 3), V_AR + 4 * (8 % 3)
        smf(Q0, a7, ('q', 7), 0, ('a', 0, 7))
        pop()
        smf(Q0, a8, ('q', 8), 0, ('a', 0, 8))
        pop()
        smf(K0, a8, ('k', 8), 0)
        pop()
        smf(K0, a7, ('k', 7), 0)
        assert pub not in mq
        fill += half(Q0, V_PUB) + half(K0, V_PUB + 1)
        pop(1)
        smf(Q1, a8, ('q', 8), 1)
        pop(2)
        smf(Q1, a7, ('q', 7), 1)
        pop(2)
        smf(K1, a8, ('k', 8), 1)
        mq.append(ard(2, 1))
        pop(1)
        g.i(f'v_mov_b64 {vr(Q0,2)}, 0')
        smf(K1, a7, ('k', 7), 1)
        mq[0:0] = [ard(1, 1)]
        pop(0)
        g.i(f'v_mov_b64 {vr(Q0+2,2)}, 0')
        self.stamp('qk done')
        vq = [(t, x) for t in range(9) for x in range(2)]

        def vs(n, f=1):
            for _ in range(n):
                t, x = vq.pop(0)
                smf(VA0 if x == 0 else VA1, V_AR + 4 * (t % 3), ('v', t), x, ('a', 1, t))
                if x == 1 and t + 3 < 9:
                    mq[0:0] = [ard(t + 3, 1)]
                pop(f)
        ID = vr(V_ID0, 2)
        QK, T0R = Q1, K1
        g.i(f'v_mfma_f32_16x16x16_bf16 {vr(K0,4)}, {vr(V_PUB,2)}, {ID}, 0')
        for f in half(Q1, V_PUB + 2):
            g.i(f)
        pop(0)
        for f in half(K1, V_PUB + 3):
            g.i(f)
        pop(0)
        g.i(f'v_cvt_pk_bf16_f32 v{QK}, v{K0}, v{K0+1}')
        g.i(f'v_mfma_f32_16x16x16_bf16 {vr(K1,4)}, {vr(V_PUB+2,2)}, {ID}, 0')
        g.i(f'v_cvt_pk_bf16_f32 v{QK+1}, v{K0+2}, v{K0+3}')
        g.i(f'v_mov_b64 {vr(K0,2)}, 0')
        fill.append(f'v_mov_b64 {vr(K0+2,2)}, 0')
        vq[1], vq[2] = vq[2], vq[1]
        vs(2)
        g.i(f'v_cvt_pk_bf16_f32 v{QK+2}, v{K1}, v{K1+1}')
        g.i(f'v_cvt_pk_bf16_f32 v{QK+3}, v{K1+2}, v{K1+3}')
        pop(0)
        self.stamp('pre qk wait', 1)
        g.wait_vm('kx')
        g.i(f'v_mfma_f32_16x16x32_bf16 {vr(V_KXD,4)}, {vr(V_KXD,4)}, {vr(QK,4)}, 0')
        pop(0)
        g.i(f'v_mfma_f32_16x16x32_bf16 {vr(V_KXD+4,4)}, {vr(V_KXD+4,4)}, {vr(QK,4)}, 0')
        pop(0)
        g.i(f'v_mfma_f32_16x16x32_bf16 {vr(T0R,4)}, {vr(QK,4)}, {vr(QK,4)}, 0')
        vs(1)
        for r in range(4):
            g.i(f'v_cndmask_b32_dpp v{V_KXD+r}, v{V_KXD+4+r}, v{V_KXD+r}, vcc quad_perm:[0,1,0,1] row_mask:0xf bank_mask:0xf')
        g.i(f'ds_write_b128 v{V_SW}, {vr(V_KXD,4)} offset:{L_QK + 1024*role}')
        g.i(f'v_cndmask_b32_dpp v{T0R+2}, v{T0R+3}, v{T0R+2}, vcc quad_perm:[0,1,0,1] row_mask:0xf bank_mask:0xf')
        g.i(f'ds_write_b32 v{V_SW}, v{T0R+2} offset:{L_SM + 4*role}', tag='sw')
        X = V_STG
        M = Q1
        SH = K1
        PB = V_KXD + 2
        WL_, WM, WR = V_X0 - 2, V_T0, V_KXD
        fill += [f'v_mov_b32 v{PB}, 0', f'v_mov_b32 v{PB+5}, 0', f'v_mov_b32 v{WL_}, 0', f'v_mov_b32 v{WR+1}, 0',
                 f'v_lshrrev_b32 v{SH}, 3, v{V_L16}', f'v_and_b32 v{SH}, 16, v{SH}']
        vs(self.nb)
        assert vq[0][0] > 2
        g.wait_lds('sw')
        self.stamp('S written', 1)
        g.i('s_barrier')
        self.stamp('B2')
        rd = [(lambda w=w: g.i(f'ds_read_b128 {vr(X+4*w,4)}, v{V_L16} offset:{L_QK + 1024*w}', tag=('sx', w))) for w in range(4)]
        rd.append(lambda: g.i(f'ds_read_b128 {vr(M,4)}, v{V_L16} offset:{L_SM}', tag='sm'))
        rd[0](); rd[1]()
        keep = list(mq); del mq[:]
        vs(1, 0)
        rd[2](); rd[3](); rd[4]()
        hook(0)
        mq += keep
        vs(len(vq) - 5)
        g.wait_lds(('sx', 1))
        hook(1)
        fill += [f'v_add_f32 v{X+r}, v{X+r}, v{X+4+r}' for r in range(4)]
        pop(1)
        vs(3)
        g.wait_lds('sm')
        fill += [f'v_add_f32 v{M}, v{M}, v{M+1}', f'v_add_f32 v{M+2}, v{M+2}, v{M+3}', f'v_add_f32 v{M}, v{M}, v{M+2}',
                 f'v_add_f32 v{X+8}, v{X+8}, v{X+12}', f'v_add_f32 v{X+9}, v{X+9}, v{X+13}']
        vs(2)
        assert not vq
        pop(100, 100)
        hook(2)
        g.i(f'v_pk_add_f32 {vr(X+10,2)}, {vr(X+10,2)}, {vr(X+14,2)}')
        g.i(f'v_pk_add_f32 {vr(X,2)}, {vr(X,2)}, {vr(X+8,2)}')
        g.i(f'v_pk_add_f32 {vr(X+2,2)}, {vr(X+2,2)}, {vr(X+10,2)}')
        MX, MY = M + 2, M + 3
        ONE = V_AR
        g.i(f'v_max3_f32 v{MX}, v{X}, v{X+1}, v{M}')
        g.i(f'v_max3_f32 v{MX}, v{MX}, v{X+2}, v{X+3}')
        hook(3)
        g.i(f'v_pk_add_f32 {vr(VA0,2)}, {vr(VA0,2)}, {vr(VA0+2,2)}')
        g.i(f'v_pk_add_f32 {vr(VA1,2)}, {vr(VA1,2)}, {vr(VA1+2,2)}')
        g.i(f'v_max_f32_dpp v{MY}, v{MX}, v{MX} row_ror:8 row_mask:0xf bank_mask:0xf')
        g.i(f'v_max_f32_dpp v{MX}, v{MX}, v{MX} row_ror:8 row_mask:0xf bank_mask:0xf')
        g.i(f'v_cvt_pk_bf16_f32 v{WM}, v{VA0}, v{VA0+1}')
        g.i(f'v_cvt_pk_bf16_f32 v{WM+1}, v{VA1}, v{VA1+1}')
        g.i(f'v_permlane16_swap_b32 v{MX}, v{MY}')
        hook(4)
        g.i(f'v_max_f32 v{M+1}, v{MX}, v{MY}')
        g.i(f'v_max_f32 v{MX}, v{MX}, v{MY}')
        g.i(f'v_mov_b32 v{WL_+1}, v{WM}')
        g.i(f'v_mov_b32 v{WR}, v{WM+1}')
        g.i(f'v_permlane32_swap_b32 v{MX}, v{M+1}')
        g.i(f'v_max_f32 v{MX}, v{MX}, v{M+1}')
        g.i(f'v_mul_f32 v{MX}, s{S_C}, v{MX}')
        hook(5)
        g.i(f'v_fma_f32 v{M}, v{M}, s{S_C}, -v{MX}')
        for r in (0, 2):
            g.i(f'v_pk_fma_f32 {vr(X+r,2)}, {vr(X+r,2)}, s[{S_C2}:{S_C2+1}], {vr(MX,2)} op_sel_hi:[1,1,0] neg_lo:[0,0,1] neg_hi:[0,0,1]')
        g.i(f'v_exp_f32 v{M}, v{M}')
        for r in range(4):
            g.i(f'v_exp_f32 v{X+r}, v{X+r}')
        g.i(f'v_cvt_pk_bf16_f32 v{M}, v{M}, 0')
        hook(6)
        g.i(f'v_cvt_pk_bf16_f32 v{PB+2}, v{X}, v{X+1}')
        g.i(f'v_lshlrev_b32 v{PB+4}, v{SH}, v{M}')
        g.i(f'v_cvt_pk_bf16_f32 v{PB+3}, v{X+2}, v{X+3}')
        g.i(f'v_lshlrev_b32 v{PB+1}, v{SH}, v{M}')
        self.stamp('softmax done', 1)
        g.wait_vm('vx')
        DL = V_AR + 4
        D = V_STG
        g.i(f'v_mfma_f32_16x16x32_bf16 {vr(D+4,4)}, {vr(V_X0+2,4)}, {vr(PB+2,4)}, 0')
        hook(7)
        g.i(f'v_mov_b64 {vr(ONE,2)}, s[{S_ONE}:{S_ONE+1}]')
        g.i(f'v_mov_b64 {vr(ONE+2,2)}, s[{S_ONE}:{S_ONE+1}]')
        g.i(f'v_mfma_f32_16x16x32_bf16 {vr(D,4)}, {vr(WL_,4)}, {vr(PB,4)}, 0')
        g.i(f'v_mov_b32 v{V_PUB}, v{WM}')
        g.i(f'v_mov_b32 v{V_PUB+2}, v{WM+1}')
        g.i(f'v_mfma_f32_16x16x32_bf16 {vr(DL,4)}, {vr(ONE,4)}, {vr(PB,4)}, 0')
        g.i(f'v_mov_b64 {vr(V_ACC,2)}, 0')
        g.i(f'v_mov_b64 {vr(V_ACC+2,2)}, 0')
        g.i(f'v_mfma_f32_16x16x32_bf16 {vr(D+8,4)}, {vr(WM,4)}, {vr(PB,4)}, 0')
        hook(8)
        O = V_AR + 8
        RL = V_AR + 2
        g.i(f'v_add_f32_dpp v{O}, v{D+4}, v{D} row_ror:8 row_mask:0xf bank_mask:0x3')
        g.i(f'v_add_f32_dpp v{O+1}, v{D+5}, v{D+1} row_ror:8 row_mask:0xf bank_mask:0x3')
        g.i(f'v_mfma_f32_16x16x32_bf16 {vr(D+12,4)}, {vr(V_X1+2,4)}, {vr(PB+2,4)}, 0')
        g.i(f'v_add_f32_dpp v{RL}, v{DL}, v{DL} row_ror:8 row_mask:0xf bank_mask:0xf')
        g.i(f'v_add_f32_dpp v{O+2}, v{D+6}, v{D+2} row_ror:8 row_mask:0xf bank_mask:0x3')
        g.i(f'v_add_f32_dpp v{O+3}, v{D+7}, v{D+3} row_ror:8 row_mask:0xf bank_mask:0x3')
        g.i(f'v_rcp_f32 v{RL}, v{RL}')
        hook(9)
        for k in range(4, 12, 2):
            g.i(f'v_mov_b64 {vr(V_ACC+k,2)}, 0')
        for r in range(4):
            g.i(f'v_add_f32_dpp v{O+r}, v{D+8+r}, v{D+12+r} row_ror:8 row_mask:0xf bank_mask:0xc')
        for r in (0, 2):
            g.i(f'v_pk_mul_f32 {vr(O+r,2)}, {vr(O+r,2)}, {vr(RL,2)} op_sel_hi:[1,0]')
        g.i(f'v_cvt_pk_bf16_f32 v{O}, v{O}, v{O+1}')
        g.i(f'v_cvt_pk_bf16_f32 v{O+1}, v{O+2}, v{O+3}')
        g.i(f'ds_write_b64 v{V_OW}, {vr(O,2)} offset:{L_M + 512*role}', tag='ow')
        hook(10)
        g.i(f's_cmp_eq_u32 s{S_STEP}, {NSEG-1}')
        Z = vr(V_ACC, 4)
        zm = f'v_mfma_f32_32x32x16_bf16 {vr(V_ACC+12,16)}, {Z}, {Z}, 0'
        g.i(f'v_mov_b64 {vr(V_ACC+28,2)}, 0')
        g.i(f's_cbranch_scc1 {done}')
        g.i(zm)
        st = self.stage_list(('o', 0, 0))
        st[0](); st[1]()
        hold(zm)
        g.wait_lds('ow')
        self.stamp('o written', 1)
        g.i('s_barrier')
        self.stamp('B3', 1)
        AO = V_AR + 2
        TA, TB = V_AR + 10, V_AR + 11
        SEL = V_G2 if role < 3 else None
        g.i(f'ds_read_b128 {vr(AO,4)}, v{V_L16} offset:{L_M}', tag=('oa', 0))
        g.i(f'v_mov_b64 {vr(V_ACC+30,2)}, 0')
        g.i(f'ds_read_b128 {vr(AO+4,4)}, v{V_L16} offset:{L_M + 1024}', tag=('oa', 1))
        g.i(f'v_mov_b64 {vr(V_ACC+32,2)}, 0')
        st[2]()
        g.i(f'v_mov_b64 {vr(V_ACC+34,2)}, 0')
        st[3]()
        if role < 3:
            g.i(f'v_bfe_u32 v{TA}, v{V_L16}, 6, 1')
            g.i(f'v_mul_u32_u24 v{TA}, {0x3f800000 - 0x3f80 >> 7}, v{TA}')
            g.i(f'v_lshlrev_b32 v{TA}, 7, v{TA}')
            g.i(f'v_add_u32 v{TA}, 0x3f80, v{TA}')
            g.i(f'v_cndmask_b32 v{SEL}, 0, v{TA}, s[{S_M1}:{S_M1+1}]')
            for d in range(1, 4):
                g.i(f's_lshl_b64 vcc, s[{S_M1}:{S_M1+1}], {d}')
                g.i(f'v_cndmask_b32 v{SEL+d}, 0, v{TA}, vcc')
        g.i(f'v_lshrrev_b32 v{TB}, 2, v{V_L16}')
        R = V_ACC

        def rload(S, tg):
            for n in range(4 if role < 2 else 1):
                g.i(f'buffer_load_dwordx4 {vr(S+4*n,4)}, v{V_RED}, {WS}, s{S_RED+n} offen sc1', tag=(tg, n))

        def lstore():
            g.i(f's_mov_b64 exec, s[{S_M1}:{S_M1+1}]')
            g.i(f'buffer_store_dwordx4 {vr(V_ACC,4)}, v{TB}, {WS}, s{S_PST+2} offen {XS}')
            g.i('s_mov_b64 exec, -1')
            self.stamp('store L', 3)

        def post(n):
            pa = V_ACC + 4 * n
            if n == 0:
                return half(pa, TA) + [f'v_and_or_b32 v{pa}, v{TA}, -2, s{S_TAG}'] + \
                    [f'v_mov_b32_dpp v{pa+x}, v{TA} quad_perm:[{x},{x},{x},{x}] row_mask:0xf bank_mask:0xf' for x in (1, 2, 3)] + [lstore]
            t = n - 1
            OUT = V_ACC + 4 + 16 * (t >> 2)
            L = half(pa, OUT + (t & 3))
            if t & 3 == 0:
                L.append(f'v_and_or_b32 v{OUT}, v{OUT}, -2, s{S_TAG}')
            if t & 3 == 3:
                def sto():
                    g.i(f'buffer_store_dwordx4 {vr(OUT,4)}, v{V_L16}, {WS}, s{S_PST + (t >> 2)} offen {XS}', tag=('st', t >> 2))
                    if t == 3:
                        self.stamp('store A', 3)
                L.append(sto)
            return L
        self.stamp('wo start')
        g.vm_q = []
        for n in range(9):
            acc = V_ACC + 4 * n
            for u in range(2):
                p, x = (('l',), u) if n == 0 else (('o', u, (n - 1) >> 1), (n - 1) & 1)
                smf(acc, AO + 4 * u, p, x, ('oa', u))
                if u == 1 and n >= 1:
                    fill += post(n - 1)
                if role == 2 and n == 8 and u == 0:
                    rload(R, 'A')
                pop(2)
        pop(100)
        fill += post(8)
        pop(100)
        self.stamp('wo done')
        self.advance()
        if role < 3:
            RD, SN = V_AR + 2, V_AR + 6
            g.i(f'v_mov_b64 {vr(SN,2)}, -1')
            g.i(f's_mov_b32 s{S_TRY}, 0')
            if role < 2:
                if self.dr[role] is None:
                    g.wait_vm(('st', role))
                else:
                    g.pad(self.dr[role])
                self.stamp('r issue', 3)
                rload(R, 'A')
            else:
                self.stamp('r issue', 3)

            def rsum(S, tg):
                if role == 2:
                    g.wait_vm((tg, 0))
                    g.i(f'v_mfma_f32_16x16x32_bf16 {vr(RD,4)}, {vr(SEL,4)}, {vr(S,4)}, 0')
                    g.i(f'v_xor_b32 v{TA}, s{S_TAG}, v{S}')
                else:
                    for n in range(4):
                        g.wait_vm((tg, n))
                        g.i(f'v_mfma_f32_16x16x32_bf16 {vr(RD,4)}, {vr(SEL,4)}, {vr(S+4*n,4)}, {vr(RD,4) if n else 0}')
                        if n & 1:
                            g.i(f'v_bitop3_b32 v{TA + (n>>1)}, v{S+4*n-4}, v{S+4*n}, s{S_TAG} bitop3:0x7e')
                    g.i(f'v_or_b32 v{TA}, v{TA}, v{TB}')
                g.i(f'v_and_b32 v{TA}, 1, v{TA}')
                g.i(f'v_cmp_ne_u32 vcc, 0, v{TA}')
            attempt(rload, rsum, [R], 98, 95)
            for rot in ((8,) if role < 2 else (8, 4, 2)):
                for r in range(4):
                    g.i(f'v_add_f32_dpp v{RD+r}, v{RD+r}, v{RD+r} row_ror:{rot} row_mask:0xf bank_mask:0xf')
            g.i(f's_mov_b64 exec, s[{S_MS}:{S_MS+1}]')
            g.i(f'v_cvt_pk_bf16_f32 v{TA}, v{RD}, v{RD+1}')
            g.i(f'v_cvt_pk_bf16_f32 v{TB}, v{RD+2}, v{RD+3}')
            g.i(f'v_min_u32 v{TA}, -2, v{TA}')
            g.i(f'buffer_store_dwordx2 {vr(TA,2)}, v{V_MST}, {WS}, s{S_MCUR} offen {XS}')
            g.i(f'buffer_store_dwordx2 {vr(SN,2)}, v{V_MST}, {WS}, s{S_MRST} offen {XS}')
            g.i('s_mov_b64 exec, -1')
            if role == 0 and self.wake:
                g.i('s_wakeup')
            self.stamp('m stored')
        else:
            self.stamp('r issue', 3)
            g.wait_vm()
            if not self.standalone:
                nr, rk = g.newlabel('nr'), g.newlabel('rk')
                g.i(f'v_readfirstlane_b32 s{S_T0}, v{V_MST}')
                g.i(f's_cmp_ge_u32 s{S_STEP}, {NSEG - 3}')
                g.i(f's_cselect_b32 s{S_RNEED}, 0, s{S_RNEED}')
                g.i(f's_cmp_lt_u32 s{S_T0}, s{S_RNEED}')
                g.i(f's_cbranch_scc1 {nr}')
                g.label(rk)

                def notready():
                    g.label(nr)
                    self.spin_ready(S_RDY, f's{S_RNEED}', bail)
                    g.i(f's_branch {rk}')
                    g.forget()
                cold.append(notready)
                g.i(f's_add_u32 s{S_RDY}, s{S_RDY}, 512')
                g.i(f's_add_u32 s{S_PF}, s{S_PF}, 1')
                g.i(f's_cmp_eq_u32 s{S_PF}, 3')
                g.i(f's_cselect_b32 s{S_T0}, 1536, 0')
                g.i(f's_cselect_b32 s{S_T1}, 1, 0')
                g.i(f's_cselect_b32 s{S_PF}, 0, s{S_PF}')
                g.i(f's_sub_u32 s{S_RDY}, s{S_RDY}, s{S_T0}')
                g.i(f's_add_u32 s{S_RNEED}, s{S_RNEED}, s{S_T1}')
            if self.wake:
                g.i(f's_sleep {self.wake}')
            self.stamp('m stored')
        self.advance2(role)
        self.dump_stamps()
        if 'stat' in opt:
            g.i(f's_cmp_lg_u32 s{S_STEP}, 6')
            g.i(f's_cbranch_scc1 {top}')
            g.i('s_memtime s[90:91]')
            g.i('s_memrealtime s[88:89]')
            for k in (93, 94, 95):
                g.i(f's_mov_b32 s{k}, 0')
            g.i('s_waitcnt lgkmcnt(0)')
        g.settle()
        g.i(f's_branch {top}')
        g.forget()
        for f in cold:
            f()
```

```python
OFF_XN   = 0x0000000
OFF_KX   = 0x0400000
OFF_VX   = 0x1400000
OFF_QX   = 0x2400000
OFF_H    = 0x3400000
OFF_O    = 0x4800000
OFF_G    = 0x5800000
OFF_KM   = 0x6000000
OFF_VM   = 0x6800000
OFF_PART = 0x6C00000
OFF_MB   = 0x6E00000
OFF_SYNC = 0x6E20000
OFF_FLAG = 0x6F00000
OFF_DIAG = 0x7000000
WS_BYTES = 268435456
NSEG = 64

def colmap(t, k):
    ga, hh, x1, sg, x0 = k >> 4, (k >> 3) & 1, (k >> 2) & 1, (k >> 1) & 1, k & 1
    if t == 4:
        return 512 + 16 * ga + 8 * sg + 4 * hh + 2 * x1 + x0
    q, w = (0, t) if t < 4 else (1, t - 5)
    return 256 * q + 128 * x1 + 32 * w + 16 * x0 + 4 * ga + 2 * sg + hh

assert sorted(colmap(t, k) for t in range(9) for k in range(64)) == list(range(576))
DBG_XCC = 0
DBG_PICK = 64
DBG_BULK = 0
DBG_LN = 64
DBG_CHAIN = 128
DBG_LNOK = 224
DBG_INIT = 192
FL_KM = 1024
FL_P1 = 10240
FL_O = 12288
FL_BYTES = 16384
N_BULK = 224
N_LN = 64
N_NOP = 26
N_REP = 10
N_ATT = N_BULK - 18 * N_REP
```

```python
import math, struct
from asmgen import *
from layout import *

S_WS = 4
S_W8 = 8
S_DBG = 12
S_W, S_H, S_STEP = 14, 15, 16
S_MCUR, S_PST = 17, 18
S_KX, S_VX, S_KM = 21, 22, 23
S_RED = 24
S_MS, S_M1 = 28, 30
S_RDY, S_RNEED = 32, 39
S_XCC = 59
S_PF = 33
S_TAG, S_MRST, S_FLG = 46, 47, 58
S_ONE = 36
S_M3 = 34
S_SYN, S_SYO = 84, 85
S_C = 40
S_C2 = 2
S_TRY = 41
S_T0, S_T1, S_T2, S_T3 = 42, 43, 44, 45
S_PTR = 48
S_ST = 60
V_L16, V_IDX, V_ID0, V_ID1, V_WL, V_SWX, V_SWM, V_OW, V_MW, V_RED, V_MST, V_KX, V_VX, V_SH = range(14)
V_ACC = 14
V_X0 = 30
V_T0, V_T1 = 34, 35
V_X1 = 36
V_KXD = 40
V_AR = 48
V_STG = 60
V_PUB = 76
L_M = 0
L_QK = 9216
L_SM = 13312
L_EL = 15360
L_W = 16384
LDS_BYTES = 163840
SPIN_MAX = 300000

def f2u(x):
    return struct.unpack('<I', struct.pack('<f', x))[0]

PAIRS = [('q', t) for t in range(9)] + [('k', t) for t in range(9)] + [('v', t) for t in range(9)] + \
        [('o', u, p) for p in range(5) for u in range(2)]
LDS_PAIRS = [('k', 1), ('k', 3), ('k', 5), ('k', 7), ('v', 2), ('o', 0, 0), ('o', 1, 1), ('o', 1, 2), ('o', 1, 3)]
STG_NEXT = {LDS_PAIRS[i]: LDS_PAIRS[i + 1] for i in (0, 1, 2, 3, 5, 6, 7)}
REG_PAIRS = [p for p in PAIRS if p not in LDS_PAIRS]

def build_regmap():
    m = {}
    slot = 0
    for p in REG_PAIRS:
        for x in range(2):
            if p[0] == 'o' and p[2] == 4 and x == 1:
                continue
            m[(p, x)] = ar(8 * slot, 8) if slot < 32 else vr(80 + 8 * (slot - 32), 8)
            m[(p, x, 'base')] = ('a', 8 * slot) if slot < 32 else ('v', 80 + 8 * (slot - 32))
            slot += 1
    assert slot == 54, slot
    return m
REGMAP = build_regmap()
SEQ = REG_PAIRS + LDS_PAIRS
LDS_BLOCK = {p: SEQ.index(p) % 9 for p in LDS_PAIRS}


class Chain:
    def __init__(self, g, diag=False, standalone=True, opt=()):
        self.opt = set(opt)
        self.g = g
        self.diag = diag
        self.standalone = standalone
        self.nst = 0
        self.names = []
        self.staged = [None] * 4
        self.ring = [None] * 3
        self.nb = 5
        self.dq2 = 0
        self.b4 = 0
        self.hs = 12288
        self.sync = None
        self.bp, self.mp, self.warm, self.ds = 0, 16, 0, 0
        self.dr, self.dm, self.dq = [0, 20, 50], [0, 0], 28

    def stamp(self, name='', lvl=0):
        if not self.diag or (lvl and lvl != self.diag):
            return
        g = self.g
        g.i(f'{"s_memrealtime" if self.diag == 3 else "s_memtime"} s[{S_ST + 2*self.nst}:{S_ST + 2*self.nst + 1}]')
        self.names.append(name)
        self.nst += 1
        assert self.nst <= 12

    def dump_stamps(self):
        if not self.diag:
            return
        g = self.g
        g.wait_lds()
        for k in range(self.nst):
            g.i(f'v_writelane_b32 v{V_T0}, s{S_ST + 2*k}, {k}')
        g.i(f'v_writelane_b32 v{V_T0}, s100, 29')
        g.i(f'v_writelane_b32 v{V_T0}, s98, 30')
        g.i(f'v_writelane_b32 v{V_T0}, s99, 31')
        g.i(f's_lshl_b32 s{S_T0}, s{S_STEP}, 5')
        g.i(f's_add_u32 s{S_T0}, s{S_T0}, s{S_H}')
        g.i(f's_lshl_b32 s{S_T0}, s{S_T0}, 2')
        g.i(f's_add_u32 s{S_T0}, s{S_T0}, s{S_W}')
        g.i(f's_lshl_b32 s{S_T0}, s{S_T0}, 7')
        g.i(f's_add_u32 s{S_T0}, s{S_T0}, {OFF_DIAG}')
        g.i(f'v_lshrrev_b32 v{V_T1}, 2, v{V_L16}')
        g.i(f's_mov_b64 exec, 0xffffffff')
        g.i(f'buffer_store_dword v{V_T0}, v{V_T1}, s[{S_WS}:{S_WS+3}], s{S_T0} offen')
        g.i(f's_mov_b64 exec, -1')
        g.i(f's_add_u32 s{S_STEP}, s{S_STEP}, 1')

    def lane_consts(self):
        g = self.g
        L, I_, G_, A, B, C, D = 14, 15, 16, 17, 18, 19, 20
        g.i(f'v_mov_b32 v{L}, v0')
        g.i(f'v_and_b32 v{I_}, 15, v{L}')
        g.i(f'v_lshrrev_b32 v{G_}, 4, v{L}')
        g.i(f'v_lshlrev_b32 v{V_L16}, 4, v{L}')
        g.i(f'v_bfe_u32 v{A}, v{I_}, 1, 1')
        g.i(f'v_mul_u32_u24 v{B}, 0xaaaa, v{A}')
        g.i(f'v_add_u32 v{V_IDX}, 0x4444, v{B}')
        g.i(f'v_lshrrev_b32 v{B}, 2, v{I_}')
        g.i(f'v_and_b32 v{C}, 1, v{I_}')
        g.i(f'v_lshl_add_u32 v{D}, v{B}, 1, v{C}')
        g.i(f's_mul_i32 s{S_T0}, s{S_W}, 36864')
        g.i(f's_add_u32 s{S_T0}, s{S_T0}, {L_W}')
        g.i(f'v_add_u32 v{V_WL}, s{S_T0}, v{V_L16}')
        g.i(f'v_lshlrev_b32 v{V_SWX}, 4, v{C}')
        g.i(f'v_mov_b32 v{V_SWM}, 0x3f80')
        g.i(f'v_lshlrev_b32 v{V_SWX}, v{V_SWX}, v{V_SWM}')
        g.i(f'v_cmp_eq_u32 vcc, v{B}, v{G_}')
        g.i(f'v_cndmask_b32 v{V_SWX}, 0, v{V_SWX}, vcc')
        g.i(f'v_cmp_eq_u32 vcc, 0, v{A}')
        g.i(f'v_cndmask_b32 v{V_ID0}, 0, v{V_SWX}, vcc')
        g.i(f'v_cndmask_b32 v{V_ID1}, v{V_SWX}, 0, vcc')
        g.i(f'v_lshlrev_b32 v{V_SWM}, 8, v{G_}')
        g.i(f'v_lshl_add_u32 v{V_SWM}, v{D}, 4, v{V_SWM}')
        g.i(f'v_lshl_add_u32 v{V_SWM}, v{A}, 7, v{V_SWM}')
        g.i(f's_lshl_b32 s{S_T0}, s{S_W}, 10')
        g.i(f'v_add_u32 v{V_SWX}, s{S_T0}, v{V_SWM}')
        g.i(f's_lshl_b32 s{S_T0}, s{S_W}, 2')
        g.i(f'v_add_u32 v{V_SWM}, s{S_T0}, v{V_SWM}')
        g.i(f'v_and_b32 v{B}, 7, v{I_}')
        g.i(f'v_lshrrev_b32 v{C}, 3, v{I_}')
        g.i(f'v_lshlrev_b32 v{V_SH}, 4, v{C}')
        g.i(f'v_lshlrev_b32 v{V_OW}, 8, v{C}')
        g.i(f'v_lshrrev_b32 v{C}, 1, v{B}')
        g.i(f'v_lshl_add_u32 v{V_OW}, v{C}, 6, v{V_OW}')
        g.i(f'v_and_b32 v{C}, 1, v{B}')
        g.i(f'v_lshl_add_u32 v{V_OW}, v{C}, 4, v{V_OW}')
        g.i(f'v_lshrrev_b32 v{C}, 1, v{G_}')
        g.i(f'v_lshl_add_u32 v{V_OW}, v{C}, 5, v{V_OW}')
        g.i(f'v_and_b32 v{C}, 1, v{G_}')
        g.i(f'v_lshl_add_u32 v{V_OW}, v{C}, 3, v{V_OW}')
        g.i(f's_lshl_b32 s{S_T1}, s{S_W}, 9')
        g.i(f'v_add_u32 v{V_OW}, s{S_T1}, v{V_OW}')
        g.i(f's_mul_i32 s{S_T1}, s{S_W}, 3072')
        g.i(f'v_add_u32 v{V_MW}, s{S_T1}, v{V_L16}')
        g.i(f's_lshl_b32 s{S_T1}, s{S_W}, 6')
        g.i(f's_lshl_b32 s{S_T1}, s{S_W}, 11')
        g.i(f'v_lshlrev_b32 v{V_VX}, 9, v{G_}')
        g.i(f'v_add_u32 v{V_VX}, s{S_T1}, v{V_VX}')
        g.i(f'v_lshrrev_b32 v{B}, 2, v{I_}')
        g.i(f'v_and_b32 v{C}, 3, v{I_}')
        g.i(f'v_lshl_add_u32 v{B}, v{B}, 3, v{C}')
        g.i(f'v_lshl_add_u32 v{V_KX}, v{B}, 4, v{V_VX}')
        g.i(f'v_lshl_add_u32 v{V_VX}, v{I_}, 4, v{V_VX}')
        GM, ETA, Y_, JJ, U, W_, D0, DS = 21, 22, 23, 24, 26, 27, 28, 29
        g.i(f's_lshl_b32 s{S_T0}, s{S_W}, 12')
        g.i(f's_lshl_b32 s{S_T1}, s{S_H}, 7')
        g.i(f's_add_u32 s{S_T0}, s{S_T0}, s{S_T1}')
        g.i(f'v_and_b32 v{GM}, 7, v{L}')
        g.i(f'v_lshrrev_b32 v{B}, 3, v{L}')
        g.i(f'v_mul_u32_u24 v{V_RED}, {self.hs}, v{B}')
        g.i(f'v_lshl_add_u32 v{V_RED}, v{GM}, 4, v{V_RED}')
        g.i(f'v_add_u32 v{V_RED}, s{S_T0}, v{V_RED}')
        g.i(f'v_and_b32 v{ETA}, 3, v{L}')
        g.i(f'v_lshrrev_b32 v{Y_}, 2, v{GM}')
        g.i(f'v_lshrrev_b32 v{B}, 1, v{GM}')
        g.i(f'v_cmp_lt_u32 vcc, 31, v{L}')
        g.i(f'v_cndmask_b32 v{Y_}, v{Y_}, 2, vcc')
        g.i(f'v_cndmask_b32 v{JJ}, v{ETA}, v{B}, vcc')
        g.i(f'v_mov_b32 v{DS}, 32')
        g.i(f'v_cndmask_b32 v{DS}, v{DS}, 2, vcc')
        g.i(f'v_cndmask_b32 v{D0}, 0, 32, vcc')
        g.i(f'v_add_u32 v{D0}, v{D0}, v{GM}')
        g.i(f'v_and_b32 v{B}, 1, v{G_}')
        g.i(f'v_lshlrev_b32 v{U}, 10, v{Y_}')
        g.i(f'v_lshl_add_u32 v{U}, v{JJ}, 2, v{U}')
        g.i(f'v_lshl_add_u32 v{U}, v{B}, 4, v{U}')
        g.i(f's_mul_i32 s{S_T0}, s{S_W}, 3072')
        g.i(f's_lshl_b32 s{S_T1}, s{S_H}, 5')
        g.i(f's_add_u32 s{S_T0}, s{S_T0}, s{S_T1}')
        g.i(f'v_add_u32 v{V_MST}, s{S_T0}, v{U}')
        g.i(f's_lshr_b32 s{S_T0}, s{S_H}, 3')
        g.i(f's_mul_i32 s{S_T0}, s{S_T0}, 144')
        g.i(f's_mul_i32 s{S_T1}, s{S_W}, 48')
        g.i(f's_add_u32 s{S_T0}, s{S_T0}, s{S_T1}')
        g.i(f's_and_b32 s{S_T1}, s{S_H}, 1')
        g.i(f's_lshl_b32 s{S_T1}, s{S_T1}, 3')
        g.i(f's_add_u32 s{S_T0}, s{S_T0}, s{S_T1}')
        g.i(f's_bfe_u32 s{S_T1}, s{S_H}, 0x20001')
        g.i(f's_mul_i32 s{S_T1}, s{S_T1}, 1152')
        g.i(f's_add_u32 s{S_T0}, s{S_T0}, s{S_T1}')
        g.i(f'v_mul_u32_u24 v{B}, 576, v{B}')
        g.i(f'v_add3_u32 v{D0}, v{D0}, v{B}, s{S_T0}')
        g.i(f'v_lshlrev_b32 v{D0}, 1, v{D0}')
        LA, LB, LO, TR = 30, 31, 32, 33
        g.i(f'v_bfe_u32 v{B}, v{L}, 3, 1')
        g.i(f'v_bfe_u32 v{C}, v{L}, 2, 1')
        g.i(f'v_lshl_add_u32 v{LA}, v{B}, 3, v{G_}')
        g.i(f'v_add3_u32 v{LB}, v{LA}, v{G_}, v{C}')
        g.i(f'v_lshl_add_u32 v{LA}, v{C}, 4, v{LA}')
        g.i(f'v_lshlrev_b32 v{A}, 4, v{ETA}')
        g.i(f'v_mul_u32_u24 v{LO}, 1152, v{LB}')
        g.i(f'v_add_u32 v{LO}, v{LO}, v{A}')
        g.i(f'v_lshl_add_u32 v{LA}, v{LA}, 13, v{A}')
        g.i(f'v_lshl_add_u32 v{LB}, v{LB}, 13, v{A}')
        g.i(f'v_lshrrev_b32 v{B}, 2, v{I_}')
        g.i(f'v_lshl_add_u32 v{B}, v{G_}, 3, v{B}')
        g.i(f'v_lshlrev_b32 v{TR}, 6, v{B}')
        g.i(f'v_lshl_add_u32 v{TR}, v{ETA}, 3, v{TR}')
        g.i(f's_mul_i32 s{S_T0}, s{S_W}, 36864')
        g.i(f's_add_u32 s{S_T0}, s{S_T0}, {L_W}')
        g.i(f'v_add_u32 v{TR}, s{S_T0}, v{TR}')
        TQ = 25
        g.i(f'v_lshl_add_u32 v{TQ}, v{ETA}, 3, v{TR}')
        n3 = g.newlabel('n3')
        g.i(f's_cmp_lg_u32 s{S_W}, 3')
        g.i(f's_cbranch_scc1 {n3}')
        g.i(f'v_lshlrev_b32 v{V_MW}, 7, v{L}')
        g.label(n3)
        return dict(D0=D0, DS=DS, LA=LA, LB=LB, LO=LO, TR=TR, TQ=TQ)

    def scalar_consts(self):
        g = self.g
        g.i(f's_mov_b32 s{S_STEP}, 0')
        g.i(f's_mov_b32 s{S_MCUR}, {OFF_MB}')
        g.i(f's_mov_b32 s{S_MRST}, {OFF_MB + 3 * 16384}')
        g.i(f's_mov_b32 s{S_TAG}, 1')
        g.i(f's_mov_b32 s{S_SYN}, {OFF_SYNC}')
        g.i(f's_lshl_b32 s{S_SYO}, s{S_H}, 4')
        g.i(f's_add_u32 s{S_SYO}, s{S_SYO}, {OFF_SYNC}')
        g.i(f's_lshl_b32 s{S_FLG}, s{S_H}, 2')
        g.i(f's_add_u32 s{S_FLG}, s{S_FLG}, {OFF_FLAG + FL_KM - 256}')
        g.i(f's_mul_i32 s{S_T0}, s{S_H}, {self.hs}')
        g.i(f's_lshl_b32 s{S_T1}, s{S_W}, 10')
        g.i(f's_add_u32 s{S_T0}, s{S_T0}, s{S_T1}')
        for j in range(3):
            g.i(f's_add_u32 s{S_PST+j}, s{S_T0}, {OFF_PART + 4096 * j}')
        for n in range(4):
            g.i(f's_mov_b32 s{S_RED + n}, {OFF_PART + n * 8 * self.hs}')
        g.i(f's_mov_b32 s{S_MS}, 0x00ff00ff')
        g.i(f's_mov_b32 s{S_MS+1}, 0x00550055')
        g.i(f's_mov_b32 s{S_M1}, 0x00110011')
        g.i(f's_mov_b32 s{S_M1+1}, 0x00110011')
        g.i(f's_lshl_b32 s{S_T0}, s{S_H}, 13')
        g.i(f's_add_u32 s{S_KX}, s{S_T0}, {OFF_KX}')
        g.i(f's_add_u32 s{S_VX}, s{S_T0}, {OFF_VX}')
        g.i(f's_lshl_b32 s{S_T0}, s{S_H}, 12')
        g.i(f's_lshl_b32 s{S_T1}, s{S_W}, 10')
        g.i(f's_add_u32 s{S_T0}, s{S_T0}, s{S_T1}')
        g.i(f's_add_u32 s{S_KM}, s{S_T0}, {OFF_KM - 32 * 4096}')
        g.i(f's_mov_b32 s{S_M3}, 0x33333333')
        g.i(f's_mov_b32 s{S_M3+1}, 0x33333333')
        g.i(f's_mov_b32 s{S_ONE}, 0x3f803f80')
        g.i(f's_mov_b32 s{S_ONE+1}, 0x3f803f80')
        g.i(f's_mov_b32 s{S_C}, {f2u(128 ** -0.5 * math.log2(math.e)):#x}')
        g.i(f's_mov_b32 s{S_C2}, s{S_C}')
        g.i(f's_mov_b32 s{S_C2+1}, s{S_C}')

    def set_srd(self, ptr, nbytes):
        g = self.g
        g.i(f's_mov_b32 s{S_W8}, s{ptr}')
        g.i(f's_mov_b32 s{S_W8+1}, s{ptr+1}')
        g.i(f's_mov_b32 s{S_W8+2}, {nbytes}')
        g.i(f's_mov_b32 s{S_W8+3}, 0x20000')

    def init_exchange(self, R):
        g = self.g
        skip = g.newlabel('ci')
        WS = f's[{S_WS}:{S_WS+3}]'
        for k in range(4):
            g.i(f'v_mov_b32 v{V_PUB+k}, -1')
            g.i(f'v_mov_b32 v{V_KXD+k}, 0')
        self.set_srd(S_PTR, 9216)
        g.i(f's_cmp_eq_u32 s{S_W}, 3')
        g.i(f's_cbranch_scc1 {skip}')
        g.i(f'buffer_load_ushort v{V_AR}, v{R["D0"]}, s[{S_W8}:{S_W8+3}], 0 offen')
        g.i(f'v_add_u32 v{R["D0"]}, v{R["D0"]}, v{R["DS"]}')
        g.i(f'buffer_load_ushort v{V_AR+1}, v{R["D0"]}, s[{S_W8}:{S_W8+3}], 0 offen')
        for n in range(4):
            g.i(f'buffer_store_dwordx4 {vr(V_KXD,4)}, v{V_RED}, {WS}, s{S_RED+n} offen sc1')
            g.i(f's_xor_b32 s{S_T0}, s{S_RED+n}, 0x100000')
            g.i(f'buffer_store_dwordx4 {vr(V_KXD,4)}, v{V_RED}, {WS}, s{S_T0} offen sc1')
        g.i(f's_mov_b64 exec, s[{S_MS}:{S_MS+1}]')
        for k in range(1, 4):
            g.i(f's_mov_b32 s{S_T0}, {OFF_MB + 16384 * k}')
            g.i(f'buffer_store_dword v{V_PUB}, v{V_MST}, {WS}, s{S_T0} offen sc1')
        g.i('s_waitcnt vmcnt(11)')
        g.i(f'v_lshl_or_b32 v{V_T0}, v{V_AR+1}, 16, v{V_AR}')
        g.i(f'v_min_u32 v{V_T0}, -2, v{V_T0}')
        g.i(f's_mov_b32 s{S_T0}, {OFF_MB}')
        g.i(f'buffer_store_dword v{V_T0}, v{V_MST}, {WS}, s{S_T0} offen sc1')
        g.i('s_mov_b64 exec, -1')
        g.label(skip)
        g.i(f'buffer_store_dword v{V_KXD}, off, {WS}, s{S_SYO} sc1')
        g.wait_vm()
        g.i('s_barrier')
        s2 = g.newlabel('ci')
        g.i(f's_cmp_lg_u32 s{S_W}, 0')
        g.i(f's_cbranch_scc1 {s2}')
        g.i('s_mov_b64 exec, 1')
        if not self.standalone:
            g.i(f's_lshl_b32 s{S_T0}, 1, s{S_XCC}')
            g.i(f'v_mov_b32 v{V_T0}, {DBG_MASK}')
            g.i(f'v_mov_b32 v{V_T1}, s{S_T0}')
            g.i(f'global_atomic_or v{V_T0}, v{V_T1}, s[{S_DBG}:{S_DBG+1}]')
            g.i('s_waitcnt vmcnt(0)')
        g.i(f'v_mov_b32 v{V_T0}, {DBG_INIT}')
        g.i(f'v_mov_b32 v{V_T1}, 1')
        g.i(f'global_atomic_add v{V_T0}, v{V_T1}, s[{S_DBG}:{S_DBG+1}]')
        g.i('s_mov_b64 exec, -1')
        g.label(s2)
        g.vm_q = []

    def load_weights(self, R):
        g = self.g
        ptr = {'q': S_PTR + 2, 'k': S_PTR + 4, 'v': S_PTR + 6, 'o': S_PTR + 8}
        state = {'cur': None}
        g.i(f's_lshl_b32 s{S_T2}, s{S_H}, 8')
        g.i(f's_lshl_b32 s{S_T0}, s{S_W}, 6')
        g.i(f's_add_u32 s{S_T2}, s{S_T2}, s{S_T0}')
        g.i(f's_mul_i32 s{S_T3}, s{S_H}, {128*1152}')
        g.i(f's_mul_i32 s{S_T0}, s{S_W}, 288')
        g.i(f's_add_u32 s{S_T3}, s{S_T3}, s{S_T0}')
        g.i(f's_mul_i32 s{S_PF}, s{S_W}, 36864')
        g.i(f's_add_u32 s{S_PF}, s{S_PF}, {L_W}')

        def issue(n):
            p = SEQ[n]
            if state['cur'] != p[0]:
                self.set_srd(ptr[p[0]], 4718592)
                state['cur'] = p[0]
            blk = n % 9
            for q in range(4):
                if p[0] == 'o':
                    uni = (64 * p[1] + 16 * q) * 1152 + p[2] * 64
                    base, va = S_T3, R['LO']
                elif p[1] % 3 < 2:
                    uni = (16 * (9 * q + 3 * (p[1] // 3)) + 4 * (p[1] % 3)) * 8192
                    base, va = S_T2, R['LA']
                else:
                    uni = 16 * (9 * q + 3 * (p[1] // 3) + 2) * 8192
                    base, va = S_T2, R['LB']
                g.i(f's_add_u32 m0, s{S_PF}, {blk * 4096 + q * 1024}')
                g.i(f's_add_u32 s{S_T0}, s{base}, {uni}')
                g.i(f'buffer_load_dwordx4 v{va}, s[{S_W8}:{S_W8+3}], s{S_T0} offen lds', tag=('w', n))

        for n in range(9):
            issue(n)
        QOFF = [0, 256, 2048, 2304]
        for n, p in enumerate(SEQ):
            g.wait_vm(('w', n))
            blk = n % 9
            inlds = p in LDS_PAIRS
            for x in range(2):
                if p[0] == 'o' and p[2] == 4 and x == 1:
                    continue
                for q in range(4):
                    if inlds:
                        dst = vr(V_STG + 8 * x + 2 * q, 2)
                    else:
                        k, b = REGMAP[(p, x, 'base')]
                        dst = (ar if k == 'a' else vr)(b + 2 * q, 2)
                    if p[0] in 'qk':
                        g.i(f'ds_read_b64_tr_b16 {dst}, v{R["TQ"]} offset:{blk * 4096 + QOFF[q] + 8 * x}')
                    else:
                        g.i(f'ds_read_b64_tr_b16 {dst}, v{R["TR"]} offset:{blk * 4096 + QOFF[q] + 32 * x}')
            g.wait_lds()
            if inlds:
                for y in range(4):
                    g.i(f'ds_write_b128 v{V_WL}, {vr(V_STG + 4 * y, 4)} offset:{blk * 4096 + y * 1024}')
                g.wait_lds()
            elif n + 9 < len(SEQ):
                issue(n + 9)

    def wait_word(self, off, val, bail):
        g = self.g
        lp, ok = g.newlabel('ww'), g.newlabel('ww')
        g.i(f's_mov_b32 s{S_TRY}, 0')
        g.i(f'v_mov_b32 v{V_T0}, {off}')
        g.label(lp)
        g.i(f'global_load_dword v{V_T1}, v{V_T0}, s[{S_DBG}:{S_DBG+1}] sc1')
        g.wait_vm()
        g.i(f'v_readfirstlane_b32 s{S_T0}, v{V_T1}')
        g.i(f's_cmp_ge_u32 s{S_T0}, {val}')
        g.i(f's_cbranch_scc1 {ok}')
        g.i('s_sleep 2')
        g.i(f's_add_u32 s{S_TRY}, s{S_TRY}, 1')
        g.i(f's_cmp_lt_u32 s{S_TRY}, {SPIN_MAX}')
        g.i(f's_cbranch_scc1 {lp}')
        g.i(f's_branch {bail}')
        g.label(ok)

    def spin_ready(self, soff, sneed, bail, first_loaded=False):
        g = self.g
        lp, chk, ok = g.newlabel('rd'), g.newlabel('rd'), g.newlabel('rd')
        g.i(f's_mov_b32 s{S_TRY}, 0')
        if first_loaded:
            g.i(f's_branch {chk}')
        g.label(lp)
        g.i(f'buffer_load_dword v{V_MST}, off, s[{S_WS}:{S_WS+3}], s{soff} sc1')
        g.label(chk)
        g.wait_vm()
        g.i(f'v_readfirstlane_b32 s{S_T0}, v{V_MST}')
        g.i(f's_cmp_ge_u32 s{S_T0}, {sneed}')
        g.i(f's_cbranch_scc1 {ok}')
        g.i('s_sleep 4')
        g.i(f's_add_u32 s{S_TRY}, s{S_TRY}, 1')
        g.i(f's_cmp_lt_u32 s{S_TRY}, {SPIN_MAX}')
        g.i(f's_cbranch_scc1 {lp}')
        g.i(f's_branch {bail}')
        g.label(ok)

    def start(self, bail, done):
        g = self.g
        self.wait_word(DBG_INIT, 32, bail)
        g.i(f'v_mov_b32 v{V_T0}, {DBG_MASK}')
        g.i(f'global_load_dword v{V_T1}, v{V_T0}, s[{S_DBG}:{S_DBG+1}] sc1')
        g.wait_vm()
        g.i(f'v_readfirstlane_b32 s{S_XCC}, v{V_T1}')
        sk = g.newlabel('st')
        g.i(f's_lshl_b32 s{S_RDY}, s{S_H}, 2')
        g.i(f's_add_u32 s{S_RDY}, s{S_RDY}, {OFF_FLAG + FL_P1}')
        g.i(f's_mov_b32 s{S_RNEED}, 2')
        g.i(f's_mov_b32 s{S_PF}, 0')
        g.i(f's_cmp_lg_u32 s{S_W}, 3')
        g.i(f's_cbranch_scc1 {sk}')
        self.wait_word(DBG_LN, N_LN, bail)
        for r in range(3):
            g.i(f's_add_u32 s{S_T1}, s{S_RDY}, {512 * r}')
            self.spin_ready(S_T1, 1, bail)
        g.label(sk)
        self.after_wait()
        slow = g.newlabel('slow')
        g.i(f's_bcnt1_i32_b32 s{S_T0}, s{S_XCC}')
        g.i(f's_cmp_gt_u32 s{S_T0}, 1')
        g.i(f's_cbranch_scc1 {slow}')
        self.loops(bail, done, False)
        g.label(slow)
        self.loops(bail, done, True)

    def stage_list(self, p):
        def mk(y):
            def f():
                self.g.i(f'ds_read_b128 {vr(V_STG + 4 * y, 4)}, v{V_WL} offset:{LDS_BLOCK[p] * 4096 + y * 1024}',
                         tag=('stg', p, y >> 1))
                self.staged[y] = p
            return f
        return [mk(y) for y in range(4)]

    def stage(self, p):
        for f in self.stage_list(p):
            f()

    def bop(self, p, x):
        if p in LDS_PAIRS:
            assert self.staged[2 * x] == p and self.staged[2 * x + 1] == p, (p, x, self.staged)
            self.g.wait_lds(('stg', p, x))
            return vr(V_STG + 8 * x, 8)
        return REGMAP[(p, x)]

    def smf(self, acc, a, p, x):
        if p[0] != 'o':
            assert self.ring[(a - V_AR) // 4] == p[1], (p, self.ring)
        b = self.bop(p, x)
        self.g.i(f'v_smfmac_f32_16x16x64_bf16 {vr(acc,4)}, {vr(a,4)}, {b}, v{V_IDX}')

    def aread(self, t, ph):
        self.ring[t % 3] = t
        self.g.i(f'ds_read_b128 {vr(V_AR + 4 * (t % 3), 4)}, v{V_L16} offset:{L_M + t * 1024}', tag=('a', ph, t))

    def flag_store(self):
        g = self.g
        g.i('s_mov_b64 exec, 1')
        g.i(f'buffer_store_dword v{V_IDX}, off, s[{S_WS}:{S_WS+3}], s{S_FLG} sc1')
        g.i('s_mov_b64 exec, -1')

    def loop(self, bail, done, role, slow=False):
        g = self.g
        opt = self.opt
        comm = role < 3
        WS = f's[{S_WS}:{S_WS+3}]'
        XS = 'sc1' if slow else ''
        top = g.newlabel('step')
        Q0, K0, Q1, K1 = [V_ACC + 4 * k for k in range(4)]
        VA0, VA1 = Q0, K0
        MA = [V_X0, V_X1, V_KXD]
        fill = []
        mq = []

        def run(f):
            if isinstance(f, str):
                g.i(f)
            else:
                f()

        def pop(n=1, m=1):
            for _ in range(m):
                if mq:
                    run(mq.pop(0))
            for _ in range(n):
                if fill:
                    run(fill.pop(0))

        def smf(acc, a, p, x):
            self.smf(acc, a, p, x)
            if p in STG_NEXT:
                k = 0
                while k < len(mq) and getattr(mq[k], 'stg', False):
                    k += 1
                for f in self.stage_list(STG_NEXT[p])[2 * x:2 * x + 2]:
                    f.stg = True
                    mq.insert(k, f)
                    k += 1

        MB = [V_STG, V_STG + 4, V_STG + 8]

        def mload(S, tg):
            for k in range(3):
                g.i(f'buffer_load_dwordx4 {vr(S[k],4)}, v{V_MW}, {WS}, s{S_MCUR} offen offset:{1024*k} sc1', tag=(tg, k))

        def mpiece(S, tg, k):
            g.wait_vm((tg, k))
            g.i(f'ds_write_b128 v{V_MW}, {vr(S[k],4)} offset:{L_M + 1024*k}', tag='mw')
            if k == 0:
                g.i(f'v_max3_u32 v{V_T0}, v{S[0]}, v{S[0]+1}, v{S[0]+2}')
                g.i(f'v_max_u32 v{V_T0}, v{V_T0}, v{S[0]+3}')
            else:
                g.i(f'v_max3_u32 v{V_T0}, v{V_T0}, v{S[k]}, v{S[k]+1}')
                g.i(f'v_max3_u32 v{V_T0}, v{V_T0}, v{S[k]+2}, v{S[k]+3}')
            if k == 2:
                g.i(f'v_cmp_eq_u32 vcc, -1, v{V_T0}')

        cold = []

        def count_try():
            g.i(f's_add_u32 s{S_TRY}, s{S_TRY}, 1')
            g.i(f's_cmp_gt_u32 s{S_TRY}, {SPIN_MAX}')
            g.i(f's_cbranch_scc1 {bail}')

        def pingpong(load, check, A, B, sdiag, sstat=94):
            again, ok = g.newlabel('pp'), g.newlabel('ok')
            check(A, 'A')
            g.i(f's_cbranch_vccnz {again}')
            g.label(ok)
            if self.diag:
                g.i(f's_mov_b32 s{sdiag}, s{S_TRY}')
            if 'stat' in opt:
                g.i(f's_add_u32 s{sstat}, s{sstat}, s{S_TRY}')
            n = len([t for t in g.vm_q if t and t[0] == 'B'])

            def retry():
                g.label(again)
                g.vm_q = [('B', k) for k in range(n)]
                load(A, 'A')
                count_try()
                check(B, 'B')
                g.i(f's_cbranch_vccz {ok}')
                load(B, 'B')
                g.i(f's_add_u32 s{S_TRY}, s{S_TRY}, 1')
                check(A, 'A')
                g.i(f's_cbranch_vccz {ok}')
                g.i(f's_branch {again}')
                g.forget()
            cold.append(retry)

        def mcheck(S, tg):
            for k in range(3):
                mpiece(S, tg, k)

        def g2load():
            g.i(f'buffer_load_dwordx4 {vr(V_X1,4)}, v{V_L16}, {WS}, s{S_T1} offen offset:{1024*(role-1)} sc1', tag='g2')

        def g2check():
            g.wait_vm('g2')
            g.i(f'ds_write_b128 v{V_L16}, {vr(V_X1,4)} offset:{L_M + 1024*(5+role)}', tag='mw')
            g.i(f'v_max3_u32 v{V_T0}, v{V_X1}, v{V_X1+1}, v{V_X1+2}')

        def g2check2():
            g.i(f'v_max_u32 v{V_T0}, v{V_T0}, v{V_X1+3}')
            g.i(f'v_cmp_eq_u32 vcc, -1, v{V_T0}')

        def g2verify():
            ml, ok = g.newlabel('ml'), g.newlabel('mok')
            g.i(f's_cbranch_vccnz {ml}')
            g.label(ok)
            if self.diag and role == 2:
                g.i(f's_mov_b32 s99, s{S_TRY}')

            def retry():
                g.label(ml)
                g.vm_q = []
                g2load()
                count_try()
                g2check()
                g2check2()
                g.i(f's_cbranch_vccnz {ml}')
                g.wait_lds()
                g.i(f's_branch {ok}')
                g.forget()
            cold.append(retry)

        def syload():
            g.i(f'buffer_load_dword v{V_RED}, v{V_L16}, {WS}, s{S_SYN} offen sc1', tag='sy')

        def hook(n):
            if role != 3 or not self.sync:
                return
            if n == self.sync[0]:
                g.i(f'v_mov_b32 v{K1}, s{S_TAG}')
                g.i(f'buffer_store_dword v{K1}, off, {WS}, s{S_SYO} {XS}')
            if n in self.sync[1]:
                syload()

        def hold(bridge):
            if role != 3 or not self.sync:
                return
            K = len(self.sync[1])
            sp, ok = g.newlabel('sy'), g.newlabel('sok')
            g.i(f's_waitcnt vmcnt({K-1})')
            g.i(f'v_cmp_gt_u32 vcc, s{S_TAG}, v{V_RED}')
            g.i('s_cmp_lg_u32 vcc_lo, 0')
            g.i(f's_cbranch_scc1 {sp}')
            g.label(ok)

            def spin():
                g.label(sp)
                syload()
                g.i(bridge)
                count_try()
                g.i(f's_waitcnt vmcnt({K-1})')
                g.i(f'v_cmp_gt_u32 vcc, s{S_TAG}, v{V_RED}')
                g.i('s_cmp_lg_u32 vcc_lo, 0')
                g.i(f's_cbranch_scc1 {sp}')
                if 'stat' in opt:
                    g.i(f's_add_u32 s94, s94, s{S_TRY}')
                g.i(f's_branch {ok}')
                g.forget()
            cold.append(spin)

        kvx = [lambda: g.i(f'buffer_load_dwordx4 {vr(V_KXD,4)}, v{V_KX}, {WS}, s{S_KX} offen sc1', tag='kx'),
               lambda: g.i(f'buffer_load_dwordx4 {vr(V_KXD+4,4)}, v{V_KX}, {WS}, s{S_KX} offen offset:64 sc1', tag='kx'),
               lambda: g.i(f'buffer_load_dwordx4 {vr(V_X0,4)}, v{V_VX}, {WS}, s{S_VX} offen sc1', tag='vx'),
               lambda: g.i(f'buffer_load_dwordx4 {vr(V_X1,4)}, v{V_VX}, {WS}, s{S_VX} offen offset:256 sc1', tag='vx')]
        pub = lambda: g.i(f'buffer_store_dwordx4 {vr(V_PUB,4)}, v{V_L16}, {WS}, s{S_KM} offen {"" if "plainpub" in opt else "sc1"}')

        def zero_acc():
            for k in range(0, 16, 2):
                g.i(f'v_mov_b64 {vr(V_ACC+k,2)}, 0')

        g.label(top)
        g.lds_q = []; g.vm_q = []
        self.nst = 0; self.names = []
        g.i(f's_mov_b32 s{S_TRY}, 0')
        self.stamp('top', 2)
        g.i(f's_add_u32 s{S_T1}, s{S_MCUR}, 6144')
        if self.dq2 and comm:
            g.i(f's_waitcnt vmcnt({3 if self.diag else 2})')
        zero_acc()
        if role < 2:
            g.pad(self.dm[role])
            self.stamp('m issue', 3)
            mload(MA, 'A')
            g.pad(self.dq)
            mload(MB, 'B')
            self.stamp('mB issued', 2)
            pingpong(mload, mcheck, MA, MB, 99)
        else:
            self.stamp('m issue', 3)
            self.stamp('mB issued', 2)
        g.wait_lds()
        self.stamp('m in lds')
        g.i('s_barrier')
        self.stamp('B1')
        if self.diag:
            g.i('s_memrealtime s[100:101]')
        ard = lambda t, ph: (lambda: self.aread(t, ph))
        for t in range(3):
            self.aread(t, 0)
        g.vm_q = []
        if role > 0:
            g2load()
        if role < 2:
            mq.append(f's_waitcnt vmcnt({1 if role else 0})')
        mq += self.stage_list(LDS_PAIRS[0])
        if role >= 2:
            pop(0, 2)
        mq += kvx[:3]
        BP, MP = self.bp, self.mp
        for t in range(7):
            a = V_AR + 4 * (t % 3)
            for x, (acc, mat, tl) in enumerate([(Q0, 'q', 0), (Q1, 'q', 1), (K0, 'k', 0), (K1, 'k', 1)]):
                n = 4 * t + x
                if n == 20 + BP:
                    g.wait_lds('mw')
                    g.i('s_barrier')
                    self.aread(t + 1, 0)
                    mq[0:0] = [ard(t + 2, 0)]
                    mq.append(kvx[3])
                if x == 0 and (mat, t) not in LDS_PAIRS:
                    g.wait_lds(('a', 0, t))
                if x == 0 and (mat, t) in LDS_PAIRS:
                    g.wait_lds2(('a', 0, t), ('stg', (mat, t), 0))
                smf(acc, a, (mat, t), tl)
                if x == 3:
                    if t in (0, 1, 2, 5):
                        mq[0:0] = [ard(t + 3, 0)]
                    if t == 6:
                        mq[0:0] = [ard(0, 1)]
                if role > 0 and n == MP:
                    g2check()
                elif role > 0 and n == MP + 1:
                    g2check2()
                    pop(0, 1)
                elif role > 0 and n == MP + 2:
                    g2verify()
                else:
                    pop(1, 3 if n == 0 else 2 if n == 1 else 1)
        g.i(f's_mov_b64 vcc, s[{S_M3}:{S_M3+1}]')
        a7, a8 = V_AR + 4 * (7 % 3), V_AR + 4 * (8 % 3)
        mq.append(pub)

        def half(x, dst):
            return [f'v_add_f32 v{x}, v{x}, v{x+2}', f'v_add_f32 v{x+1}, v{x+1}, v{x+3}',
                    f'v_cvt_pk_bf16_f32 v{dst}, v{x}, v{x+1}']
        g.wait_lds(('a', 0, 7))
        smf(Q0, a7, ('q', 7), 0)
        pop()
        g.wait_lds(('a', 0, 8))
        smf(Q0, a8, ('q', 8), 0)
        pop()
        smf(K0, a8, ('k', 8), 0)
        pop()
        smf(K0, a7, ('k', 7), 0)
        while pub in mq:
            pop(0, 1)
        fill += half(Q0, V_PUB) + half(K0, V_PUB + 1)
        pop(1)
        smf(Q1, a8, ('q', 8), 1)
        pop(2)
        smf(Q1, a7, ('q', 7), 1)
        pop(2)
        smf(K1, a8, ('k', 8), 1)
        mq.append(ard(2, 1))
        pop(1)
        g.i(f'v_mov_b64 {vr(Q0,2)}, 0')
        smf(K1, a7, ('k', 7), 1)
        mq[0:0] = [ard(1, 1)]
        pop(0)
        g.i(f'v_mov_b64 {vr(Q0+2,2)}, 0')
        self.stamp('qk done')
        vq = [(t, x) for t in range(9) for x in range(2)]

        def vs(n, f=1):
            for _ in range(n):
                t, x = vq.pop(0)
                a = V_AR + 4 * (t % 3)
                if ('v', t) in LDS_PAIRS:
                    g.wait_lds2(('a', 1, t), ('stg', ('v', t), x))
                else:
                    g.wait_lds(('a', 1, t))
                smf(VA0 if x == 0 else VA1, a, ('v', t), x)
                if x == 1 and t + 3 < 9:
                    mq[0:0] = [ard(t + 3, 1)]
                pop(f)
        ID = vr(V_ID0, 2)
        QK, T0R = Q1, K1
        g.i(f'v_mfma_f32_16x16x16_bf16 {vr(K0,4)}, {vr(V_PUB,2)}, {ID}, 0')
        for f in half(Q1, V_PUB + 2):
            g.i(f)
        pop(0)
        for f in half(K1, V_PUB + 3):
            g.i(f)
        g.i(f'v_cvt_pk_bf16_f32 v{QK}, v{K0}, v{K0+1}')
        g.i(f'v_cvt_pk_bf16_f32 v{QK+1}, v{K0+2}, v{K0+3}')
        g.i(f'v_mfma_f32_16x16x16_bf16 {vr(K1,4)}, {vr(V_PUB+2,2)}, {ID}, 0')
        g.i(f'v_mov_b64 {vr(K0,2)}, 0')
        g.i(f'v_mov_b64 {vr(K0+2,2)}, 0')
        vs(2)
        g.i(f'v_cvt_pk_bf16_f32 v{QK+2}, v{K1}, v{K1+1}')
        g.i(f'v_cvt_pk_bf16_f32 v{QK+3}, v{K1+2}, v{K1+3}')
        pop(0)
        self.stamp('pre qk wait', 1)
        g.wait_vm('kx')
        g.i(f'v_mfma_f32_16x16x32_bf16 {vr(V_KXD,4)}, {vr(V_KXD,4)}, {vr(QK,4)}, 0')
        pop(0)
        g.i(f'v_mfma_f32_16x16x32_bf16 {vr(V_KXD+4,4)}, {vr(V_KXD+4,4)}, {vr(QK,4)}, 0')
        pop(0)
        g.i(f'v_mfma_f32_16x16x32_bf16 {vr(T0R,4)}, {vr(QK,4)}, {vr(QK,4)}, 0')
        vs(1)
        for r in range(4):
            g.i(f'v_cndmask_b32_dpp v{V_KXD+r}, v{V_KXD+4+r}, v{V_KXD+r}, vcc quad_perm:[0,1,0,1] row_mask:0xf bank_mask:0xf')
        g.i(f'ds_write_b128 v{V_SWX}, {vr(V_KXD,4)} offset:{L_QK}')
        g.i(f'v_cndmask_b32_dpp v{T0R+2}, v{T0R+3}, v{T0R+2}, vcc quad_perm:[0,1,0,1] row_mask:0xf bank_mask:0xf')
        g.i(f'ds_write_b32 v{V_SWM}, v{T0R+2} offset:{L_SM}', tag='sw')
        if not comm:
            mq += self.slow_io()
        X = V_STG
        M = Q1
        PB = V_KXD + 2
        WL_, WM, WR = V_X0 - 2, V_T0, V_KXD
        fill += [f'v_mov_b32 v{PB}, 0', f'v_mov_b32 v{PB+5}, 0', f'v_mov_b32 v{WL_}, 0', f'v_mov_b32 v{WR+1}, 0']
        vs(self.nb)
        assert vq[0][0] > 2
        g.wait_lds('sw')
        self.stamp('S written', 1)
        g.i('s_barrier')
        self.stamp('B2')
        rd = [(lambda w=w: g.i(f'ds_read_b128 {vr(X+4*w,4)}, v{V_L16} offset:{L_QK + 1024*w}', tag=('sx', w))) for w in range(4)]
        rd.append(lambda: g.i(f'ds_read_b128 {vr(M,4)}, v{V_L16} offset:{L_SM}', tag='sm'))
        rd[0](); rd[1]()
        keep = list(mq); del mq[:]
        vs(1, 0)
        rd[2](); rd[3](); rd[4]()
        hook(0)
        mq += keep
        vs(len(vq) - 3)
        g.wait_lds(('sx', 1))
        hook(1)
        fill += [f'v_add_f32 v{X+r}, v{X+r}, v{X+4+r}' for r in range(4)]
        pop(1)
        vs(2)
        g.wait_lds('sm')
        fill += [f'v_add_f32 v{M}, v{M}, v{M+1}', f'v_add_f32 v{M+2}, v{M+2}, v{M+3}', f'v_add_f32 v{M}, v{M}, v{M+2}']
        vs(1)
        assert not vq
        pop(100, 100)
        hook(2)
        g.i(f'v_pk_add_f32 {vr(X+8,2)}, {vr(X+8,2)}, {vr(X+12,2)}')
        g.i(f'v_pk_add_f32 {vr(X+10,2)}, {vr(X+10,2)}, {vr(X+14,2)}')
        g.i(f'v_pk_add_f32 {vr(X,2)}, {vr(X,2)}, {vr(X+8,2)}')
        g.i(f'v_pk_add_f32 {vr(X+2,2)}, {vr(X+2,2)}, {vr(X+10,2)}')
        MX, MY = M + 2, M + 3
        ONE = V_AR
        g.i(f'v_max3_f32 v{MX}, v{X}, v{X+1}, v{M}')
        g.i(f'v_max3_f32 v{MX}, v{MX}, v{X+2}, v{X+3}')
        hook(3)
        g.i(f'v_pk_add_f32 {vr(VA0,2)}, {vr(VA0,2)}, {vr(VA0+2,2)}')
        g.i(f'v_pk_add_f32 {vr(VA1,2)}, {vr(VA1,2)}, {vr(VA1+2,2)}')
        g.i(f'v_max_f32_dpp v{MY}, v{MX}, v{MX} row_ror:8 row_mask:0xf bank_mask:0xf')
        g.i(f'v_max_f32_dpp v{MX}, v{MX}, v{MX} row_ror:8 row_mask:0xf bank_mask:0xf')
        g.i(f'v_cvt_pk_bf16_f32 v{WM}, v{VA0}, v{VA0+1}')
        g.i(f'v_cvt_pk_bf16_f32 v{WM+1}, v{VA1}, v{VA1+1}')
        g.i(f'v_permlane16_swap_b32 v{MX}, v{MY}')
        hook(4)
        g.i(f'v_max_f32 v{M+1}, v{MX}, v{MY}')
        g.i(f'v_max_f32 v{MX}, v{MX}, v{MY}')
        g.i(f'v_mov_b32 v{WL_+1}, v{WM}')
        g.i(f'v_mov_b32 v{WR}, v{WM+1}')
        g.i(f'v_permlane32_swap_b32 v{MX}, v{M+1}')
        g.i(f'v_max_f32 v{MX}, v{MX}, v{M+1}')
        g.i(f'v_mul_f32 v{MX}, s{S_C}, v{MX}')
        hook(5)
        g.i(f'v_fma_f32 v{M}, v{M}, s{S_C}, -v{MX}')
        for r in (0, 2):
            g.i(f'v_pk_fma_f32 {vr(X+r,2)}, {vr(X+r,2)}, s[{S_C2}:{S_C2+1}], {vr(MX,2)} op_sel_hi:[1,1,0] neg_lo:[0,0,1] neg_hi:[0,0,1]')
        g.i(f'v_exp_f32 v{M}, v{M}')
        for r in range(4):
            g.i(f'v_exp_f32 v{X+r}, v{X+r}')
        g.i(f'v_cvt_pk_bf16_f32 v{M}, v{M}, 0')
        hook(6)
        g.i(f'v_cvt_pk_bf16_f32 v{PB+2}, v{X}, v{X+1}')
        g.i(f'v_lshlrev_b32 v{PB+4}, v{V_SH}, v{M}')
        g.i(f'v_cvt_pk_bf16_f32 v{PB+3}, v{X+2}, v{X+3}')
        g.i(f'v_lshlrev_b32 v{PB+1}, v{V_SH}, v{M}')
        self.stamp('softmax done', 1)
        g.wait_vm('vx')
        DL = V_AR + 4
        D = V_STG
        g.i(f'v_mfma_f32_16x16x32_bf16 {vr(D+4,4)}, {vr(V_X0+2,4)}, {vr(PB+2,4)}, 0')
        hook(7)
        g.i(f'v_mov_b64 {vr(ONE,2)}, s[{S_ONE}:{S_ONE+1}]')
        g.i(f'v_mov_b64 {vr(ONE+2,2)}, s[{S_ONE}:{S_ONE+1}]')
        g.i(f'v_mfma_f32_16x16x32_bf16 {vr(D,4)}, {vr(WL_,4)}, {vr(PB,4)}, 0')
        g.i(f'v_mov_b32 v{V_PUB}, v{WM}')
        g.i(f'v_mov_b32 v{V_PUB+2}, v{WM+1}')
        g.i(f'v_mfma_f32_16x16x32_bf16 {vr(DL,4)}, {vr(ONE,4)}, {vr(PB,4)}, 0')
        g.i(f'v_mov_b64 {vr(V_ACC,2)}, 0')
        g.i(f'v_mov_b64 {vr(V_ACC+2,2)}, 0')
        g.i(f'v_mfma_f32_16x16x32_bf16 {vr(D+8,4)}, {vr(WM,4)}, {vr(PB,4)}, 0')
        hook(8)
        O = V_AR + 8
        RL = V_AR + 2
        g.i(f'v_add_f32_dpp v{O}, v{D+4}, v{D} row_ror:8 row_mask:0xf bank_mask:0x3')
        g.i(f'v_add_f32_dpp v{O+1}, v{D+5}, v{D+1} row_ror:8 row_mask:0xf bank_mask:0x3')
        g.i(f'v_mfma_f32_16x16x32_bf16 {vr(D+12,4)}, {vr(V_X1+2,4)}, {vr(PB+2,4)}, 0')
        g.i(f'v_add_f32_dpp v{RL}, v{DL}, v{DL} row_ror:8 row_mask:0xf bank_mask:0xf')
        g.i(f'v_add_f32_dpp v{O+2}, v{D+6}, v{D+2} row_ror:8 row_mask:0xf bank_mask:0x3')
        g.i(f'v_add_f32_dpp v{O+3}, v{D+7}, v{D+3} row_ror:8 row_mask:0xf bank_mask:0x3')
        g.i(f'v_rcp_f32 v{RL}, v{RL}')
        hook(9)
        st = self.stage_list(('o', 0, 0))
        st[0](); st[1]()
        g.i(f's_cmp_eq_u32 s{S_STEP}, {NSEG-1}')
        g.i(f's_cbranch_scc1 {done}')
        for r in range(4):
            g.i(f'v_add_f32_dpp v{O+r}, v{D+8+r}, v{D+12+r} row_ror:8 row_mask:0xf bank_mask:0xc')
        for r in (0, 2):
            g.i(f'v_pk_mul_f32 {vr(O+r,2)}, {vr(O+r,2)}, {vr(RL,2)} op_sel_hi:[1,0]')
        g.i(f'v_cvt_pk_bf16_f32 v{O}, v{O}, v{O+1}')
        g.i(f'v_cvt_pk_bf16_f32 v{O+1}, v{O+2}, v{O+3}')
        g.i(f'ds_write_b64 v{V_OW}, {vr(O,2)} offset:{L_M}', tag='ow')
        hook(10)
        Z = vr(V_ACC, 4)
        st[2](); st[3]()
        for k in range(4, 8):
            g.i(f'v_mov_b32 v{V_ACC+k}, 0')
        zm = f'v_mfma_f32_32x32x16_bf16 {vr(V_ACC+8,16)}, {Z}, {Z}, 0'
        g.i(zm)
        hold(zm)
        g.wait_lds('ow')
        self.stamp('o written', 1)
        g.i('s_barrier')
        self.stamp('B3', 1)
        AO = V_AR + 2
        TA, TB = V_AR + 10, V_AR + 11
        g.i(f'ds_read_b128 {vr(AO,4)}, v{V_L16} offset:{L_M}', tag=('oa', 0))
        g.i(f'v_mov_b32 v{V_ACC+24}, 0')
        g.i(f'ds_read_b128 {vr(AO+4,4)}, v{V_L16} offset:{L_M + 1024}', tag=('oa', 1))
        for k in range(25, 36):
            g.i(f'v_mov_b32 v{V_ACC+k}, 0')
        R = V_ACC + 4

        def rload(S, tg):
            for n in range(4):
                g.i(f'buffer_load_dwordx4 {vr(S+4*n,4)}, v{V_RED}, {WS}, s{S_RED+n} offen sc1', tag=(tg, n))

        def post(pt):
            pa, OUT = V_ACC + 4 * pt, V_ACC + 12 * (pt // 3)
            L = half(pa, OUT + pt % 3)
            if pt % 3 == 0:
                L.append(f'v_mov_b32 v{OUT+3}, s{S_TAG}')
            if pt % 3 == 2:
                L.append(f'buffer_store_dwordx4 {vr(OUT,4)}, v{V_L16}, {WS}, s{S_PST + pt // 3} offen {XS}')
                if pt < 8 and self.diag in (2, 3):
                    L.append(lambda: self.stamp(f'store g{pt//3}', self.diag))
            return L
        self.stamp('wo start')
        g.vm_q = []
        for tile in range(9):
            acc = V_ACC + 4 * tile
            g.wait_lds(('oa', 0))
            smf(acc, AO, ('o', 0, tile >> 1), tile & 1)
            pop(2)
            g.wait_lds(('oa', 1))
            smf(acc, AO + 4, ('o', 1, tile >> 1), tile & 1)
            if tile >= 1:
                fill += post(tile - 1)
            pop(2)
        pop(100)
        last = post(8)
        for f in last[:-1]:
            run(f)
        SEL, RD = V_AR + 2, V_AR + 6
        SN = V_KXD + 6
        if not self.b4:
            run(last[-1])
        self.stamp('wo done')
        if role == 0 and not self.dr[0]:
            rload(R, 'A')
        if comm:
            g.i(f'v_bfe_u32 v{TA}, v{V_L16}, 6, 1')
            g.i(f'v_lshlrev_b32 v{TA}, 4, v{TA}')
            g.i(f'v_mov_b32 v{TB}, 0x3f80')
            g.i(f'v_lshlrev_b32 v{TA}, v{TA}, v{TB}')
            g.i(f'v_cndmask_b32 v{SEL}, 0, v{TA}, s[{S_M1}:{S_M1+1}]')
            g.i(f's_lshl_b64 vcc, s[{S_M1}:{S_M1+1}], 1')
            g.i(f'v_cndmask_b32 v{SEL+1}, 0, v{TA}, vcc')
            g.i(f's_lshl_b64 vcc, s[{S_M1}:{S_M1+1}], 8')
            g.i(f'v_cndmask_b32 v{SEL+2}, 0, v{TA}, vcc')
            g.i(f'v_mov_b32 v{SEL+3}, 0')
            g.i(f'v_mov_b32 v{SN}, -1')
            g.i(f's_mov_b32 s{S_TRY}, 0')
        if self.b4:
            if role == 1 or (role == 0 and self.dr[0]):
                g.pad(self.dr[role])
                self.stamp('r issue', 3)
                rload(R, 'A')
            g.i('s_barrier')
            run(last[-1])
        if comm:
            self.advance()
            if role == 2 or (not self.b4 and (role == 1 or self.dr[0])):
                g.pad(self.dr[role])
                self.stamp('r issue', 3)
                rload(R, 'A')
            if self.dq2:
                g.pad(self.dq2)
                rload(V_STG, 'B')
            self.stamp('rB issued', 2)
            first = [True]

            def rsum(S, tg):
                for n in range(4):
                    g.wait_vm((tg, n))
                    if first[0] and n in (0, 3):
                        self.stamp(f'rA{n} here', 2)
                        first[0] = n == 0
                    g.i(f'v_mfma_f32_16x16x32_bf16 {vr(RD,4)}, {vr(SEL,4)}, {vr(S+4*n,4)}, {vr(RD,4) if n else 0}')
                    if n & 1:
                        g.i(f'v_bitop3_b32 v{TA + (n>>1)}, v{S+4*n-1}, v{S+4*n+3}, s{S_TAG} bitop3:0x7e')
                g.i(f'v_or_b32 v{TA}, v{TA}, v{TB}')
                g.i(f'v_cmp_ne_u32 vcc, 0, v{TA}')
            if self.dq2:
                pingpong(rload, rsum, R, V_STG, 98, 95)
            else:
                rl, rok = g.newlabel('rl'), g.newlabel('rok')
                rsum(R, 'A')
                g.i(f's_cbranch_vccnz {rl}')
                g.label(rok)
                if self.diag:
                    g.i(f's_mov_b32 s98, s{S_TRY}')
                if 'stat' in opt:
                    g.i(f's_add_u32 s95, s95, s{S_TRY}')

                def rretry():
                    g.label(rl)
                    g.vm_q = []
                    rload(R, 'A')
                    count_try()
                    rsum(R, 'A')
                    g.i(f's_cbranch_vccnz {rl}')
                    g.i(f's_branch {rok}')
                    g.forget()
                cold.append(rretry)
            self.stamp('r ok', 2)
            g.i(f'v_add_f32_dpp v{RD}, v{RD}, v{RD} row_ror:8 row_mask:0xf bank_mask:0xf')
            g.i(f'v_add_f32_dpp v{RD+1}, v{RD+1}, v{RD+1} row_ror:8 row_mask:0xf bank_mask:0xf')
            g.i(f'v_mov_b32_dpp v{RD+1}, v{RD} quad_perm:[1,1,3,3] row_mask:0xc bank_mask:0xf')
            g.i(f's_mov_b64 exec, s[{S_MS}:{S_MS+1}]')
            g.i(f'v_cvt_pk_bf16_f32 v{TA}, v{RD}, v{RD+1}')
            g.i(f'v_min_u32 v{TA}, -2, v{TA}')
            g.i(f'buffer_store_dword v{TA}, v{V_MST}, {WS}, s{S_MCUR} offen {XS}')
            g.i(f'buffer_store_dword v{SN}, v{V_MST}, {WS}, s{S_MRST} offen {XS}')
            g.i('s_mov_b64 exec, -1')
            self.stamp('m stored')
            self.advance2()
        else:
            self.advance()
            self.advance2()
            if 'warm' in opt:
                for k in range(self.warm):
                    g.i(f'v_mov_b32 v{V_T0}, 0')
                    g.i('s_nop 1')
            self.stamp('r issue', 3)
            for nm in ('rB issued', 'rA0 here', 'rA3 here', 'r ok'):
                self.stamp(nm, 2)
            if self.standalone:
                g.wait_vm()
            else:
                g.i(f's_cmp_ge_u32 s{S_TAG}, {NSEG - 1}')
                g.i(f's_cselect_b32 s{S_RNEED}, 0, s{S_RNEED}')
                self.spin_ready(S_RDY, f's{S_RNEED}', bail, True)
                g.i(f's_add_u32 s{S_RDY}, s{S_RDY}, 512')
                g.i(f's_add_u32 s{S_PF}, s{S_PF}, 1')
                g.i(f's_cmp_eq_u32 s{S_PF}, 3')
                g.i(f's_cselect_b32 s{S_T0}, 1536, 0')
                g.i(f's_cselect_b32 s{S_T1}, 1, 0')
                g.i(f's_cselect_b32 s{S_PF}, 0, s{S_PF}')
                g.i(f's_sub_u32 s{S_RDY}, s{S_RDY}, s{S_T0}')
                g.i(f's_add_u32 s{S_RNEED}, s{S_RNEED}, s{S_T1}')
            self.stamp('m stored')
        self.dump_stamps()
        if 'stat' in opt:
            g.i(f's_cmp_lg_u32 s{S_STEP}, 6')
            g.i(f's_cbranch_scc1 {top}')
            g.i('s_memtime s[90:91]')
            g.i('s_memrealtime s[92:93]')
            g.i('s_mov_b32 s94, 0')
            g.i('s_mov_b32 s95, 0')
            g.i('s_waitcnt lgkmcnt(0)')
        g.settle()
        g.i(f's_branch {top}')
        g.forget()
        for f in cold:
            f()

    def slow_io(self):
        g = self.g
        WS = f's[{S_WS}:{S_WS+3}]'
        L = [self.flag_store] if 'plainpub' not in self.opt else []
        if 'nopf' not in self.opt:
            def pf(base, dst):
                def f():
                    g.i(f's_add_u32 s{S_T0}, s{base}, {2*32*8192}')
                    g.i(f'buffer_load_dword v{dst}, v{V_MW}, {WS}, s{S_T0} offen sc1')
                return f
            L += [pf(S_KX, V_RED), pf(S_VX, V_RED)]
        if not self.standalone:
            L.append(f'buffer_load_dword v{V_MST}, off, {WS}, s{S_RDY} sc1')
        return L

    def advance(self):
        g = self.g
        for j in range(3):
            g.i(f's_xor_b32 s{S_PST+j}, s{S_PST+j}, 0x100000')
        g.i(f's_add_u32 s{S_MCUR}, s{S_MCUR}, 0x4000')
        g.i(f's_and_b32 s{S_MCUR}, s{S_MCUR}, 0xfffeffff')
        if 'fixkv' not in self.opt:
            g.i(f's_add_u32 s{S_KX}, s{S_KX}, {32*8192}')
            g.i(f's_add_u32 s{S_VX}, s{S_VX}, {32*8192}')
        if 'plainpub' not in self.opt:
            g.i(f's_add_u32 s{S_KM}, s{S_KM}, {32*4096}')
        g.i(f's_add_u32 s{S_FLG}, s{S_FLG}, 128')

    def advance2(self):
        g = self.g
        for n in range(4):
            g.i(f's_xor_b32 s{S_RED+n}, s{S_RED+n}, 0x100000')
        g.i(f's_add_u32 s{S_MRST}, s{S_MRST}, 0x4000')
        g.i(f's_and_b32 s{S_MRST}, s{S_MRST}, 0xfffeffff')
        g.i(f's_add_u32 s{S_TAG}, s{S_TAG}, 1')
        if not self.diag:
            g.i(f's_add_u32 s{S_STEP}, s{S_STEP}, 1')

    def loops(self, bail, done, slow=False):
        g = self.g
        lab = [g.newlabel('role') for _ in range(4)]
        for w in range(1, 4):
            g.i(f's_cmp_eq_u32 s{S_W}, {w}')
            g.i(f's_cbranch_scc1 {lab[w]}')
        for w in range(4):
            g.label(lab[w])
            self.loop(bail, done, w, slow)

    def finish(self, fin):
        g = self.g
        g.i(f's_add_u32 s{S_KM}, s{S_KM}, {32*4096}')
        g.i(f'buffer_store_dwordx4 {vr(V_PUB,4)}, v{V_L16}, s[{S_WS}:{S_WS+3}], s{S_KM} offen sc1')
        g.i('s_waitcnt vmcnt(0) lgkmcnt(0)')
        g.i('s_barrier')
        g.i(f's_cmp_lg_u32 s{S_W}, 3')
        g.i(f's_cbranch_scc1 {fin}')
        g.i(f's_add_u32 s{S_FLG}, s{S_FLG}, 128')
        self.flag_store()
        g.i(f's_add_u32 s{S_FLG}, s{S_FLG}, 128')
        self.flag_store()
```

```python
import sys
from asmgen import *
from layout import *
import chain as C
import bulk as B

NAME = 'recurrent_scan__memory_aug_recurrent_mem_tr__dense_activation_silu__prompt'


def dispatch(g, l_chain, l_bulk, force_slow):
    S_W, S_H, T0, T1, DBG, XCC = C.S_W, C.S_H, C.S_T0, C.S_T1, C.S_DBG, C.S_XCC
    g.i('v_lshrrev_b32 v1, 6, v0')
    g.i('v_and_b32 v0, 63, v0')
    g.i(f'v_readfirstlane_b32 s{S_W}, v1')
    g.i(f's_getreg_b32 s{XCC}, hwreg(HW_REG_XCC_ID, 0, 4)')
    rd, tb, tc, wr = [g.newlabel('el') for _ in range(4)]
    g.i(f'v_mov_b32 v2, {C.L_EL}')
    g.i(f's_cmp_lg_u32 s{S_W}, 0')
    g.i(f's_cbranch_scc1 {rd}')
    g.i('s_mov_b64 exec, 1')
    g.i('v_mov_b32 v4, 1')

    def ticket(off):
        g.i(f'v_mov_b32 v3, {off}')
        g.i(f'global_atomic_add v5, v3, v4, s[{DBG}:{DBG+1}] sc0')
        g.wait_vm()
        g.i(f'v_readfirstlane_b32 s{S_H}, v5')
    if force_slow:
        g.i('s_cmp_ge_u32 s2, 16')
    else:
        g.i(f's_cmp_lg_u32 s{XCC}, 0')
    g.i(f's_cbranch_scc1 {tb}')
    ticket(DBG_CHAIN)
    g.i(f's_cmp_lt_u32 s{S_H}, 32')
    g.i(f's_cbranch_scc1 {wr}')
    ticket(DBG_BULK)
    g.i(f's_add_u32 s{S_H}, s{S_H}, 32')
    g.i(f's_branch {wr}')
    g.label(tb)
    ticket(DBG_BULK)
    g.i(f's_add_u32 s{S_H}, s{S_H}, 32')
    g.i(f's_cmp_lt_u32 s{S_H}, 256')
    g.i(f's_cbranch_scc1 {wr}')
    ticket(DBG_CHAIN)
    g.label(wr)
    g.i(f'v_mov_b32 v5, s{S_H}')
    g.i('ds_write_b32 v2, v5')
    g.i('s_mov_b64 exec, -1')
    g.wait_lds()
    g.label(rd)
    g.i('s_barrier')
    g.i('ds_read_b32 v5, v2')
    g.wait_lds()
    g.i(f'v_readfirstlane_b32 s{S_H}, v5')
    g.i('s_barrier')
    g.i(f's_cmp_lt_u32 s{S_H}, 32')
    g.i(f's_cbranch_scc1 {l_chain}')
    g.i(f's_sub_u32 s{S_H}, s{S_H}, 32')


def build(out, diag=0, force_slow=False, prof=False, header='', bopt=(), **kw):
    g = Gen()
    name = NAME + '_kernel'
    g.raw(header + f'; @launch grid=(256,1,1) block=(256,1,1) lds={C.LDS_BYTES}')
    g.raw('.amdgcn_target "amdgcn-amd-amdhsa--gfx950"')
    g.raw('.text'); g.raw(f'.globl {name}'); g.raw('.p2align 8'); g.raw(f'.type {name},@function')
    g.label(name)
    g.i('s_cmp_ge_u32 s2, 256')
    g.i('s_cbranch_scc1 fin0')
    nprof = [0]

    def stamp():
        if prof:
            g.i('s_memrealtime s[100:101]')
            g.i('s_waitcnt lgkmcnt(0)')
            g.i(f's_mov_b32 s{88 + nprof[0]}, s100')
            nprof[0] += 1

    def dump(base):
        if prof:
            for k in range(8):
                g.i(f'v_writelane_b32 v14, s{88 + k}, {k}')
            g.i(f's_lshl_b32 s42, s{C.S_H}, 2')
            g.i(f's_add_u32 s42, s42, s{C.S_W}')
            g.i(f's_lshl_b32 s42, s42, 5')
            g.i(f's_add_u32 s42, s42, {OFF_DIAG + 0x200000 + base}')
            g.i('v_mbcnt_lo_u32_b32 v15, -1, 0')
            g.i('v_lshlrev_b32 v15, 2, v15')
            g.i('s_mov_b64 exec, 0xff')
            g.i(f'buffer_store_dword v14, v15, s[4:7], s42 offen')
    g.i(f's_load_dwordx2 s[{B.P_X}:{B.P_X+1}], s[0:1], 0')
    g.i(f's_load_dwordx2 s[{C.S_PTR}:{C.S_PTR+1}], s[0:1], 8')
    g.i(f's_load_dwordx2 s[{C.S_PTR+2}:{C.S_PTR+3}], s[0:1], 16')
    g.i(f's_load_dwordx4 s[{C.S_PTR+4}:{C.S_PTR+7}], s[0:1], 24')
    g.i(f's_load_dwordx2 s[{C.S_PTR+8}:{C.S_PTR+9}], s[0:1], 40')
    g.i(f's_load_dwordx2 s[{B.P_W1}:{B.P_W1+1}], s[0:1], 64')
    g.i(f's_load_dwordx4 s[{B.P_W2}:{B.P_W2+3}], s[0:1], 72')
    g.i(f's_load_dwordx2 s[{C.S_DBG}:{C.S_DBG+1}], s[0:1], 88')
    g.i(f's_load_dwordx2 s[{C.S_WS}:{C.S_WS+1}], s[0:1], 96')
    if prof:
        for k in range(8):
            g.i(f's_mov_b32 s{88+k}, 0')
    stamp()
    g.i('s_waitcnt lgkmcnt(0)')
    g.i(f's_mov_b32 s{C.S_WS+2}, {WS_BYTES}')
    g.i(f's_mov_b32 s{C.S_WS+3}, 0x20000')
    dispatch(g, 'chain_far', 'bulk', force_slow)
    g.i('s_branch bulk')
    g.label('chain_far')
    g.i('s_branch chain')
    g.label('fin0')
    g.i('s_endpgm')
    g.forget()
    g.label('chain')
    stamp()
    ch = C.Chain(g, diag=diag, standalone=False, opt=kw.pop('opt', ()))
    for k_, v_ in kw.items():
        setattr(ch, k_, v_)
    ch.prologue()
    stamp()
    ch.after_wait = stamp
    ch.start('fin1', 'done')
    g.label('done')
    ch.finish('done2')
    g.label('done2')
    stamp()
    dump(0)
    g.label('fin1')
    g.i('s_endpgm')
    g.forget()
    g.label('bulk')
    nprof[0] = 1
    stamp()
    b = B.Bulk(g, 'fin2', bopt)
    b.setup()
    g.i(f's_cmp_ge_u32 s{B.S_RANK}, {N_LN}')
    g.i('s_cbranch_scc1 proj')
    b.layernorm()
    stamp()
    g.i(f's_cmp_lt_u32 s{B.S_RANK}, {N_NOP}')
    g.i('s_cbranch_scc1 attn')
    g.label('proj')
    nprof[0] = 2
    b.stamp = stamp
    b.project()
    stamp()
    g.i(f's_cmp_lt_u32 s{B.S_RANK}, {N_ATT}')
    g.i('s_cbranch_scc1 attn')
    b.stream_gemm(True)
    stamp()
    b.stream_gemm(False)
    stamp()
    g.i('s_branch bend')
    g.label('fin2')
    g.i('s_endpgm')
    g.forget()
    g.label('attn')
    b.attention()
    nprof[0] = 7
    stamp()
    g.label('bend')
    dump(4096)
    g.i('s_endpgm')
    g.raw(f'''.section .rodata,"a"
.p2align 6
.amdhsa_kernel {name}
  .amdhsa_next_free_vgpr 512
  .amdhsa_next_free_sgpr 102
  .amdhsa_accum_offset 256
  .amdhsa_group_segment_fixed_size 0
  .amdhsa_kernarg_size 104
  .amdhsa_user_sgpr_count 2
  .amdhsa_user_sgpr_kernarg_segment_ptr 1
  .amdhsa_system_sgpr_workgroup_id_x 1
.end_amdhsa_kernel''')
    open(out, 'w').write(g.text())
    if diag:
        open(out[:-2] + '_names.txt', 'w').write('\n'.join(ch.names))
    print(out, 'nops', g.nops, 'lines', len(g.lines), 'bytes', len(g.text()))


if __name__ == '__main__':
    ref = open(f'cdna_kernels/{NAME}.s.ref').read()
    header = ref[:ref.index('; @launch')]
    best = dict(dm=[20, 0, None, 20], dq=28, wake=10, dr=[70, None])
    build(f'cdna_kernels/{NAME}.s', header=header, **best)
    build('full_prof.s', prof=True, **best)
    build('full_slow.s', prof=True, force_slow=True, **best)
    build('full_diag.s', prof=True, diag=4, **best)
    build('full_a.s', prof=True, bopt=('nowarm',), opt=('nocode',), **best)
    build('full_b.s', prof=True, bopt=('nowarm',), **best)
    build('full_d.s', prof=True, opt=('nocode',), **best)
```

```python
import sys
from asmgen import *
from layout import *
import chain as C
import bulk as B

NAME = 'recurrent_scan__memory_aug_recurrent_mem_tr__dense_activation_silu__prompt'


def dispatch(g, l_chain, l_bulk, force_slow):
    S_W, S_H, T0, T1, DBG, XCC = C.S_W, C.S_H, C.S_T0, C.S_T1, C.S_DBG, C.S_XCC
    g.i('v_lshrrev_b32 v1, 6, v0')
    g.i('v_and_b32 v0, 63, v0')
    g.i(f'v_readfirstlane_b32 s{S_W}, v1')
    g.i(f's_getreg_b32 s{XCC}, hwreg(HW_REG_XCC_ID, 0, 4)')
    rd, tb, tc, wr = [g.newlabel('el') for _ in range(4)]
    g.i(f'v_mov_b32 v2, {C.L_EL}')
    g.i(f's_cmp_lg_u32 s{S_W}, 0')
    g.i(f's_cbranch_scc1 {rd}')
    g.i('s_mov_b64 exec, 1')
    g.i('v_mov_b32 v4, 1')

    def ticket(off):
        g.i(f'v_mov_b32 v3, {off}')
        g.i(f'global_atomic_add v5, v3, v4, s[{DBG}:{DBG+1}] sc0')
        g.wait_vm()
        g.i(f'v_readfirstlane_b32 s{S_H}, v5')
    if force_slow:
        g.i('s_cmp_ge_u32 s2, 16')
    else:
        g.i(f's_cmp_lg_u32 s{XCC}, {CHAIN_XCC}')
    g.i(f's_cbranch_scc1 {tb}')
    ticket(DBG_CHAIN)
    g.i(f's_cmp_lt_u32 s{S_H}, 32')
    g.i(f's_cbranch_scc1 {wr}')
    ticket(DBG_BULK)
    g.i(f's_add_u32 s{S_H}, s{S_H}, 32')
    g.i(f's_branch {wr}')
    g.label(tb)
    ticket(DBG_BULK)
    g.i(f's_add_u32 s{S_H}, s{S_H}, 32')
    g.i(f's_cmp_lt_u32 s{S_H}, 256')
    g.i(f's_cbranch_scc1 {wr}')
    ticket(DBG_CHAIN)
    g.label(wr)
    g.i(f'v_mov_b32 v5, s{S_H}')
    g.i('ds_write_b32 v2, v5')
    g.i('s_mov_b64 exec, -1')
    g.wait_lds()
    g.label(rd)
    g.i('s_barrier')
    g.i('ds_read_b32 v5, v2')
    g.wait_lds()
    g.i(f'v_readfirstlane_b32 s{S_H}, v5')
    g.i('s_barrier')
    g.i(f's_cmp_lt_u32 s{S_H}, 32')
    g.i(f's_cbranch_scc1 {l_chain}')
    g.i(f's_cmp_ge_u32 s{S_H}, 256')
    g.i(f's_cbranch_scc1 fin0')
    g.i(f's_sub_u32 s{S_H}, s{S_H}, 32')


def build(out, diag=0, force_slow=False, prof=False, header='', bopt=(), **kw):
    g = Gen()
    name = NAME + '_kernel'
    g.raw(header + f'; @launch grid=(256,1,1) block=(256,1,1) lds={C.LDS_BYTES}')
    g.raw('.amdgcn_target "amdgcn-amd-amdhsa--gfx950"')
    g.raw('.text'); g.raw(f'.globl {name}'); g.raw('.p2align 8'); g.raw(f'.type {name},@function')
    g.label(name)
    g.i('s_cmp_ge_u32 s2, 256')
    g.i('s_cbranch_scc1 fin0')
    nprof = [0]

    def stamp():
        if prof:
            g.i('s_memrealtime s[100:101]')
            g.i('s_waitcnt lgkmcnt(0)')
            g.i(f's_mov_b32 s{88 + nprof[0]}, s100')
            nprof[0] += 1

    def dump(base):
        if prof:
            for k in range(8):
                g.i(f'v_writelane_b32 v14, s{88 + k}, {k}')
            g.i(f's_lshl_b32 s42, s{C.S_H}, 2')
            g.i(f's_add_u32 s42, s42, s{C.S_W}')
            g.i(f's_lshl_b32 s42, s42, 5')
            g.i(f's_add_u32 s42, s42, {OFF_DIAG + 0x200000 + base}')
            g.i('v_mbcnt_lo_u32_b32 v15, -1, 0')
            g.i('v_lshlrev_b32 v15, 2, v15')
            g.i('s_mov_b64 exec, 0xff')
            g.i(f'buffer_store_dword v14, v15, s[4:7], s42 offen')
            if prof == 2:
                g.i('s_not_b32 s88, s88')
                g.i('v_writelane_b32 v14, s88, 0')
                g.i(f'v_add_u32 v15, {4 if base == 0 else 28}, v15')
                g.i(f's_mov_b64 exec, {0x1f if base == 0 else 0xfe}')
                g.i(f'global_atomic_umax v15, v14, s[{C.S_DBG}:{C.S_DBG+1}]')
    g.i(f's_load_dwordx2 s[{B.P_X}:{B.P_X+1}], s[0:1], 0')
    g.i(f's_load_dwordx2 s[{C.S_PTR}:{C.S_PTR+1}], s[0:1], 8')
    g.i(f's_load_dwordx2 s[{C.S_PTR+2}:{C.S_PTR+3}], s[0:1], 16')
    g.i(f's_load_dwordx4 s[{C.S_PTR+4}:{C.S_PTR+7}], s[0:1], 24')
    g.i(f's_load_dwordx2 s[{C.S_PTR+8}:{C.S_PTR+9}], s[0:1], 40')
    g.i(f's_load_dwordx2 s[{B.P_W1}:{B.P_W1+1}], s[0:1], 64')
    g.i(f's_load_dwordx4 s[{B.P_W2}:{B.P_W2+3}], s[0:1], 72')
    g.i(f's_load_dwordx2 s[{C.S_DBG}:{C.S_DBG+1}], s[0:1], 88')
    g.i(f's_load_dwordx2 s[{C.S_WS}:{C.S_WS+1}], s[0:1], 96')
    if prof:
        for k in range(8):
            g.i(f's_mov_b32 s{88+k}, 0')
    stamp()
    g.i('s_waitcnt lgkmcnt(0)')
    g.i(f's_mov_b32 s{C.S_WS+2}, {WS_BYTES}')
    g.i(f's_mov_b32 s{C.S_WS+3}, 0x20000')
    dispatch(g, 'chain_far', 'bulk', force_slow)
    g.i('s_branch bulk')
    g.label('chain_far')
    g.i('s_branch chain')
    g.label('fin0')
    g.i('s_endpgm')
    g.forget()
    g.label('chain')
    stamp()
    ch = C.Chain(g, diag=diag, standalone=False, opt=kw.pop('opt', ()))
    for k_, v_ in kw.items():
        setattr(ch, k_, v_)
    ch.prologue()
    stamp()
    ch.after_wait = stamp
    ch.start('fin1', 'done')
    g.label('done')
    ch.finish('done2')
    g.label('done2')
    stamp()
    dump(0)
    g.label('fin1')
    g.i('s_endpgm')
    g.forget()
    g.label('bulk')
    nprof[0] = 1
    stamp()
    b = B.Bulk(g, 'fin2', bopt)
    b.setup()
    g.i(f's_cmp_ge_u32 s{B.S_RANK}, {N_LN}')
    g.i('s_cbranch_scc1 proj')
    b.layernorm()
    stamp()
    g.i(f's_cmp_lt_u32 s{B.S_RANK}, {N_NOP}')
    g.i('s_cbranch_scc1 attn')
    g.label('proj')
    nprof[0] = 2
    b.stamp = stamp
    b.project()
    stamp()
    g.i(f's_cmp_lt_u32 s{B.S_RANK}, {N_ATT}')
    g.i('s_cbranch_scc1 attn')
    b.stream_gemm(True)
    stamp()
    b.stream_gemm(False)
    stamp()
    g.i('s_branch bend')
    g.label('fin2')
    g.i('s_endpgm')
    g.forget()
    g.label('attn')
    b.attention()
    nprof[0] = 7
    stamp()
    g.label('bend')
    dump(4096)
    g.i('s_endpgm')
    g.raw(f'''.section .rodata,"a"
.p2align 6
.amdhsa_kernel {name}
  .amdhsa_next_free_vgpr 512
  .amdhsa_next_free_sgpr 102
  .amdhsa_accum_offset 256
  .amdhsa_group_segment_fixed_size 0
  .amdhsa_kernarg_size 104
  .amdhsa_user_sgpr_count 2
  .amdhsa_user_sgpr_kernarg_segment_ptr 1
  .amdhsa_system_sgpr_workgroup_id_x 1
.end_amdhsa_kernel''')
    open(out, 'w').write(g.text())
    if diag:
        open(out[:-2] + '_names.txt', 'w').write('\n'.join(ch.names))
    print(out, 'nops', g.nops, 'lines', len(g.lines), 'bytes', len(g.text()))


if __name__ == '__main__':
    ref = open(f'cdna_kernels/{NAME}.s.ref').read()
    header = ref[:ref.index('; @launch')]
    best = dict(dm=[20, 0, 0, 20], dq=28, wake=10, dr=[50, None, None], pre=4)
    build(f'cdna_kernels/{NAME}.s', header=header, **best)
    build('full_prof.s', prof=True, **best)
    build('full_slow.s', prof=True, force_slow=True, **best)
    build('full_diag.s', prof=True, diag=4, **best)
    build('full_h.s', prof=2, header=header, **best)
```

```python
import math
from asmgen import *
from layout import *
from chain import S_WS, S_W8, S_DBG, S_W, S_PTR, SPIN_MAX, f2u

S_RANK = 15
P_MEM0, P_WQ, P_WK, P_WV, P_WO = S_PTR, S_PTR + 2, S_PTR + 4, S_PTR + 6, S_PTR + 8
P_X, P_W1, P_W2, P_OUT = 60, 62, 64, 66
S_X4, S_O4 = 68, 72
T0, T1, T2, T3 = 42, 43, 44, 45
S_TRY = 41
WS = f's[{S_WS}:{S_WS+3}]'
W8 = f's[{S_W8}:{S_W8+3}]'
LOG2E = math.log2(math.e)
V_L, V_L16 = 0, 1


def wreg(n, cnt=4):
    return ar(n, cnt) if n < 256 else vr(224 + n - 256, cnt)


class Bulk:
    def __init__(self, g, bail, opt=()):
        self.opt = set(opt)
        self.g = g
        self.bail = bail

    def srd(self, dst, ptr, nbytes):
        g = self.g
        g.i(f's_mov_b32 s{dst}, s{ptr}')
        g.i(f's_mov_b32 s{dst+1}, s{ptr+1}')
        g.i(f's_mov_b32 s{dst+2}, {nbytes}')
        g.i(f's_mov_b32 s{dst+3}, 0x20000')

    def spin(self, load, test, sleep=4):
        g = self.g
        lp, ok = g.newlabel('sp'), g.newlabel('sp')
        g.i(f's_mov_b32 s{S_TRY}, 0')
        g.settle()
        g.label(lp)
        load()
        test()
        g.i(f's_cbranch_scc1 {ok}')
        g.i(f's_sleep {sleep}')
        g.i(f's_add_u32 s{S_TRY}, s{S_TRY}, 1')
        g.i(f's_cmp_lt_u32 s{S_TRY}, {SPIN_MAX}')
        g.i(f's_cbranch_scc1 {lp}')
        g.i(f's_branch {self.bail}')
        g.label(ok)

    def wait_word(self, soff, need, vt, sleep=4):
        g = self.g

        def load():
            g.i(f'buffer_load_dword v{vt}, off, {WS}, s{soff} sc1')
            g.wait_vm()

        def test():
            g.i(f'v_readfirstlane_b32 s{T3}, v{vt}')
            g.i(f's_cmp_ge_u32 s{T3}, {need}')
        self.spin(load, test, sleep)

    def wait_ln(self, vt):
        g = self.g
        sk = g.newlabel('wl')
        g.i(f's_cmp_lg_u32 s{S_W}, 0')
        g.i(f's_cbranch_scc1 {sk}')
        g.i(f'v_mov_b32 v{vt+1}, {DBG_LNOK}')

        def load():
            g.i(f'global_load_dword v{vt}, v{vt+1}, s[{S_DBG}:{S_DBG+1}] sc1')
            g.wait_vm()

        def test():
            g.i(f'v_readfirstlane_b32 s{T3}, v{vt}')
            g.i(f's_cmp_lg_u32 s{T3}, 0')
        self.spin(load, test, 8)
        g.label(sk)
        g.i('s_barrier')

    def setup(self):
        g = self.g
        g.i(f'v_lshlrev_b32 v{V_L16}, 4, v{V_L}')
        self.srd(S_X4, P_X, 2359296)
        self.srd(S_O4, P_OUT, 2359296)

    def layernorm(self):
        g = self.g
        VA, VO, VS, VQ, VM, VR, VT, VU = 2, 3, 4, 5, 6, 8, 10, 12
        D, F = 16, 64
        g.i(f'v_and_b32 v{VT}, 7, v{V_L}')
        g.i(f'v_lshrrev_b32 v{VU}, 3, v{V_L}')
        g.i(f'v_mul_u32_u24 v{VA}, 1152, v{VU}')
        g.i(f'v_lshl_add_u32 v{VA}, v{VT}, 4, v{VA}')
        g.i(f's_lshl_b32 s20, s{S_RANK}, 2')
        g.i(f's_add_u32 s20, s20, s{S_W}')
        g.i(f's_mul_i32 s{T0}, s20, 9216')
        g.vm_q = []
        for i in range(9):
            g.i(f'buffer_load_dwordx4 {vr(D + 4*i, 4)}, v{VA}, s[{S_X4}:{S_X4+3}], s{T0} offen offset:{128*i}', tag=('x', i))
        g.i(f'v_lshlrev_b32 v{VO}, 9, v{VT}')
        g.i(f'v_lshl_add_u32 v{VO}, v{VU}, 4, v{VO}')
        g.i(f'v_mov_b32 v{VS}, 0')
        g.i(f'v_lshlrev_b32 v{VQ}, 2, v{V_L}')
        g.i(f's_lshl_b32 s{T0}, s20, 8')
        g.i(f's_add_u32 s{T0}, s{T0}, {OFF_FLAG}')
        g.i(f'buffer_store_dword v{VS}, v{VQ}, {WS}, s{T0} offen sc1')

        def allsum(r):
            g.i(f'v_add_f32_dpp v{r}, v{r}, v{r} quad_perm:[1,0,3,2] row_mask:0xf bank_mask:0xf')
            g.i(f'v_add_f32_dpp v{r}, v{r}, v{r} quad_perm:[2,3,0,1] row_mask:0xf bank_mask:0xf')
            g.i(f'v_add_f32_dpp v{r}, v{r}, v{r} row_half_mirror row_mask:0xf bank_mask:0xf')

        def rnd(r):
            g.i(f'v_cvt_pk_bf16_f32 v{r}, v{r}, v{r}')
            g.i(f'v_and_b32 v{r}, 0xffff0000, v{r}')
        for k in range(36):
            if k % 4 == 0:
                g.wait_vm(('x', k // 4))
            g.i(f'v_lshlrev_b32 v{F+2*k}, 16, v{D+k}')
            g.i(f'v_and_b32 v{F+2*k+1}, 0xffff0000, v{D+k}')
            if k == 1:
                g.i(f'v_pk_add_f32 {vr(VT,2)}, {vr(F,2)}, {vr(F+2,2)}')
            elif k > 1:
                g.i(f'v_pk_add_f32 {vr(VT,2)}, {vr(VT,2)}, {vr(F+2*k,2)}')
        g.i(f'v_add_f32 v{VS}, v{VT}, v{VT+1}')
        allsum(VS)
        g.i(f'v_mul_f32 v{VM}, {f2u(1/576):#x}, v{VS}')
        for k in range(36):
            g.i(f'v_pk_add_f32 {vr(VU,2)}, {vr(F+2*k,2)}, {vr(VM,2)} op_sel_hi:[1,0] neg_lo:[0,1] neg_hi:[0,1]')
            if k == 0:
                g.i(f'v_pk_mul_f32 {vr(VT,2)}, {vr(VU,2)}, {vr(VU,2)}')
            else:
                g.i(f'v_pk_fma_f32 {vr(VT,2)}, {vr(VU,2)}, {vr(VU,2)}, {vr(VT,2)}')
        g.i(f'v_add_f32 v{VQ}, v{VT}, v{VT+1}')
        allsum(VQ)
        g.i(f'v_mul_f32 v{VQ}, {f2u(1/576):#x}, v{VQ}')
        rnd(VQ)
        g.i(f'v_add_f32 v{VQ}, {f2u(1e-5):#x}, v{VQ}')
        rnd(VQ)
        g.i(f'v_sqrt_f32 v{VQ}, v{VQ}')
        rnd(VQ)
        g.i(f'v_rcp_f32 v{VR}, v{VQ}')
        rnd(VM)
        g.i(f's_mul_i32 s{T0}, s{S_RANK}, 36864')
        g.i(f's_lshl_b32 s{T1}, s{S_W}, 7')
        g.i(f's_add_u32 s{T0}, s{T0}, s{T1}')
        for k in range(36):
            a, d = F + 2 * k, D + k
            g.i(f'v_pk_add_f32 {vr(a,2)}, {vr(a,2)}, {vr(VM,2)} op_sel_hi:[1,0] neg_lo:[0,1] neg_hi:[0,1]')
            g.i(f'v_cvt_pk_bf16_f32 v{d}, v{a}, v{a+1}')
            g.i(f'v_lshlrev_b32 v{a}, 16, v{d}')
            g.i(f'v_and_b32 v{a+1}, 0xffff0000, v{d}')
            g.i(f'v_pk_mul_f32 {vr(a,2)}, {vr(a,2)}, {vr(VR,2)} op_sel_hi:[1,0]')
            g.i(f'v_cvt_pk_bf16_f32 v{d}, v{a}, v{a+1}')
            if k % 4 == 3:
                g.i(f's_add_u32 s{T1}, s{T0}, {OFF_XN + 4096*(k//4)}')
                g.i(f'buffer_store_dwordx4 {vr(d-3, 4)}, v{VO}, {WS}, s{T1} offen sc1')
        g.wait_vm()
        g.i('s_barrier')
        sk = g.newlabel('lns')
        g.i(f's_cmp_lg_u32 s{S_W}, 0')
        g.i(f's_cbranch_scc1 {sk}')
        g.i('s_mov_b64 exec, 1')
        g.i(f'v_mov_b32 v2, {DBG_LN}')
        g.i('v_mov_b32 v3, 1')
        g.i(f'global_atomic_add v4, v2, v3, s[{S_DBG}:{S_DBG+1}] sc0')
        g.i(f'v_mov_b32 v2, {DBG_LNOK}')
        g.wait_vm()
        g.i(f'v_readfirstlane_b32 s{T0}, v4')
        nl = g.newlabel('lns')
        g.i(f's_cmp_lg_u32 s{T0}, {N_LN - 1}')
        g.i(f's_cbranch_scc1 {nl}')
        g.i(f'global_store_dword v2, v3, s[{S_DBG}:{S_DBG+1}] sc1')
        g.label(nl)
        g.i('s_mov_b64 exec, -1')
        g.label(sk)

    def load_weights(self, ntile, nstep, s_off, s_pitch):
        g = self.g
        VA, VT, VX, VY = 2, 3, 4, 5
        seg = 64 * ntile
        lpr = seg // 16
        rpi = 1024 // seg
        spb = 4 * rpi // 16
        nblk = nstep // spb
        sh = lpr.bit_length() - 1
        g.i(f'v_lshrrev_b32 v{VX}, {sh}, v{V_L}')
        g.i(f'v_mul_lo_u32 v{VA}, v{VX}, s{s_pitch}')
        g.i(f'v_and_b32 v{VX}, {lpr-1}, v{V_L}')
        g.i(f'v_lshl_add_u32 v{VA}, v{VX}, 4, v{VA}')
        g.i(f'v_lshrrev_b32 v{VX}, 5, v{V_L}')
        g.i(f'v_bfe_u32 v{VY}, v{V_L}, 2, 2')
        g.i(f'v_lshl_add_u32 v{VX}, v{VX}, 3, v{VY}')
        g.i(f'v_mul_u32_u24 v{VT}, {seg}, v{VX}')
        g.i(f'v_bfe_u32 v{VX}, v{V_L}, 4, 1')
        g.i(f'v_lshl_add_u32 v{VT}, v{VX}, 5, v{VT}')
        g.i(f'v_and_b32 v{VX}, 3, v{V_L}')
        g.i(f'v_lshl_add_u32 v{VT}, v{VX}, 3, v{VT}')
        g.i(f's_mul_i32 s{T2}, s{S_W}, 36864')
        g.i(f'v_add_u32 v{VT}, s{T2}, v{VT}')
        g.i(f's_mul_i32 s{T1}, s{s_pitch}, {rpi}')
        g.i(f's_mov_b32 s{T0}, s{s_off}')
        g.vm_q = []

        def issue(n):
            for q in range(4):
                g.i(f's_add_u32 m0, s{T2}, {(n % 9) * 4096 + q * 1024}')
                g.i(f'buffer_load_dwordx4 v{VA}, {W8}, s{T0} offen lds', tag=('w', n))
                g.i(f's_add_u32 s{T0}, s{T0}, s{T1}')
        for n in range(min(9, nblk)):
            issue(n)
        for n in range(nblk):
            g.wait_vm(('w', n))
            for st in range(spb):
                for x in range(ntile):
                    r = 4 * ((n * spb + st) * ntile + x)
                    for hf in range(2):
                        off = (n % 9) * 4096 + (16 * st + 4 * hf) * seg + 64 * x
                        g.i(f'ds_read_b64_tr_b16 {wreg(r + 2*hf, 2)}, v{VT} offset:{off}')
            g.wait_lds()
            if n + 9 < nblk:
                issue(n + 9)

    def silu_ops(self, src, a, b, t):
        return [f'v_lshlrev_b32 v{a}, 16, v{src}', f'v_and_b32 v{b}, 0xffff0000, v{src}',
                f'v_mul_f32 v{t}, {f2u(-LOG2E):#x}, v{a}', f'v_mul_f32 v{t+1}, {f2u(-LOG2E):#x}, v{b}',
                f'v_exp_f32 v{t}, v{t}', f'v_exp_f32 v{t+1}, v{t+1}',
                f'v_add_f32 v{t}, 1.0, v{t}', f'v_add_f32 v{t+1}, 1.0, v{t+1}',
                f'v_rcp_f32 v{t}, v{t}', f'v_rcp_f32 v{t+1}, v{t+1}',
                f'v_mul_f32 v{a}, v{a}, v{t}', f'v_mul_f32 v{b}, v{b}, v{t+1}',
                f'v_cvt_pk_bf16_f32 v{src}, v{a}, v{b}']

    def project(self):
        g = self.g
        S_B, S_REP, S_OFF, S_PITCH, S_OUT, S_OSTR, S_A, S_N, S_I, S_FL, S_ST, S_LW, S_SW = range(16, 29)
        kv, dec = g.newlabel('pj'), g.newlabel('pj')
        g.i(f's_sub_u32 s{T0}, s{S_RANK}, 64')
        g.i(f's_cmp_lt_u32 s{T0}, 96')
        g.i(f's_cbranch_scc1 {kv}')
        g.i(f's_cmp_lt_u32 s{S_RANK}, 64')
        g.i(f's_cselect_b32 s{T0}, {N_NOP}, {160 - 38}')
        g.i(f's_sub_u32 s{T0}, s{S_RANK}, s{T0}')
        g.i(f's_mul_hi_u32 s{S_B}, s{T0}, {(1 << 32) // 3 + 1}')
        g.i(f's_mul_i32 s{T1}, s{S_B}, 3')
        g.i(f's_sub_u32 s{S_REP}, s{T0}, s{T1}')
        g.i(f's_sub_u32 s{S_B}, 65, s{S_B}')
        if 'nowarm' not in self.opt:
            nw = g.newlabel('nw')
            g.i(f's_cmp_lt_u32 s{S_RANK}, 160')
            g.i(f's_cbranch_scc1 {nw}')
            lab = [g.newlabel('nw') for _ in range(5)]
            for w in range(1, 4):
                g.i(f's_cmp_eq_u32 s{S_W}, {w}')
                g.i(f's_cbranch_scc1 {lab[w]}')
            for w, p in enumerate((P_WQ, P_WK, P_WV, P_WO)):
                g.label(lab[w])
                self.srd(S_W8, p, 4718592)
                g.i(f's_branch {lab[4]}')
            g.label(lab[4])
            g.i(f's_sub_u32 s{T0}, s{S_RANK}, 160')
            g.i(f's_lshl_b32 s{T0}, s{T0}, 13')
            g.i(f'v_lshlrev_b32 v8, 7, v{V_L}')
            for n in range(9):
                g.i(f'buffer_load_dword v9, v8, {W8}, s{T0} offen')
                g.i(f's_add_u32 s{T0}, s{T0}, {64 * 8192}')
            g.wait_vm()
            g.label(nw)
        if 'eager' not in self.opt:
            self.wait_ln(2)
        g.i(f's_branch {dec}')
        g.label(kv)
        g.i(f's_and_b32 s{S_B}, s{T0}, 31')
        g.i(f's_lshr_b32 s{S_REP}, s{T0}, 5')
        g.label(dec)
        lq, lh, lv, go = [g.newlabel('pj') for _ in range(4)]
        VST = 6
        g.i(f'v_mov_b32 v{VST}, v{V_L16}')
        g.i(f's_mov_b32 s{S_PITCH}, 8192')
        g.i(f's_mov_b32 s{S_OSTR}, {32 * 8192}')
        g.i(f's_and_b32 s{T2}, s{S_W}, 1')
        g.i(f's_cmp_ge_u32 s{S_B}, 48')
        g.i(f's_cbranch_scc1 {lh}')
        g.i(f's_cmp_ge_u32 s{S_B}, 32')
        g.i(f's_cbranch_scc1 {lq}')
        g.i(f's_lshl_b32 s{S_OFF}, s{S_B}, 8')
        g.i(f's_lshl_b32 s{T0}, s{T2}, 7')
        g.i(f's_add_u32 s{S_OFF}, s{S_OFF}, s{T0}')
        g.i(f's_lshl_b32 s{S_OUT}, s{S_B}, 13')
        g.i(f's_lshl_b32 s{T0}, s{T2}, 12')
        g.i(f's_add_u32 s{S_OUT}, s{S_OUT}, s{T0}')
        g.i(f's_cmp_ge_u32 s{S_W}, 2')
        g.i(f's_cbranch_scc1 {lv}')
        self.srd(S_W8, P_WK, 4718592)
        g.i(f's_add_u32 s{S_OUT}, s{S_OUT}, {OFF_KX}')
        g.i(f'v_and_b32 v{VST}, 35, v{V_L}')
        g.i(f'v_bfe_u32 v2, v{V_L}, 3, 2')
        g.i(f'v_lshl_add_u32 v{VST}, v2, 2, v{VST}')
        g.i(f'v_bfe_u32 v2, v{V_L}, 2, 1')
        g.i(f'v_lshl_add_u32 v{VST}, v2, 4, v{VST}')
        g.i(f'v_lshlrev_b32 v{VST}, 4, v{VST}')
        g.i(f's_mov_b32 s{S_SW}, 0')
        g.i(f's_branch {go}')
        g.label(lv)
        self.srd(S_W8, P_WV, 4718592)
        g.i(f's_add_u32 s{S_OUT}, s{S_OUT}, {OFF_VX}')
        g.i(f's_mov_b32 s{S_SW}, 1')
        g.i(f's_branch {go}')
        g.label(lq)
        g.i(f's_sub_u32 s{T0}, s{S_B}, 32')
        g.i(f's_lshl_b32 s{T0}, s{T0}, 2')
        g.i(f's_add_u32 s{T0}, s{T0}, s{S_W}')
        g.i(f's_lshl_b32 s{S_OFF}, s{T0}, 7')
        g.i(f's_lshl_b32 s{S_OUT}, s{T0}, 12')
        g.i(f's_add_u32 s{S_OUT}, s{S_OUT}, {OFF_QX}')
        self.srd(S_W8, P_WQ, 4718592)
        g.i(f's_mov_b32 s{S_SW}, 0')
        g.i(f's_branch {go}')
        g.label(lh)
        g.i(f's_sub_u32 s{T0}, s{S_B}, 48')
        g.i(f's_lshl_b32 s{T0}, s{T0}, 2')
        g.i(f's_add_u32 s{T0}, s{T0}, s{S_W}')
        g.i(f's_lshl_b32 s{S_OFF}, s{T0}, 7')
        g.i(f's_lshl_b32 s{S_OUT}, s{T0}, 12')
        g.i(f's_add_u32 s{S_OUT}, s{S_OUT}, {OFF_H}')
        g.i(f's_mov_b32 s{S_PITCH}, 9216')
        g.i(f's_mov_b32 s{S_OSTR}, 294912')
        self.srd(S_W8, P_W1, 5308416)
        g.i(f's_mov_b32 s{S_SW}, 2')
        g.label(go)
        self.load_weights(2, 36, S_OFF, S_PITCH)
        g.i(f's_mul_i32 s{T0}, s{S_OSTR}, s{S_REP}')
        g.i(f's_add_u32 s{S_OUT}, s{S_OUT}, s{T0}')
        g.i(f's_mul_i32 s{S_OSTR}, s{S_OSTR}, 3')
        g.i(f's_sub_u32 s{S_OUT}, s{S_OUT}, s{S_OSTR}')
        g.i(f's_mul_i32 s{S_A}, s{S_REP}, 36864')
        g.i(f's_mul_i32 s{S_LW}, s{S_W}, 9216')
        g.i(f's_add_u32 s{S_A}, s{S_A}, s{S_LW}')
        g.i(f's_cmp_eq_u32 s{S_REP}, 0')
        g.i(f's_cselect_b32 s{S_N}, 22, 21')
        g.i(f's_lshl_b32 s{S_FL}, s{S_REP}, 7')
        g.i(f's_add_u32 s{S_FL}, s{S_FL}, s{S_B}')
        g.i(f's_lshl_b32 s{S_FL}, s{S_FL}, 7')
        g.i(f's_add_u32 s{S_FL}, s{S_FL}, {OFF_FLAG + FL_P1}')
        self.stamp()
        self.wait_ln(2)
        VA, VP = 2, 3
        ACC, PK, RING, TMP = 16, 48, 64, 96

        def dma(stage_sgpr):
            L = []
            for q in range(3):
                for z in range(3):
                    def f(q=q, z=z):
                        if z == 0:
                            g.i(f's_add_u32 m0, s{stage_sgpr}, {q * 3072}')
                            g.i(f's_add_u32 s{T0}, s{S_A}, {OFF_XN + q * 3072}')
                        g.i(f'buffer_load_dwordx4 v{V_L16}, {WS}, s{T0} offen offset:{1024*z} sc1 lds')
                    L.append(f)
            L.append(lambda: g.i(f's_add_u32 s{S_A}, s{S_A}, {3 * 36864}'))
            return L
        for st in range(2):
            g.i(f's_add_u32 s{T1}, s{S_LW}, {st * 36864}')
            for f in dma(T1):
                f()
        if 'cyc' in self.opt:
            g.i('s_memtime s[96:97]')
            g.i('s_memrealtime s[98:99]')
            g.i('s_waitcnt lgkmcnt(0)')
        g.i(f's_mov_b32 s{S_I}, 0')
        g.i(f's_mov_b32 s{S_ST}, 0')
        labs = [g.newlabel('pv') for _ in range(3)]
        end = g.newlabel('pe')
        g.i(f's_cmp_eq_u32 s{S_SW}, 1')
        g.i(f's_cbranch_scc1 {labs[1]}')
        g.i(f's_cmp_eq_u32 s{S_SW}, 2')
        g.i(f's_cbranch_scc1 {labs[2]}')

        def epilogue_ops(silu):
            L = []
            if silu:
                for k in range(0, 16, 2):
                    A = self.silu_ops(PK + k, TMP, TMP + 1, TMP + 2)
                    B = self.silu_ops(PK + k + 1, TMP + 4, TMP + 5, TMP + 6)
                    for p, q in zip(A, B):
                        L += [p, q]
            for n in range(4):
                p = PK + 4 * n
                L += [f'v_permlane32_swap_b32 v{p}, v{p+2}', f'v_permlane32_swap_b32 v{p+1}, v{p+3}',
                      f'buffer_store_dwordx4 {vr(p,4)}, v{VST}, {WS}, s{S_OUT} offen offset:{1024*n} {"" if "plainst" in self.opt else "sc1"}']
            return L

        def publish(sval):
            sk = g.newlabel('pp')
            g.i(f's_cmp_lg_u32 s{S_W}, 0')
            g.i(f's_cbranch_scc1 {sk}')
            g.i(f'v_mov_b32 v{VP}, s{sval}')
            g.i('s_mov_b64 exec, 1')
            g.i(f'buffer_store_dword v{VP}, off, {WS}, s{S_FL} sc1')
            g.i('s_mov_b64 exec, -1')
            g.label(sk)

        for var in range(3):
            g.label(labs[var])
            g.forget()
            silu = var == 2
            first, top = g.newlabel('pf'), g.newlabel('pt')

            def body(with_epi):
                g.lds_q = []
                g.i(f's_waitcnt vmcnt({13 if with_epi else 9})')
                g.i('s_barrier')
                g.i(f'v_add_u32 v{VA}, s{S_ST}, v{V_L16}')
                for u in range(5):
                    g.i(f'ds_read_b128 {vr(RING + 4*u, 4)}, v{VA} offset:{1024*u}', tag=('a', u))
                g.i(f's_sub_u32 s{T2}, s{S_I}, 2')
                g.i(f's_max_i32 s{T2}, s{T2}, 0')
                publish(T2)
                g.i(f's_sub_u32 s{T1}, s{S_ST}, 36864')
                g.i(f's_cmp_eq_u32 s{S_ST}, 0')
                g.i(f's_cselect_b32 s{T1}, {2 * 36864}, s{T1}')
                g.i(f's_add_u32 s{T1}, s{T1}, s{S_LW}')
                dq = dma(T1)
                fill = epilogue_ops(silu) if with_epi else []
                per = 4 if silu else 1
                for u in range(36):
                    g.wait_lds(('a', u))
                    a = vr(RING + 4 * (u % 6), 4)
                    for x in range(2):
                        w = wreg(4 * (2 * u + x))
                        c = vr(ACC + 16 * x, 16) if u else '0'
                        ops = f'{a}, {w}' if var == 1 else f'{w}, {a}'
                        g.i(f'v_mfma_f32_32x32x16_bf16 {vr(ACC + 16*x, 16)}, {ops}, {c}')
                        if x == 0 and u + 5 < 36:
                            g.i(f'ds_read_b128 {vr(RING + 4*((u+5) % 6), 4)}, v{VA} offset:{1024*(u+5)}', tag=('a', u + 5))
                        if x == 1 and dq:
                            dq.pop(0)()
                        for _ in range(per):
                            if fill and not (dq and fill[0].startswith('buffer')):
                                g.i(fill.pop(0))
                assert not fill
                g.i(f's_add_u32 s{S_ST}, s{S_ST}, 36864')
                g.i(f's_cmp_eq_u32 s{S_ST}, {3 * 36864}')
                g.i(f's_cselect_b32 s{S_ST}, 0, s{S_ST}')
                g.i(f's_add_u32 s{S_OUT}, s{S_OUT}, s{S_OSTR}')
                g.i(f's_add_u32 s{S_I}, s{S_I}, 1')
                for k in range(16):
                    g.i(f'v_cvt_pk_bf16_f32 v{PK+k}, v{ACC+2*k}, v{ACC+2*k+1}')
            body(False)
            g.i('s_waitcnt vmcnt(9)')
            g.settle()
            g.label(top)
            body(True)
            g.i(f's_cmp_lt_u32 s{S_I}, s{S_N}')
            g.settle()
            g.i(f's_cbranch_scc1 {top}')
            for f in epilogue_ops(silu):
                g.i(f)
            g.i(f's_branch {end}')
        g.label(end)
        g.forget()
        if 'cyc' in self.opt:
            g.i('s_memtime s[76:77]')
            g.i('s_memrealtime s[78:79]')
            g.i('s_waitcnt lgkmcnt(0)')
            g.i('s_sub_u32 s88, s76, s96')
            g.i('s_sub_u32 s89, s78, s98')
        g.wait_vm()
        g.i('s_barrier')
        publish(S_N)

    def stream_gemm(self, gate):
        g = self.g
        S_SL, S_RP, S_OFF, S_PITCH, S_RT, S_A, S_AN, S_FLG, S_NEED, S_GL, S_XO, S_PRE = range(16, 28)
        NS = 72 if gate else 64
        RN = NS // 2
        TILE = NS * 4 * 1024
        BASE = OFF_H if gate else OFF_O
        VF, VFA, VRW, VRR, VG, VXO, VT = 2, 3, 4, 5, 6, 7, 8
        ACC, RING = 16, 64
        L_RED, L_G = 0, 147456
        if gate:
            g.i(f's_sub_u32 s{T0}, s{S_RANK}, {N_ATT}')
            g.i(f's_mul_hi_u32 s{S_RP}, s{T0}, {(1 << 32) // 18 + 1}')
            g.i(f's_mul_i32 s{T1}, s{S_RP}, 18')
            g.i(f's_sub_u32 s{S_SL}, s{T0}, s{T1}')
        self.srd(S_W8, P_W2 if gate else P_WO, 5308416 if gate else 4718592)
        g.i(f's_mov_b32 s{S_PITCH}, 1152')
        g.i(f's_mul_i32 s{S_OFF}, s{S_W}, {NS * 16 * 1152}')
        g.i(f's_lshl_b32 s{T0}, s{S_SL}, 6')
        g.i(f's_add_u32 s{S_OFF}, s{S_OFF}, s{T0}')
        g.i('s_barrier')
        self.load_weights(1, NS, S_OFF, S_PITCH)
        self.stamp()
        g.i('s_barrier')
        g.i(f's_lshl_b32 s{T0}, s{S_W}, 12')
        g.i(f'v_add_u32 v{VRW}, s{T0}, v{V_L16}')
        g.i(f's_lshl_b32 s{T0}, s{S_W}, 10')
        g.i(f'v_add_u32 v{VRR}, s{T0}, v{V_L16}')
        g.i(f'v_lshrrev_b32 v{VG}, 1, v{VRR}')
        g.i(f'v_add_u32 v{VG}, {L_G}, v{VG}')
        g.i(f'v_and_b32 v{VT}, 31, v{V_L}')
        g.i(f'v_mul_u32_u24 v{VXO}, 1152, v{VT}')
        g.i(f'v_lshrrev_b32 v{VT}, 5, v{V_L}')
        g.i(f'v_lshl_add_u32 v{VXO}, v{VT}, 3, v{VXO}')
        g.i(f's_lshl_b32 s{T0}, s{S_SL}, 6')
        g.i(f's_lshl_b32 s{T1}, s{S_W}, 4')
        g.i(f's_add_u32 s{T0}, s{T0}, s{T1}')
        g.i(f'v_add_u32 v{VXO}, s{T0}, v{VXO}')
        g.i(f'v_min_u32 v{VFA}, 17, v{V_L}')
        g.i(f'v_lshlrev_b32 v{VFA}, 7, v{VFA}')
        g.i(f's_mov_b32 s{S_RT}, s{S_RP}')
        g.i(f's_mov_b32 s{S_GL}, 0')

        def flag_addr(rt):
            if gate:
                g.i(f's_mul_hi_u32 s{S_NEED}, s{rt}, {(1 << 32) // 3 + 1}')
                g.i(f's_mul_i32 s{T0}, s{S_NEED}, 3')
                g.i(f's_sub_u32 s{T0}, s{rt}, s{T0}')
                g.i(f's_lshl_b32 s{T0}, s{T0}, 14')
                g.i(f's_add_u32 s{S_FLG}, s{T0}, {OFF_FLAG + FL_P1 + 48 * 128}')
                g.i(f's_add_u32 s{S_NEED}, s{S_NEED}, 1')
            else:
                g.i(f's_lshl_b32 s{T0}, s{rt}, 7')
                g.i(f's_add_u32 s{S_FLG}, s{T0}, {OFF_FLAG + FL_O}')
                g.i(f's_mov_b32 s{S_NEED}, 32')

        def flag_load(tag=None):
            if gate:
                g.i(f'buffer_load_dword v{VF}, v{VFA}, {WS}, s{S_FLG} offen sc1', tag=tag)
            else:
                g.i(f'buffer_load_dword v{VF}, off, {WS}, s{S_FLG} sc1', tag=tag)

        def flag_test():
            g.i(f'v_cmp_gt_u32 vcc, s{S_NEED}, v{VF}')
            g.i(f's_cmp_eq_u64 vcc, 0')

        def aaddr(dst, rt):
            g.i(f's_mul_i32 s{dst}, s{rt}, {TILE}')
            g.i(f's_mul_i32 s{T0}, s{S_W}, {NS * 1024}')
            g.i(f's_add_u32 s{dst}, s{dst}, s{T0}')
            g.i(f's_add_u32 s{dst}, s{dst}, {BASE}')

        def aload(sreg, n):
            g.i(f'buffer_load_dwordx4 {vr(RING + 4*(n % RN), 4)}, v{V_L16}, {WS}, s{sreg} offen offset:{1024*(n%4)} sc1')
            if n % 4 == 3:
                g.i(f's_add_u32 s{sreg}, s{sreg}, 4096')

        def mm(n):
            g.i(f'v_mfma_f32_32x32x16_bf16 {vr(ACC + 16*(n&1), 16)}, {wreg(4*n)}, {vr(RING + 4*(n % RN), 4)}, '
                f'{vr(ACC + 16*(n&1), 16) if n > 1 else 0}')
        cold, warm, nopre, epi, end = [g.newlabel('sg') for _ in range(5)]
        g.label(cold)
        flag_addr(S_RT)

        def ld():
            flag_load(); g.wait_vm()
        self.spin(ld, flag_test, 40 if gate else 4)
        aaddr(S_A, S_RT)
        for n in range(RN):
            aload(S_A, n)
        g.settle()
        g.label(warm)
        g.forget()
        g.i(f's_add_u32 s{T2}, s{S_RT}, {N_REP}')
        g.i(f's_min_u32 s{T2}, s{T2}, 63')
        flag_addr(T2)
        aaddr(S_AN, T2)
        g.i(f's_mul_i32 s{S_XO}, s{S_RT}, {32 * 1152}')
        for n in range(RN):
            g.i(f's_waitcnt vmcnt({RN - 1})')
            mm(n)
            aload(S_A, n + RN)
            if n == 0:
                flag_load()
                if not gate:
                    g.i(f'buffer_load_dwordx2 {vr(VT+6,2)}, v{VXO}, s[{S_X4}:{S_X4+3}], s{S_XO} offen')
        g.i(f's_waitcnt vmcnt({RN - 1})')
        flag_test()
        g.i(f's_cselect_b32 s{S_PRE}, 1, 0')
        g.i(f's_add_u32 s{T2}, s{S_RT}, {N_REP}')
        g.i(f's_cmp_lt_u32 s{T2}, 64')
        g.i(f's_cselect_b32 s{S_PRE}, s{S_PRE}, 0')
        g.i(f's_cmp_eq_u32 s{S_PRE}, 0')
        g.i(f's_cbranch_scc1 {nopre}')
        hist = list(g.hist)
        for n in range(RN, NS):
            g.i(f's_waitcnt vmcnt({RN - 1})')
            mm(n)
            aload(S_AN, n - RN)
        g.i(f's_mov_b32 s{S_A}, s{S_AN}')
        g.settle()
        g.i(f's_branch {epi}')
        g.label(nopre)
        g.hist = hist
        for n in range(RN, NS):
            g.i(f's_waitcnt vmcnt({NS - 1 - n})')
            mm(n)
        g.settle()
        g.label(epi)
        g.lds_q = []
        for r in range(0, 16, 2):
            g.i(f'v_pk_add_f32 {vr(ACC+r,2)}, {vr(ACC+r,2)}, {vr(ACC+16+r,2)}')
        for q in range(4):
            g.i(f'ds_write_b128 v{VRW}, {vr(ACC+4*q,4)} offset:{L_RED + 1024*q}')
        g.wait_lds()
        g.i('s_barrier')
        for w in range(4):
            g.i(f'ds_read_b128 {vr(ACC+4*w,4)}, v{VRR} offset:{L_RED + 4096*w}')
        if not gate:
            g.i(f'ds_read_b64 {vr(VT+4,2)}, v{VG}')
        g.i(f'v_xor_b32 v{VRW}, 0x4000, v{VRW}')
        g.i(f'v_xor_b32 v{VRR}, 0x4000, v{VRR}')
        g.wait_lds()
        for k in (0, 2):
            g.i(f'v_pk_add_f32 {vr(ACC+k,2)}, {vr(ACC+k,2)}, {vr(ACC+4+k,2)}')
            g.i(f'v_pk_add_f32 {vr(ACC+8+k,2)}, {vr(ACC+8+k,2)}, {vr(ACC+12+k,2)}')
        for k in (0, 2):
            g.i(f'v_pk_add_f32 {vr(ACC+k,2)}, {vr(ACC+k,2)}, {vr(ACC+8+k,2)}')
        g.i(f'v_cvt_pk_bf16_f32 v{ACC+4}, v{ACC}, v{ACC+1}')
        g.i(f'v_cvt_pk_bf16_f32 v{ACC+5}, v{ACC+2}, v{ACC+3}')
        if gate:
            A = self.silu_ops(ACC + 4, VT, VT + 1, VT + 2)
            B = self.silu_ops(ACC + 5, VT + 4, VT + 5, VT + 6)
            for p, q in zip(A, B):
                g.i(p); g.i(q)
            g.i(f'ds_write_b64 v{VG}, {vr(ACC+4,2)}')
        else:
            for k in range(2):
                s_, g_, x_ = ACC + 4 + k, VT + 4 + k, VT + 6 + k
                a, b, c, d = ACC + 8, ACC + 9, ACC + 10, ACC + 11
                g.i(f'v_lshlrev_b32 v{a}, 16, v{s_}')
                g.i(f'v_and_b32 v{b}, 0xffff0000, v{s_}')
                g.i(f'v_lshlrev_b32 v{c}, 16, v{g_}')
                g.i(f'v_and_b32 v{d}, 0xffff0000, v{g_}')
                g.i(f'v_mul_f32 v{a}, v{a}, v{c}')
                g.i(f'v_mul_f32 v{b}, v{b}, v{d}')
                g.i(f'v_cvt_pk_bf16_f32 v{s_}, v{a}, v{b}')
                g.i(f'v_lshlrev_b32 v{a}, 16, v{s_}')
                g.i(f'v_and_b32 v{b}, 0xffff0000, v{s_}')
                g.i(f'v_lshlrev_b32 v{c}, 16, v{x_}')
                g.i(f'v_and_b32 v{d}, 0xffff0000, v{x_}')
                g.i(f'v_add_f32 v{a}, v{a}, v{c}')
                g.i(f'v_add_f32 v{b}, v{b}, v{d}')
                g.i(f'v_cvt_pk_bf16_f32 v{s_}, v{a}, v{b}')
            g.i(f'buffer_store_dwordx2 {vr(ACC+4,2)}, v{VXO}, s[{S_O4}:{S_O4+3}], s{S_XO} offen')
        g.i(f'v_add_u32 v{VG}, 2048, v{VG}')
        g.i(f's_add_u32 s{S_RT}, s{S_RT}, {N_REP}')
        g.i(f's_cmp_eq_u32 s{S_PRE}, 1')
        g.settle()
        g.i(f's_cbranch_scc1 {warm}')
        g.i(f's_cmp_lt_u32 s{S_RT}, 64')
        g.i(f's_cbranch_scc1 {cold}')
        g.wait_lds()

    def attention(self):
        g = self.g
        S_U, S_S, S_HD, S_BLK, S_F1, S_NEED, S_C, S_LB = range(16, 24)
        VK, VF, VFA, VKW, VKR, VVR, VMX, VL, VT, VKK = 2, 3, 4, 5, 6, 7, 8, 9, 10, 15
        MASK, Q, K, V, SX, SM, KM, VM, REC, PB, O = 16, 32, 64, 96, 128, 144, 160, 192, 200, 216, 32
        g.i(f's_lshl_b32 s{S_U}, s{S_RANK}, 2')
        g.i(f's_add_u32 s{S_U}, s{S_U}, s{S_W}')
        g.i(f's_mov_b32 s{S_C}, {f2u(128 ** -0.5 * LOG2E):#x}')
        g.i(f's_lshl_b32 s{S_LB}, s{S_W}, 12')
        J, HF = VT, VT + 1
        g.i(f'v_and_b32 v{J}, 31, v{V_L}')
        g.i(f'v_lshrrev_b32 v{HF}, 5, v{V_L}')
        g.i(f'v_and_b32 v{VK}, 7, v{J}')
        g.i(f'v_bfe_u32 v{VT+2}, v{J}, 3, 1')
        g.i(f'v_lshl_add_u32 v{VK}, v{VT+2}, 4, v{VK}')
        g.i(f'v_bfe_u32 v{VT+2}, v{J}, 4, 1')
        g.i(f'v_lshl_add_u32 v{VK}, v{VT+2}, 3, v{VK}')
        g.i(f'v_lshlrev_b32 v{VK}, 4, v{VK}')
        g.i(f'v_lshl_add_u32 v{VK}, v{HF}, 9, v{VK}')
        g.i(f'v_lshlrev_b32 v{VT+2}, 3, v{HF}')
        g.i(f'v_sub_u32 v{VT+2}, v{J}, v{VT+2}')
        g.i(f'v_mov_b32 v{VT+3}, {f2u(-1e30):#x}')
        for r in range(16):
            g.i(f'v_cmp_le_i32 vcc, {16*(r>>3) + (r&7)}, v{VT+2}')
            g.i(f'v_cndmask_b32 v{MASK+r}, v{VT+3}, 0, vcc')
        g.i(f'v_and_b32 v{VT+2}, 15, v{V_L}')
        g.i(f'v_lshrrev_b32 v{VT+3}, 4, v{V_L}')
        g.i(f'v_lshlrev_b32 v{VKW}, 4, v{VT+2}')
        g.i(f'v_lshl_add_u32 v{VKW}, v{VT+3}, 2, v{VKW}')
        g.i(f'v_add_u32 v{VKW}, s{S_LB}, v{VKW}')
        g.i(f'v_and_b32 v{VT+2}, 12, v{V_L}')
        g.i(f'v_lshl_add_u32 v{VKK}, v{VT+2}, 4, v{VKW}')
        g.i(f'v_bfe_u32 v{VT+2}, v{V_L}, 2, 2')
        g.i(f'v_lshl_add_u32 v{VT+2}, v{HF}, 3, v{VT+2}')
        g.i(f'v_lshlrev_b32 v{VKR}, 4, v{VT+2}')
        g.i(f'v_and_b32 v{VT+2}, 1, v{V_L}')
        g.i(f'v_lshl_add_u32 v{VKR}, v{VT+2}, 3, v{VKR}')
        g.i(f'v_add_u32 v{VKR}, s{S_LB}, v{VKR}')
        g.i(f'v_lshlrev_b32 v{VVR}, 4, v{J}')
        g.i(f'v_lshl_add_u32 v{VVR}, v{HF}, 3, v{VVR}')
        g.i(f'v_add_u32 v{VVR}, s{S_LB}, v{VVR}')
        self.wait_ln(VT + 2)
        top, end = g.newlabel('at'), g.newlabel('ae')
        g.label(top)
        g.forget()
        g.i(f's_lshr_b32 s{S_S}, s{S_U}, 5')
        g.i(f's_and_b32 s{S_HD}, s{S_U}, 31')
        g.i(f's_lshl_b32 s{S_BLK}, s{S_U}, 13')
        g.i(f's_mul_hi_u32 s{S_NEED}, s{S_S}, {(1 << 32) // 3 + 1}')
        g.i(f's_mul_i32 s{T0}, s{S_NEED}, 3')
        g.i(f's_sub_u32 s{T0}, s{S_S}, s{T0}')
        g.i(f's_lshl_b32 s{T0}, s{T0}, 14')
        g.i(f's_add_u32 s{S_F1}, s{T0}, {OFF_FLAG + FL_P1}')
        g.i(f's_add_u32 s{S_NEED}, s{S_NEED}, 1')
        g.i(f's_lshr_b32 s{T0}, s{S_HD}, 1')
        g.i(f's_add_u32 s{T0}, s{T0}, 32')
        g.i(f's_lshl_b32 s{T0}, s{T0}, 7')
        g.i(f's_lshl_b32 s{T1}, s{S_HD}, 7')
        g.i(f'v_mov_b32 v{VFA}, s{T0}')
        g.i(f'v_writelane_b32 v{VFA}, s{T1}, 0')

        def ld():
            g.i(f'buffer_load_dword v{VF}, v{VFA}, {WS}, s{S_F1} offen sc1')
            g.wait_vm()

        def tst():
            g.i(f'v_cmp_gt_u32 vcc, s{S_NEED}, v{VF}')
            g.i(f's_cmp_eq_u64 vcc, 0')
        self.spin(ld, tst, 40)
        g.vm_q = []
        for base, dst, va, tg in ((OFF_QX, Q, V_L16, 'q'), (OFF_KX, K, VK, 'k'), (OFF_VX, V, V_L16, 'v')):
            for hb in range(2):
                g.i(f's_add_u32 s{T0}, s{S_BLK}, {base + 4096*hb}')
                for n in range(4):
                    g.i(f'buffer_load_dwordx4 {vr(dst + 16*hb + 4*n, 4)}, v{va}, {WS}, s{T0} offen offset:{1024*n} sc1', tag=tg)
        g.wait_vm('k')
        for u in range(8):
            g.i(f'v_mfma_f32_32x32x16_bf16 {vr(SX,16)}, {vr(K+4*u,4)}, {vr(Q+4*u,4)}, {vr(SX if u else MASK,16)}')
        g.i(f'v_max3_f32 v{VMX}, v{SX}, v{SX+1}, v{SX+2}')
        for r in range(3, 15, 2):
            g.i(f'v_max3_f32 v{VMX}, v{VMX}, v{SX+r}, v{SX+r+1}')
        g.i(f'v_max_f32 v{VMX}, v{VMX}, v{SX+15}')
        g.i(f's_lshl_b32 s{T2}, s{S_HD}, 7')
        g.i(f's_add_u32 s{T2}, s{T2}, {OFF_FLAG + FL_KM}')
        g.i(f's_add_u32 s{S_NEED}, s{S_S}, 1')
        self.wait_word(T2, f's{S_NEED}', VF, 4)
        g.i(f's_lshl_b32 s{T0}, s{S_U}, 12')
        g.i(f's_add_u32 s{T0}, s{T0}, {OFF_KM}')
        g.vm_q = []; g.lds_q = []
        for w in range(4):
            g.i(f'buffer_load_dwordx4 {vr(REC+4*w,4)}, v{V_L16}, {WS}, s{T0} offen offset:{1024*w} sc1', tag=('r', w))
        for w in range(4):
            g.wait_vm(('r', w))
            g.i(f'ds_write_b32 v{VKK}, v{REC+4*w+1} offset:{512*w}')
            g.i(f'ds_write_b32 v{VKK}, v{REC+4*w+3} offset:{512*w + 64}')
            g.i(f'ds_write2st64_b32 v{VKW}, v{REC+4*w}, v{REC+4*w+2} offset0:{8+2*w} offset1:{8+2*w+1}')
        g.wait_lds()
        for u in range(8):
            g.i(f'ds_read_b64_tr_b16 {vr(KM+4*u,2)}, v{VKR} offset:{256*u}', tag=('km', u))
            g.i(f'ds_read_b64_tr_b16 {vr(KM+4*u+2,2)}, v{VKR} offset:{256*u + 64}', tag=('km', u))
            if u >= 4:
                g.wait_lds(('km', u - 4))
                g.i(f'v_mfma_f32_32x32x16_bf16 {vr(SM,16)}, {vr(KM+4*(u-4),4)}, {vr(Q+4*(u-4),4)}, {vr(SM,16) if u > 4 else 0}')
        for nb in range(4):
            g.i(f'ds_read_b64 {vr(VM+2*nb,2)}, v{VVR} offset:{2048 + 512*nb}', tag='vm')
        for u in range(4, 8):
            g.wait_lds(('km', u))
            g.i(f'v_mfma_f32_32x32x16_bf16 {vr(SM,16)}, {vr(KM+4*u,4)}, {vr(Q+4*u,4)}, {vr(SM,16)}')
        g.i(f'v_max3_f32 v{VMX}, v{VMX}, v{SM}, v{SM+1}')
        g.i(f'v_max3_f32 v{VMX}, v{VMX}, v{SM+2}, v{SM+3}')
        g.i(f'v_mov_b32 v{VT}, v{VMX}')
        g.i(f'v_permlane32_swap_b32 v{VMX}, v{VT}')
        g.i(f'v_max_f32 v{VMX}, v{VMX}, v{VT}')
        g.i(f'v_mul_f32 v{VMX}, s{S_C}, v{VMX}')
        vals = list(range(SX, SX + 20))
        for r in vals:
            g.i(f'v_fma_f32 v{r}, v{r}, s{S_C}, -v{VMX}')
        for r in vals:
            g.i(f'v_exp_f32 v{r}, v{r}')
        for k in range(10):
            g.i(f'v_cvt_pk_bf16_f32 v{PB+k}, v{SX+2*k}, v{SX+2*k+1}')
        g.wait_lds()
        sums = [f'v_add_f32 v{VL}, v{SX}, v{SX+1}'] + [f'v_add_f32 v{VL}, v{VL}, v{r}' for r in vals[2:]] + \
            [f'v_mov_b32 v{VT}, v{VL}', 's_nop 1', f'v_permlane32_swap_b32 v{VL}, v{VT}', f'v_add_f32 v{VL}, v{VL}, v{VT}',
             f'v_rcp_f32 v{VL}, v{VL}']
        for st in range(3):
            for nb in range(4):
                o = vr(O + 16 * nb, 16)
                g.i([f'v_mfma_f32_32x32x16_bf16 {o}, {vr(V+8*nb,4)}, {vr(PB,4)}, 0',
                     f'v_mfma_f32_32x32x16_bf16 {o}, {vr(V+8*nb+4,4)}, {vr(PB+4,4)}, {o}',
                     f'v_mfma_f32_32x32x8_bf16 {o}, {vr(VM+2*nb,2)}, {vr(PB+8,2)}, {o}'][st])
                for _ in range(4):
                    if sums:
                        g.i(sums.pop(0))
        assert not sums
        g.i(f's_add_u32 s{T0}, s{S_BLK}, {OFF_O}')
        g.i(f's_add_u32 s{T1}, s{T0}, 4096')
        for n in range(8):
            o, p = O + 8 * n, KM + 4 * n
            for r in range(8):
                g.i(f'v_mul_f32 v{o+r}, v{o+r}, v{VL}')
            for k in range(4):
                g.i(f'v_cvt_pk_bf16_f32 v{p+k}, v{o+2*k}, v{o+2*k+1}')
            g.i(f'v_permlane32_swap_b32 v{p}, v{p+2}')
            g.i(f'v_permlane32_swap_b32 v{p+1}, v{p+3}')
            g.i(f'buffer_store_dwordx4 {vr(p,4)}, v{V_L16}, {WS}, s{T0 if n < 4 else T1} offen offset:{1024*(n%4)} sc1')
        g.i(f's_lshl_b32 s{T0}, s{S_S}, 7')
        g.i(f's_add_u32 s{T0}, s{T0}, {OFF_FLAG + FL_O}')
        g.i(f'v_mov_b32 v{VF}, 1')
        g.wait_vm()
        g.i('s_mov_b64 exec, 1')
        g.i(f'buffer_atomic_add v{VF}, off, {WS}, s{T0}')
        g.i('s_mov_b64 exec, -1')
        g.i(f's_add_u32 s{S_U}, s{S_U}, {4 * N_ATT}')
        g.i(f's_cmp_lt_u32 s{S_U}, 2048')
        g.settle()
        g.i(f's_cbranch_scc1 {top}')
```

```python
import math, struct
from asmgen import *
from layout import *

S_C2 = 2
S_WS = 4
S_W8 = 8
S_DBG = 12
S_W, S_H, S_STEP = 14, 15, 16
S_MCUR = 17
S_PST = 18
S_KX, S_VX, S_KM = 21, 22, 23
S_RED = 24
S_MS, S_M1 = 28, 30
S_RDY, S_PF = 32, 33
S_M3, S_ONE = 34, 36
S_MP, S_RNEED = 38, 39
S_C = 40
S_TRY = 41
S_T0, S_T1, S_T2, S_T3 = 42, 43, 44, 45
S_TAG, S_MRST = 46, 47
S_PTR = 48
S_FLG, S_XCC = 58, 59
S_ST = 60
S_SYN, S_SYO = 84, 85
S_MG = 86
S_PM = 72
S_NAN = 74
S_TRY2 = 76
V_L16, V_IDX, V_ID0, V_ID1, V_WL, V_SW, V_OW, V_RED, V_MST, V_KV = range(10)
V_G2 = 10
V_ACC = 14
V_X0 = 30
V_T0, V_T1 = 34, 35
V_X1 = 36
V_KXD = 40
V_AR = 48
V_STG = 60
V_PUB = 76
L_M = 0
L_QK = 9216
L_SM = 13312
L_EL = 15360
L_W = 16384
LDS_BYTES = 163840
SPIN_MAX = 300000
HS = 9216
WS = f's[{S_WS}:{S_WS+3}]'


def f2u(x):
    return struct.unpack('<I', struct.pack('<f', x))[0]


CHUNKS = [('q', t) for t in range(9)] + [('k', t) for t in range(9)] + [('v', t) for t in range(9)] + \
         [('o', u, p) for p in range(4) for u in range(2)] + [('l',)]
LDS_PAIRS = [('k', 1), ('k', 3), ('k', 5), ('k', 7), ('v', 2), ('o', 1, 0), ('o', 1, 1), ('o', 1, 2), ('o', 1, 3)]
STG_NEXT = {LDS_PAIRS[i]: LDS_PAIRS[i + 1] for i in (0, 1, 2, 3, 5, 6, 7)}
REG_PAIRS = [p for p in CHUNKS if p not in LDS_PAIRS]
SEQ = REG_PAIRS + LDS_PAIRS
LDS_BLOCK = {p: SEQ.index(p) % 9 for p in LDS_PAIRS}
REGBASE = {}
for _n, _p in enumerate(REG_PAIRS):
    for _x in range(2):
        _s = 2 * _n + _x
        REGBASE[(_p, _x)] = ('a', 8 * _s) if _s < 32 else ('v', 80 + 8 * (_s - 32))
assert len(REG_PAIRS) == 27 and len(SEQ) == 36


def wfrag(p, x, off=0, n=8):
    k, b = REGBASE[(p, x)]
    return (ar if k == 'a' else vr)(b + off, n)


class Chain:
    def __init__(self, g, diag=0, standalone=True, opt=()):
        self.g = g
        self.diag = diag
        self.standalone = standalone
        self.opt = set(opt)
        self.nst = 0
        self.names = []
        self.staged = [None] * 4
        self.ring = {}
        self.mp, self.nb, self.io, self.bp = 13, 5, 9, 0
        self.dr, self.dm, self.dq = [None, None, None], [0, 0, 0, 0], None
        self.sync = None
        self.wake = 0
        self.only = None
        self.pre, self.dq2 = 0, 0
        self.after_wait = lambda: None

    def stamp(self, name='', lvl=0):
        if self.only is not None:
            if name in self.only:
                k = self.only.index(name)
                self.g.i(f's_memtime s[{S_ST + 2*k}:{S_ST + 2*k + 1}]')
            return
        if not self.diag or (lvl and lvl != self.diag):
            return
        op = 's_memrealtime' if self.diag == 3 else 's_memtime'
        self.g.i(f'{op} s[{S_ST + 2*self.nst}:{S_ST + 2*self.nst + 1}]')
        self.names.append(name)
        self.nst += 1
        assert self.nst <= 6

    def dump_stamps(self):
        if not self.diag:
            return
        g = self.g
        g.wait_lds()
        for k in range(self.nst):
            g.i(f'v_writelane_b32 v{V_T0}, s{S_ST + 2*k}, {k}')
        g.i(f'v_writelane_b32 v{V_T0}, s100, 29')
        g.i(f'v_writelane_b32 v{V_T0}, s98, 30')
        g.i(f'v_writelane_b32 v{V_T0}, s99, 31')
        g.i(f's_lshl_b32 s{S_T0}, s{S_STEP}, 5')
        g.i(f's_add_u32 s{S_T0}, s{S_T0}, s{S_H}')
        g.i(f's_lshl_b32 s{S_T0}, s{S_T0}, 2')
        g.i(f's_add_u32 s{S_T0}, s{S_T0}, s{S_W}')
        g.i(f's_lshl_b32 s{S_T0}, s{S_T0}, 7')
        g.i(f's_add_u32 s{S_T0}, s{S_T0}, {OFF_DIAG - 32*4*128}')
        g.i(f'v_lshrrev_b32 v{V_T1}, 2, v{V_L16}')
        g.i(f's_mov_b64 exec, 0xffffffff')
        g.i(f'buffer_store_dword v{V_T0}, v{V_T1}, {WS}, s{S_T0} offen')
        g.i(f's_mov_b64 exec, -1')

    def set_srd(self, ptr, nbytes):
        g = self.g
        g.i(f's_mov_b32 s{S_W8}, s{ptr}')
        g.i(f's_mov_b32 s{S_W8+1}, s{ptr+1}')
        g.i(f's_mov_b32 s{S_W8+2}, {nbytes}')
        g.i(f's_mov_b32 s{S_W8+3}, 0x20000')

    def prologue(self):
        g = self.g
        L, I_, G_, A, B, C, D, E = range(14, 22)
        LA, LB, LO, LL, TR0, TR1, TQ0, TQ1, TL0, TL1, D0, TMP = range(22, 34)
        TO = [V_X1, V_X1 + 2]
        g.i(f'v_mov_b32 v{L}, v0')
        g.i(f'v_and_b32 v{I_}, 15, v{L}')
        g.i(f'v_lshrrev_b32 v{G_}, 4, v{L}')
        g.i(f'v_lshrrev_b32 v{A}, 1, v{G_}')
        g.i(f'v_and_b32 v{B}, 1, v{G_}')
        g.i(f'v_lshlrev_b32 v{C}, 2, v{G_}')
        g.i(f'v_xor_b32 v{C}, v{C}, v{I_}')
        g.i(f'v_lshlrev_b32 v{C}, 4, v{C}')
        g.i(f'v_lshlrev_b32 v{LA}, 1, v{A}')
        g.i(f'v_lshl_add_u32 v{LA}, v{B}, 4, v{LA}')
        g.i(f'v_lshl_add_u32 v{LA}, v{LA}, 13, v{C}')
        g.i(f'v_lshl_add_u32 v{D}, v{A}, 3, v{B}')
        g.i(f'v_lshl_add_u32 v{LB}, v{D}, 13, v{C}')
        g.i(f'v_mul_u32_u24 v{LO}, 1152, v{D}')
        g.i(f'v_add_u32 v{LO}, v{LO}, v{C}')
        g.i(f's_lshl_b32 s{S_T2}, s{S_H}, 8')
        g.i(f's_lshl_b32 s{S_T0}, s{S_W}, 15')
        g.i(f's_add_u32 s{S_MG}, s{S_T2}, s{S_T0}')
        g.i(f's_lshl_b32 s{S_T0}, s{S_W}, 17')
        g.i(f's_add_u32 s{S_T2}, s{S_T2}, s{S_T0}')
        g.i(f's_lshl_b32 s{S_T3}, s{S_H}, 3')
        g.i(f's_add_u32 s{S_T3}, s{S_T3}, s{S_W}')
        g.i(f's_mul_i32 s{S_T3}, s{S_T3}, {16*1152}')
        g.i(f's_mul_i32 s{S_PF}, s{S_W}, 36864')
        g.i(f's_add_u32 s{S_PF}, s{S_PF}, {L_W}')
        ptr = {'q': S_PTR + 2, 'k': S_PTR + 4, 'v': S_PTR + 6, 'o': S_PTR + 8, 'l': S_PTR + 8}
        cur = [None]

        def issue(n):
            p = SEQ[n]
            if cur[0] != ptr[p[0]]:
                self.set_srd(ptr[p[0]], 4718592)
                cur[0] = ptr[p[0]]
            for q in range(4):
                hh, x1 = q >> 1, q & 1
                if p[0] == 'o':
                    uni, base, va = (64 * p[1] + 2 * q) * 1152 + 256 * p[2], S_T3, LO
                elif p[0] == 'l':
                    uni, base, va = (64 * hh + 4 * x1) * 1152 + 1024, S_T3, LL
                elif p[1] == 4:
                    uni, base, va = (512 + 2 * q) * 8192, S_T2, LB
                else:
                    qd, w = (0, p[1]) if p[1] < 4 else (1, p[1] - 5)
                    uni, base, va = (256 * qd + 32 * w + 128 * x1 + hh) * 8192, S_MG, LA
                g.i(f's_add_u32 m0, s{S_PF}, {(n % 9) * 4096 + q * 1024}')
                g.i(f's_add_u32 s{S_T0}, s{base}, {uni}')
                g.i(f'buffer_load_dwordx4 v{va}, s[{S_W8}:{S_W8+3}], s{S_T0} offen lds', tag=('w', n))
        if 'nocode' not in self.opt:
            g.i('s_getpc_b64 s[70:71]')
            g.i(f'v_lshlrev_b32 v{E}, 7, v{L}')
            g.i(f's_lshl_b32 s{S_T0}, s{S_W}, 13')
            g.i(f'v_add_u32 v{E}, s{S_T0}, v{E}')
            g.i(f'global_load_dword v{V_AR+4}, v{E}, s[70:71]')
        g.vm_q = []
        for n in range(8):
            issue(n)
        g.i(f'v_lshlrev_b32 v{V_L16}, 4, v{L}')
        g.i(f'v_bfe_u32 v{A}, v{L}, 4, 1')
        g.i(f'v_bfe_u32 v{B}, v{L}, 3, 1')
        g.i(f'v_lshl_add_u32 v{A}, v{A}, 3, v{B}')
        g.i(f'v_lshrrev_b32 v{B}, 5, v{L}')
        g.i(f'v_lshl_add_u32 v{A}, v{B}, 1, v{A}')
        g.i(f'v_mul_u32_u24 v{LL}, 1152, v{A}')
        g.i(f'v_and_b32 v{B}, 7, v{L}')
        g.i(f'v_lshl_add_u32 v{LL}, v{B}, 4, v{LL}')
        g.i(f'v_lshrrev_b32 v{A}, 1, v{G_}')
        g.i(f'v_mul_u32_u24 v{E}, 36864, v{A}')
        g.i(f'v_add_u32 v{E}, {L_W}, v{E}')
        g.i(f'v_and_b32 v{A}, 1, v{G_}')
        g.i(f'v_lshrrev_b32 v{B}, 2, v{I_}')
        g.i(f'v_lshl_add_u32 v{A}, v{A}, 3, v{B}')
        g.i(f'v_and_b32 v{C}, 3, v{I_}')
        g.i(f'v_lshl_add_u32 v{TL0}, v{A}, 7, v{E}')
        g.i(f'v_lshl_add_u32 v{TL0}, v{C}, 3, v{TL0}')
        g.i(f's_lshl_b32 s{S_T0}, s{S_W}, 5')
        g.i(f'v_add_u32 v{TL0}, s{S_T0}, v{TL0}')
        g.i(f'v_lshl_add_u32 v{TR0}, v{A}, 8, v{E}')
        g.i(f'v_xor_b32 v{D}, s{S_W}, v{B}')
        g.i(f'v_lshl_add_u32 v{TR0}, v{D}, 6, v{TR0}')
        g.i(f'v_lshl_add_u32 v{TQ0}, v{C}, 4, v{TR0}')
        g.i(f'v_lshl_add_u32 v{TR0}, v{C}, 3, v{TR0}')
        g.i(f'v_and_b32 v{A}, 1, v{G_}')
        g.i(f'v_lshl_add_u32 v{TMP}, v{A}, 11, v{E}')
        g.i(f'v_lshl_add_u32 v{TMP}, v{C}, 3, v{TMP}')
        g.i(f'v_lshrrev_b32 v{A}, 1, v{B}')
        g.i(f'v_lshl_add_u32 v{TMP}, v{A}, 5, v{TMP}')
        for x in range(2):
            g.i(f'v_and_b32 v{A}, 1, v{B}')
            g.i(f'v_or_b32 v{A}, {2*x}, v{A}')
            g.i(f'v_lshl_add_u32 v{TO[x]}, v{A}, 8, v{TMP}')
            g.i(f'v_xor_b32 v{A}, s{S_W}, v{A}')
            g.i(f'v_lshl_add_u32 v{TO[x]}, v{A}, 6, v{TO[x]}')
        for r in (TR0, TQ0, TL0, TO[0], TO[1]):
            g.i(f'v_add_u32 v{r+1}, {2*36864}, v{r}')
        g.i(f'v_add_u32 v{V_WL}, s{S_PF}, v{V_L16}')
        g.i(f'v_bfe_u32 v{A}, v{I_}, 1, 1')
        g.i(f'v_mul_u32_u24 v{D}, 0xaaaa, v{A}')
        g.i(f'v_add_u32 v{V_IDX}, 0x4444, v{D}')
        g.i(f'v_and_b32 v{C}, 1, v{I_}')
        g.i(f'v_lshlrev_b32 v{D}, 4, v{C}')
        g.i(f'v_mov_b32 v{E}, 0x3f80')
        g.i(f'v_lshlrev_b32 v{D}, v{D}, v{E}')
        g.i(f'v_cmp_eq_u32 vcc, v{B}, v{G_}')
        g.i(f'v_cndmask_b32 v{D}, 0, v{D}, vcc')
        g.i(f'v_cmp_eq_u32 vcc, 0, v{A}')
        g.i(f'v_cndmask_b32 v{V_ID0}, 0, v{D}, vcc')
        g.i(f'v_cndmask_b32 v{V_ID1}, v{D}, 0, vcc')
        g.i(f'v_lshl_add_u32 v{D}, v{B}, 1, v{C}')
        g.i(f'v_lshlrev_b32 v{V_SW}, 8, v{G_}')
        g.i(f'v_lshl_add_u32 v{V_SW}, v{D}, 4, v{V_SW}')
        g.i(f'v_lshl_add_u32 v{V_SW}, v{A}, 7, v{V_SW}')
        g.i(f'v_lshrrev_b32 v{D}, 1, v{I_}')
        g.i(f'v_lshlrev_b32 v{V_OW}, 6, v{D}')
        g.i(f'v_lshl_add_u32 v{V_OW}, v{C}, 4, v{V_OW}')
        g.i(f'v_lshrrev_b32 v{D}, 1, v{G_}')
        g.i(f'v_lshl_add_u32 v{V_OW}, v{D}, 5, v{V_OW}')
        g.i(f'v_and_b32 v{D}, 1, v{G_}')
        g.i(f'v_lshl_add_u32 v{V_OW}, v{D}, 3, v{V_OW}')
        g.i(f'v_lshlrev_b32 v{V_KV}, 9, v{G_}')
        g.i(f'v_lshl_add_u32 v{V_KV}, v{I_}, 4, v{V_KV}')
        self.scalar_consts()
        lq, lx, l3 = g.newlabel('rq'), g.newlabel('rx'), g.newlabel('r3')
        g.i(f's_lshr_b32 s{S_T0}, s{S_H}, 3')
        g.i(f's_bfe_u32 s{S_T1}, s{S_H}, 0x20001')
        g.i(f'v_mul_u32_u24 v{D0}, 576, v{D}')
        g.i(f's_mul_i32 s{S_TRY}, s{S_T1}, 1152')
        g.i(f'v_add_u32 v{D0}, s{S_TRY}, v{D0}')
        g.i(f's_cmp_lt_u32 s{S_W}, 2')
        g.i(f's_cbranch_scc1 {lq}')
        g.i(f's_cmp_eq_u32 s{S_W}, 3')
        g.i(f's_cbranch_scc1 {l3}')
        g.i(f'v_lshrrev_b32 v{B}, 1, v{L}')
        g.i(f'v_mul_u32_u24 v{V_RED}, {HS}, v{B}')
        g.i(f'v_lshl_add_u32 v{V_RED}, v{C}, 4, v{V_RED}')
        g.i(f's_lshl_b32 s{S_TRY}, s{S_H}, 5')
        g.i(f'v_add_u32 v{V_RED}, s{S_TRY}, v{V_RED}')
        g.i(f'v_add_u32 v{V_RED}, 8192, v{V_RED}')
        g.i(f'v_lshlrev_b32 v{V_MST}, 4, v{D}')
        g.i(f'v_lshl_add_u32 v{V_MST}, v{C}, 3, v{V_MST}')
        g.i(f'v_add_u32 v{V_MST}, s{S_TRY}, v{V_MST}')
        g.i(f'v_add_u32 v{V_MST}, 4096, v{V_MST}')
        g.i(f's_lshl_b32 s{S_T0}, s{S_T0}, 4')
        g.i(f's_and_b32 s{S_T1}, s{S_H}, 1')
        g.i(f's_lshl_b32 s{S_T1}, s{S_T1}, 3')
        g.i(f's_add_u32 s{S_T0}, s{S_T0}, s{S_T1}')
        g.i(f's_add_u32 s{S_T0}, s{S_T0}, 512')
        g.i(f'v_lshl_add_u32 v{D0}, v{C}, 2, v{D0}')
        g.i(f'v_add_lshl_u32 v{D0}, v{D0}, s{S_T0}, 1')
        g.i(f's_mov_b32 s{S_MS}, 0x00030003')
        g.i(f's_mov_b32 s{S_T0}, 2')
        g.i(f's_mov_b32 s{S_T1}, 4')
        g.i(f's_branch {lx}')
        g.label(l3)
        g.i(f'v_lshlrev_b32 v{V_RED}, 7, v{L}')
        g.i(f'v_mov_b32 v{V_MST}, 0')
        g.i(f's_branch {lx}')
        g.label(lq)
        g.i(f'v_lshrrev_b32 v{B}, 3, v{L}')
        g.i(f'v_mul_u32_u24 v{V_RED}, {HS}, v{B}')
        g.i(f'v_and_b32 v{B}, 7, v{L}')
        g.i(f'v_lshl_add_u32 v{V_RED}, v{B}, 4, v{V_RED}')
        g.i(f's_lshl_b32 s{S_TRY}, s{S_W}, 5')
        g.i(f's_add_u32 s{S_TRY}, s{S_TRY}, s{S_H}')
        g.i(f's_lshl_b32 s{S_TRY}, s{S_TRY}, 7')
        g.i(f'v_add_u32 v{V_RED}, s{S_TRY}, v{V_RED}')
        g.i(f'v_bfe_u32 v{E}, v{L}, 2, 1')
        g.i(f'v_lshlrev_b32 v{V_MST}, 8, v{E}')
        g.i(f'v_lshl_add_u32 v{V_MST}, v{A}, 5, v{V_MST}')
        g.i(f'v_lshl_add_u32 v{V_MST}, v{D}, 4, v{V_MST}')
        g.i(f'v_lshl_add_u32 v{V_MST}, v{C}, 3, v{V_MST}')
        g.i(f's_mul_i32 s{S_TRY}, s{S_W}, 5')
        g.i(f's_add_u32 s{S_TRY}, s{S_TRY}, s{S_T0}')
        g.i(f's_lshl_b32 s{S_TRY}, s{S_TRY}, 10')
        g.i(f's_lshl_b32 s{S_T1}, s{S_T1}, 6')
        g.i(f's_add_u32 s{S_TRY}, s{S_TRY}, s{S_T1}')
        g.i(f's_and_b32 s{S_T1}, s{S_H}, 1')
        g.i(f's_lshl_b32 s{S_RNEED}, s{S_T1}, 9')
        g.i(f's_add_u32 s{S_TRY}, s{S_TRY}, s{S_RNEED}')
        g.i(f'v_add_u32 v{V_MST}, s{S_TRY}, v{V_MST}')
        g.i(f's_lshl_b32 s{S_T0}, s{S_T0}, 5')
        g.i(f's_lshl_b32 s{S_T1}, s{S_T1}, 3')
        g.i(f's_add_u32 s{S_T0}, s{S_T0}, s{S_T1}')
        g.i(f's_lshl_b32 s{S_T1}, s{S_W}, 8')
        g.i(f's_add_u32 s{S_T0}, s{S_T0}, s{S_T1}')
        g.i(f'v_add_u32 v{D0}, v{D0}, v{B}')
        g.i(f'v_add_lshl_u32 v{D0}, v{D0}, s{S_T0}, 1')
        g.i(f's_mov_b32 s{S_T0}, 32')
        g.i(f's_mov_b32 s{S_T1}, 256')
        g.label(lx)
        P0 = 68
        g.i(f's_mov_b32 s{P0}, s{S_PTR}')
        g.i(f's_mov_b32 s{P0+1}, s{S_PTR+1}')
        g.i(f's_mov_b32 s{P0+2}, 9216')
        g.i(f's_mov_b32 s{P0+3}, 0x20000')
        for k in range(4):
            g.i(f'v_mov_b32 v{V_KXD+k}, 0')
        g.i(f'v_mov_b64 {vr(V_PUB,2)}, -1')
        g.i(f'v_mov_b64 {vr(V_PUB+2,2)}, 0')
        g.i(f's_add_u32 s{S_TRY}, s{S_T0}, s{S_T1}')
        sk = g.newlabel('ix')
        g.i(f's_cmp_eq_u32 s{S_W}, 3')
        g.i(f's_cbranch_scc1 {sk}')
        g.i(f'buffer_load_ushort v{V_AR}, v{D0}, s[{P0}:{P0+3}], 0 offen')
        g.i(f'buffer_load_ushort v{V_AR+1}, v{D0}, s[{P0}:{P0+3}], s{S_T0} offen')
        g.i(f'buffer_load_ushort v{V_AR+2}, v{D0}, s[{P0}:{P0+3}], s{S_T1} offen')
        g.i(f'buffer_load_ushort v{V_AR+3}, v{D0}, s[{P0}:{P0+3}], s{S_TRY} offen')
        g.i(f's_mov_b64 exec, s[{S_MS}:{S_MS+1}]')
        for k in range(1, 4):
            g.i(f's_mov_b32 s{S_T0}, {OFF_MB + 16384 * k}')
            g.i(f'buffer_store_dwordx2 {vr(V_PUB,2)}, v{V_MST}, {WS}, s{S_T0} offen sc1')
        g.i('s_mov_b64 exec, -1')
        g.label(sk)
        for j in range(3):
            if j == 2:
                g.i(f's_mov_b64 exec, 0xffff')
            g.i(f'buffer_store_dwordx4 {vr(V_KXD,4)}, v{V_L16}, {WS}, s{S_PST+j} offen sc1')
            g.i(f's_xor_b32 s{S_T0}, s{S_PST+j}, 0x100000')
            g.i(f'buffer_store_dwordx4 {vr(V_KXD,4)}, v{V_L16}, {WS}, s{S_T0} offen sc1')
        g.i('s_mov_b64 exec, 1')
        g.i(f'buffer_store_dword v{V_KXD}, off, {WS}, s{S_SYO} sc1')
        g.i('s_mov_b64 exec, -1')
        g.vm_q = [t for t in g.vm_q if t]
        for n, p in enumerate(SEQ):
            g.wait_vm(('w', n))
            g.i('s_barrier')
            if n + 8 < len(SEQ):
                issue(n + 8)
            if n == 9:
                s2 = g.newlabel('m0')
                g.i(f's_cmp_eq_u32 s{S_W}, 3')
                g.i(f's_cbranch_scc1 {s2}')
                g.i(f'v_lshl_or_b32 v{V_T0}, v{V_AR+1}, 16, v{V_AR}')
                g.i(f'v_lshl_or_b32 v{V_T1}, v{V_AR+3}, 16, v{V_AR+2}')
                g.i(f'v_min_u32 v{V_T0}, -2, v{V_T0}')
                g.i(f's_mov_b64 exec, s[{S_MS}:{S_MS+1}]')
                g.i(f'buffer_store_dwordx2 {vr(V_T0,2)}, v{V_MST}, {WS}, s{S_MCUR} offen sc1')
                g.i('s_mov_b64 exec, -1')
                g.label(s2)
                g.vm_q = [t for t in g.vm_q if t]
            if n == 19:
                s2 = g.newlabel('si')
                g.i(f's_cmp_lg_u32 s{S_W}, 0')
                g.i(f's_cbranch_scc1 {s2}')
                if self.standalone:
                    g.i(f's_mov_b32 s{S_T0}, 1')
                else:
                    g.i(f's_cmp_eq_u32 s{S_XCC}, {CHAIN_XCC}')
                    g.i(f's_cselect_b32 s{S_T0}, 1, 0x10001')
                g.i('s_mov_b64 exec, 1')
                g.i(f'v_mov_b32 v{V_T0}, {DBG_INIT}')
                g.i(f'v_mov_b32 v{V_T1}, s{S_T0}')
                g.i(f'global_atomic_add v{V_T0}, v{V_T1}, s[{S_DBG}:{S_DBG+1}]')
                g.i('s_mov_b64 exec, -1')
                g.label(s2)
                g.vm_q = [t for t in g.vm_q if t]
            blk = (n % 9) * 4096
            inlds = p in LDS_PAIRS
            for x in range(2):
                for q in range(4):
                    dst = vr(V_STG + 8 * x + 2 * q, 2) if inlds else wfrag(p, x, 2 * q, 2)
                    if p[0] in 'qk':
                        va, off = TQ0, 1024 * (q & 1) + 8 * x
                    elif p[0] == 'l':
                        va, off = TL0, 512 * (q & 1) + 2048 * x
                    elif p[0] == 'o':
                        va, off = TO[x], 1024 * (q & 1)
                    else:
                        va, off = TR0, 1024 * (q & 1) + 32 * x
                    g.i(f'ds_read_b64_tr_b16 {dst}, v{va + (q >> 1)} offset:{blk + off}')
            g.wait_lds()
            if inlds:
                g.i('s_barrier')
                for y in range(4):
                    g.i(f'ds_write_b128 v{V_WL}, {vr(V_STG + 4 * y, 4)} offset:{blk + y * 1024}')
                g.wait_lds()

    def scalar_consts(self):
        g = self.g
        g.i(f's_mov_b32 s{S_STEP}, 0')
        g.i(f's_mov_b32 s{S_MCUR}, {OFF_MB}')
        g.i(f's_mov_b32 s{S_MRST}, {OFF_MB + 3 * 16384}')
        g.i(f's_mov_b32 s{S_TAG}, 1')
        g.i(f's_mov_b32 s{S_SYN}, {OFF_SYNC}')
        g.i(f's_lshl_b32 s{S_SYO}, s{S_H}, 4')
        g.i(f's_add_u32 s{S_SYO}, s{S_SYO}, {OFF_SYNC}')
        g.i(f's_lshl_b32 s{S_FLG}, s{S_H}, 7')
        g.i(f's_add_u32 s{S_RDY}, s{S_FLG}, {OFF_FLAG + FL_P1}')
        g.i(f's_add_u32 s{S_FLG}, s{S_FLG}, {OFF_FLAG + FL_KM}')
        g.i(f's_mul_i32 s{S_T0}, s{S_H}, {HS}')
        g.i(f's_lshl_b32 s{S_T1}, s{S_W}, 8')
        g.i(f's_add_u32 s{S_PST+2}, s{S_T0}, s{S_T1}')
        g.i(f's_add_u32 s{S_PST+2}, s{S_PST+2}, {OFF_PART + 8192}')
        g.i(f's_lshl_b32 s{S_T1}, s{S_W}, 10')
        g.i(f's_add_u32 s{S_T0}, s{S_T0}, s{S_T1}')
        g.i(f's_add_u32 s{S_PST}, s{S_T0}, {OFF_PART}')
        g.i(f's_add_u32 s{S_PST+1}, s{S_T0}, {OFF_PART + 4096}')
        for n in range(4):
            g.i(f's_mov_b32 s{S_RED + n}, {OFF_PART + n * 8 * HS}')
        g.i(f's_mov_b32 s{S_MS}, 0x00ff00ff')
        g.i(f's_mov_b32 s{S_MS+1}, 0')
        g.i(f's_mov_b32 s{S_M1}, 0x11111111')
        g.i(f's_mov_b32 s{S_M1+1}, 0x11111111')
        g.i(f's_lshl_b32 s{S_T0}, s{S_H}, 12')
        g.i(f's_add_u32 s{S_T0}, s{S_T0}, s{S_T1}')
        g.i(f's_add_u32 s{S_KM}, s{S_T0}, {OFF_KM - 32 * 4096}')
        g.i(f's_lshl_b32 s{S_T0}, s{S_T0}, 1')
        g.i(f's_add_u32 s{S_KX}, s{S_T0}, {OFF_KX}')
        g.i(f's_add_u32 s{S_VX}, s{S_T0}, {OFF_VX}')
        g.i(f's_mov_b32 s{S_M3}, 0x33333333')
        g.i(f's_mov_b32 s{S_M3+1}, 0x33333333')
        g.i(f's_mov_b32 s{S_ONE}, 0x3f803f80')
        g.i(f's_mov_b32 s{S_ONE+1}, 0x3f803f80')
        g.i(f's_mov_b32 s{S_C}, {f2u(128 ** -0.5 * math.log2(math.e)):#x}')
        g.i(f's_mov_b32 s{S_C2}, s{S_C}')
        g.i(f's_mov_b32 s{S_C2+1}, s{S_C}')

    def wait_word(self, off, val, bail, mask=None):
        g = self.g
        lp, ok = g.newlabel('ww'), g.newlabel('ww')
        g.i(f's_mov_b32 s{S_TRY}, 0')
        g.i(f'v_mov_b32 v{V_T0}, {off}')
        g.label(lp)
        g.i(f'global_load_dword v{V_T1}, v{V_T0}, s[{S_DBG}:{S_DBG+1}] sc1')
        g.wait_vm()
        g.i(f'v_readfirstlane_b32 s{S_T1}, v{V_T1}')
        g.i(f's_and_b32 s{S_T0}, s{S_T1}, {mask if mask else -1}')
        g.i(f's_cmp_ge_u32 s{S_T0}, {val}')
        g.i(f's_cbranch_scc1 {ok}')
        g.i('s_sleep 2')
        g.i(f's_add_u32 s{S_TRY}, s{S_TRY}, 1')
        g.i(f's_cmp_lt_u32 s{S_TRY}, {SPIN_MAX}')
        g.i(f's_cbranch_scc1 {lp}')
        g.i(f's_branch {bail}')
        g.label(ok)

    def spin_ready(self, soff, sneed, bail):
        g = self.g
        lp, ok = g.newlabel('rd'), g.newlabel('rd')
        g.i(f's_mov_b32 s{S_TRY}, 0')
        g.label(lp)
        g.i(f'buffer_load_dword v{V_MST}, off, {WS}, s{soff} sc1')
        g.wait_vm()
        g.i(f'v_readfirstlane_b32 s{S_T0}, v{V_MST}')
        g.i(f's_cmp_ge_u32 s{S_T0}, {sneed}')
        g.i(f's_cbranch_scc1 {ok}')
        g.i('s_sleep 4')
        g.i(f's_add_u32 s{S_TRY}, s{S_TRY}, 1')
        g.i(f's_cmp_lt_u32 s{S_TRY}, {SPIN_MAX}')
        g.i(f's_cbranch_scc1 {lp}')
        g.i(f's_branch {bail}')
        g.label(ok)

    def start(self, bail, done):
        g = self.g
        self.wait_word(DBG_INIT, 32, bail, 0xffff)
        g.i(f's_lshr_b32 s{S_XCC}, s{S_T1}, 16')
        g.i(f's_mov_b32 s{S_RNEED}, 2')
        g.i(f's_mov_b32 s{S_PF}, 0')
        if not self.standalone:
            sk = g.newlabel('st')
            g.i(f's_cmp_lg_u32 s{S_W}, 3')
            g.i(f's_cbranch_scc1 {sk}')
            self.wait_word(DBG_LNOK, 1, bail)
            for r in range(3):
                g.i(f's_add_u32 s{S_T1}, s{S_RDY}, {P1_REP * r}')
                self.spin_ready(S_T1, 1, bail)
            g.label(sk)
        self.after_wait()
        if self.standalone:
            self.loops(bail, done, False)
            return
        slow = g.newlabel('slow')
        g.i(f's_cmp_lg_u32 s{S_XCC}, 0')
        g.i(f's_cbranch_scc1 {slow}')
        self.loops(bail, done, False)
        g.label(slow)
        self.loops(bail, done, True)

    def loops(self, bail, done, slow):
        g = self.g
        lab = [g.newlabel('role') for _ in range(4)]
        for w in range(1, 4):
            g.i(f's_cmp_eq_u32 s{S_W}, {w}')
            g.i(f's_cbranch_scc1 {lab[w]}')
        for w in range(4):
            g.label(lab[w])
            self.loop(bail, done, w, slow)

    def stage_list(self, p):
        def mk(y):
            def f():
                self.g.i(f'ds_read_b128 {vr(V_STG + 4 * y, 4)}, v{V_WL} offset:{LDS_BLOCK[p] * 4096 + y * 1024}',
                         tag=('stg', p, y >> 1))
                self.staged[y] = p
            f.stg = True
            return f
        return [mk(y) for y in range(4)]

    @staticmethod
    def areg(t, ph):
        return [V_AR, V_AR + 4, V_AR + 8, V_G2][(9 * ph + t) % 4]

    def aread(self, t, ph):
        self.ring[self.areg(t, ph)] = t
        self.g.i(f'ds_read_b128 {vr(self.areg(t, ph), 4)}, v{V_L16} offset:{L_M + t * 1024}', tag=('a', ph, t))

    def flag_store(self, final=False):
        g = self.g
        if final:
            g.i(f'v_mov_b32 v{V_T0}, {NSEG}')
        else:
            g.i(f's_sub_u32 s{S_T0}, s{S_STEP}, 1')
            g.i(f's_max_i32 s{S_T0}, s{S_T0}, 0')
            g.i(f'v_mov_b32 v{V_T0}, s{S_T0}')
        g.i('s_mov_b64 exec, 1')
        g.i(f'buffer_store_dword v{V_T0}, off, {WS}, s{S_FLG} sc1')
        g.i('s_mov_b64 exec, -1')

    def slow_io(self):
        g = self.g
        L = []
        if 'nopf' not in self.opt:
            def pf(base):
                def f():
                    g.i(f's_add_u32 s{S_T0}, s{base}, {2*32*8192 - 3*2048}')
                    g.i(f'buffer_load_dword v{V_MST}, v{V_RED}, {WS}, s{S_T0} offen sc1')
                return f
            L += [pf(S_KX), pf(S_VX)]
        if not self.standalone:
            L.append(f'buffer_load_dword v{V_MST}, off, {WS}, s{S_RDY} sc1')
        if 'plainpub' not in self.opt:
            L.append(self.flag_store)
        return L

    def advance(self):
        g = self.g
        for j in range(3):
            g.i(f's_xor_b32 s{S_PST+j}, s{S_PST+j}, 0x100000')
        g.i(f's_add_u32 s{S_MCUR}, s{S_MCUR}, 0x4000')
        g.i(f's_and_b32 s{S_MCUR}, s{S_MCUR}, 0xfffeffff')
        if 'fixkv' not in self.opt:
            g.i(f's_add_u32 s{S_KX}, s{S_KX}, {32*8192}')
            g.i(f's_add_u32 s{S_VX}, s{S_VX}, {32*8192}')
        if 'plainpub' not in self.opt:
            g.i(f's_add_u32 s{S_KM}, s{S_KM}, {32*4096}')

    def advance2(self, role):
        g = self.g
        if role < 3:
            for n in range(4 if role < 2 else 1):
                g.i(f's_xor_b32 s{S_RED+n}, s{S_RED+n}, 0x100000')
            g.i(f's_add_u32 s{S_MRST}, s{S_MRST}, 0x4000')
            g.i(f's_and_b32 s{S_MRST}, s{S_MRST}, 0xfffeffff')
        g.i(f's_and_b32 s{S_T0}, s{S_STEP}, 1')
        g.i(f's_xor_b32 s{S_TAG}, s{S_TAG}, s{S_T0}')
        g.i(f's_add_u32 s{S_STEP}, s{S_STEP}, 1')

    def finish(self, fin):
        g = self.g
        g.i(f's_add_u32 s{S_KM}, s{S_KM}, {32*4096}')
        g.i(f'buffer_store_dwordx4 {vr(V_PUB,4)}, v{V_L16}, {WS}, s{S_KM} offen sc1')
        g.i('s_waitcnt vmcnt(0) lgkmcnt(0)')
        g.i('s_barrier')
        g.i(f's_cmp_lg_u32 s{S_W}, 3')
        g.i(f's_cbranch_scc1 {fin}')
        self.flag_store(True)

    def loop(self, bail, done, role, slow):
        g = self.g
        opt = self.opt
        XS = 'sc1' if slow else ''
        top = g.newlabel('step')
        Q0, K0, Q1, K1 = [V_ACC + 4 * k for k in range(4)]
        VA0, VA1 = Q0, K0
        fill, mq, cold = [], [], []

        def run(f):
            g.i(f) if isinstance(f, str) else f()

        def pop(n=1, m=1):
            for _ in range(m):
                if mq:
                    run(mq.pop(0))
            for _ in range(n):
                if fill:
                    run(fill.pop(0))

        def smf(acc, a, p, x, atag=None):
            if p[0] in 'qkv':
                assert self.ring[a] == p[1], (p, self.ring)
            if p in LDS_PAIRS:
                assert self.staged[2 * x] == p and self.staged[2 * x + 1] == p, (p, x, self.staged)
                g.wait_lds2(atag, ('stg', p, x))
                b = vr(V_STG + 8 * x, 8)
            else:
                g.wait_lds2(atag)
                b = wfrag(p, x)
            g.i(f'v_smfmac_f32_16x16x64_bf16 {vr(acc,4)}, {vr(a,4)}, {b}, v{V_IDX}')
            if p in STG_NEXT:
                k = 0
                while k < len(mq) and getattr(mq[k], 'stg', False):
                    k += 1
                mq[k:k] = self.stage_list(STG_NEXT[p])[2 * x:2 * x + 2]

        def ard(t, ph):
            f = lambda: self.aread(t, ph)
            f.stg = True
            return f

        def count_try():
            g.i(f's_add_u32 s{S_TRY}, s{S_TRY}, 1')
            g.i(f's_cmp_gt_u32 s{S_TRY}, {SPIN_MAX}')
            g.i(f's_cbranch_scc1 {bail}')

        def note(sdiag, sstat):
            if self.diag:
                g.i(f's_mov_b32 s{sdiag}, s{S_TRY}')
            if 'stat' in opt:
                g.i(f's_add_u32 s{sstat}, s{sstat}, s{S_TRY}')

        def attempt(load, check, sets, sdiag, sstat, drain=False):
            again, ok = g.newlabel('pp'), g.newlabel('ok')
            check(sets[0], 'A')
            g.i(f's_cbranch_vccnz {again}')
            g.label(ok)
            note(sdiag, sstat)
            nb = len([t for t in g.vm_q if t and t[0] == 'B'])

            def retry():
                g.label(again)
                g.vm_q = [('B', k) for k in range(nb)]
                load(sets[0], 'A')
                count_try()
                if len(sets) > 1:
                    check(sets[1], 'B')
                    g.i(f's_cbranch_vccz {ok}')
                    load(sets[1], 'B')
                    g.i(f's_add_u32 s{S_TRY}, s{S_TRY}, 1')
                check(sets[0], 'A')
                g.i(f's_cbranch_vccnz {again}')
                if drain:
                    g.wait_lds()
                g.i(f's_branch {ok}')
                g.forget()
            cold.append(retry)

        FR = {0: (0, 1), 3: (2, 3), 2: (), 1: ()}[role]

        def mload(S, tg):
            for k, t in enumerate(FR):
                g.i(f'buffer_load_dwordx4 {vr(S+4*k,4)}, v{V_L16}, {WS}, s{S_MCUR} offen '
                    f'offset:{1024*t} sc1', tag=(tg, k))

        def mcheck(S, tg):
            for k, t in enumerate(FR):
                g.wait_vm((tg, k))
                g.i(f'ds_write_b128 v{V_L16}, {vr(S+4*k,4)} offset:{L_M + 1024*t}')
                if k == 0:
                    g.i(f'v_max_u32 v{V_T0}, v{S}, v{S+2}')
                else:
                    g.i(f'v_max3_u32 v{V_T0}, v{V_T0}, v{S+4}, v{S+6}')
            g.i(f'v_cmp_eq_u32 vcc, -1, v{V_T0}')

        kvx = [lambda: g.i(f'buffer_load_dwordx4 {vr(V_KXD,4)}, v{V_KV}, {WS}, s{S_KX} offen sc1', tag='kx'),
               lambda: g.i(f'buffer_load_dwordx4 {vr(V_KXD+4,4)}, v{V_KV}, {WS}, s{S_KX} offen offset:256 sc1', tag='kx'),
               lambda: g.i(f'buffer_load_dwordx4 {vr(V_X0,4)}, v{V_KV}, {WS}, s{S_VX} offen sc1', tag='vx'),
               lambda: g.i(f'buffer_load_dwordx4 {vr(V_X1,4)}, v{V_KV}, {WS}, s{S_VX} offen offset:256 sc1', tag='vx')]

        def pub():
            g.i(f's_mov_b64 exec, s[{S_PM}:{S_PM+1}]')
            g.i(f'buffer_store_dwordx4 {vr(V_PUB,4)}, v{V_L16}, {WS}, s{S_KM} offen {"" if "plainpub" in opt else "sc1"}')
            g.i('s_mov_b64 exec, -1')

        def half(x, dst):
            return [f'v_add_f32 v{x}, v{x}, v{x+2}', f'v_add_f32 v{x+1}, v{x+1}, v{x+3}',
                    f'v_cvt_pk_bf16_f32 v{dst}, v{x}, v{x+1}']

        g.label(top)
        g.lds_q = []; g.vm_q = []
        self.nst = 0; self.names = []
        g.i(f's_mov_b32 s{S_TRY}, 0')
        G2, NG = {0: (4, 2), 3: (6, 3)}.get(role, (None, 0))
        if G2:
            g.i(f's_add_u32 s{S_MG}, s{S_MCUR}, {1024*G2}')
            g.i(f's_mov_b32 m0, {L_M + 1024*G2}')
        g.i(f's_mov_b64 s[{S_PM}:{S_PM+1}], -1')
        g.i(f's_mov_b32 s{S_TRY2}, 0')
        for k in range(0, 16, 2):
            g.i(f'v_mov_b64 {vr(V_ACC+k,2)}, 0')
        MA = V_KXD
        if FR:
            if self.dm[role] is None:
                g.i('s_waitcnt vmcnt(0)')
            else:
                g.pad(self.dm[role])
            mload(MA, 'A')
            if self.dq is not None:
                g.pad(self.dq)
                mload(V_STG, 'B')
                attempt(mload, mcheck, [MA, V_STG], 99, 94)
            else:
                attempt(mload, mcheck, [MA], 99, 94)
        redo = g.newlabel('redo')
        g.label(redo)
        g.vm_q = []
        if G2:
            for k in range(NG):
                g.i(f'buffer_load_dwordx4 v{V_L16}, {WS}, s{S_MG} offen offset:{1024*k} sc1 lds', tag='g2')
        g.wait_lds()
        self.stamp('m in lds', 9)
        g.i('s_barrier')
        self.stamp('B1')
        if self.diag:
            g.i('s_memrealtime s[100:101]')
        for t in range(3):
            self.aread(t, 0)
        if FR and self.dq is not None:
            mq.append(f's_waitcnt vmcnt({NG})')
        mq += self.stage_list(LDS_PAIRS[0])
        if not (FR and self.dq is not None):
            pop(0, 2)
        mq += [ard(3, 0)] + kvx
        for t in range(7):
            a = self.areg(t, 0)
            for x, (acc, mat, tl) in enumerate([(Q0, 'q', 0), (Q1, 'q', 1), (K0, 'k', 0), (K1, 'k', 1)]):
                n = 4 * t + x
                if n == self.io:
                    mq.append(pub)
                    if role == 3:
                        mq += self.slow_io()
                if n == 12 + self.bp:
                    g.wait_vm('g2')
                    g.i('s_barrier')
                    self.aread(4, 0)
                    mq[0:0] = [ard(5, 0), ard(6, 0)]
                smf(acc, a, (mat, t), tl, ('a', 0, t))
                self.stamp(f'p{n}', 9)
                if x == 3:
                    nxt = {3: (7, 0), 4: (8, 0), 5: (0, 1), 6: (1, 1)}.get(t)
                    if nxt:
                        k = 0
                        while k < len(mq) and getattr(mq[k], 'stg', False):
                            k += 1
                        mq.insert(k, ard(*nxt))
                pop(1, 3 if n == 0 else 2 if n == 1 else 1)
        g.i(f's_mov_b64 vcc, s[{S_M3}:{S_M3+1}]')
        a7, a8 = self.areg(7, 0), self.areg(8, 0)
        smf(Q0, a7, ('q', 7), 0, ('a', 0, 7))
        pop()
        smf(Q0, a8, ('q', 8), 0, ('a', 0, 8))
        pop()
        smf(K0, a8, ('k', 8), 0)
        pop()
        smf(K0, a7, ('k', 7), 0)
        assert pub not in mq
        fill += half(Q0, V_PUB) + half(K0, V_PUB + 1)
        pop(1)
        smf(Q1, a8, ('q', 8), 1)
        pop(2)
        smf(Q1, a7, ('q', 7), 1)
        pop(2)
        smf(K1, a8, ('k', 8), 1)
        pop(1)
        g.i(f'v_mov_b64 {vr(Q0,2)}, 0')
        smf(K1, a7, ('k', 7), 1)
        mq += [ard(2, 1), ard(3, 1)]
        pop(0)
        g.i(f'v_mov_b64 {vr(Q0+2,2)}, 0')
        self.stamp('qk done')
        vq = [(t, x) for t in range(9) for x in range(2)]

        def vs(n, f=1):
            for _ in range(n):
                t, x = vq.pop(0)
                smf(VA0 if x == 0 else VA1, self.areg(t, 1), ('v', t), x, ('a', 1, t))
                if x == 1 and t + 4 < 9:
                    mq.append(ard(t + 4, 1))
                pop(f)
        ID = vr(V_ID0, 2)
        QK, T0R = Q1, K1
        g.i(f'v_mfma_f32_16x16x16_bf16 {vr(K0,4)}, {vr(V_PUB,2)}, {ID}, 0')
        for f in half(Q1, V_PUB + 2):
            g.i(f)
        pop(0)
        for f in half(K1, V_PUB + 3):
            g.i(f)
        g.i(f'v_cmp_u_f32 s[{S_NAN}:{S_NAN+1}], v{Q1}, v{Q1+1}')
        g.i(f'v_cvt_pk_bf16_f32 v{QK}, v{K0}, v{K0+1}')
        g.i(f'v_mfma_f32_16x16x16_bf16 {vr(K1,4)}, {vr(V_PUB+2,2)}, {ID}, 0')
        g.i(f'v_cvt_pk_bf16_f32 v{QK+1}, v{K0+2}, v{K0+3}')
        g.i(f'v_mov_b64 {vr(K0,2)}, 0')
        fill.append(f'v_mov_b64 {vr(K0+2,2)}, 0')
        vq[1], vq[2] = vq[2], vq[1]
        vs(2)
        g.i(f'v_cvt_pk_bf16_f32 v{QK+2}, v{K1}, v{K1+1}')
        g.i(f'v_cvt_pk_bf16_f32 v{QK+3}, v{K1+2}, v{K1+3}')
        pop(0)
        self.stamp('pre qk wait', 1)
        g.wait_vm('kx')
        g.i(f'v_mfma_f32_16x16x32_bf16 {vr(V_KXD,4)}, {vr(V_KXD,4)}, {vr(QK,4)}, 0')
        pop(0)
        g.i(f'v_mfma_f32_16x16x32_bf16 {vr(V_KXD+4,4)}, {vr(V_KXD+4,4)}, {vr(QK,4)}, 0')
        pop(0)
        g.i(f's_cmp_lg_u64 s[{S_NAN}:{S_NAN+1}], 0')
        g.i(f'v_mfma_f32_16x16x32_bf16 {vr(T0R,4)}, {vr(QK,4)}, {vr(QK,4)}, 0')
        nan, back = g.newlabel('nan'), g.newlabel('back')
        g.i(f's_cbranch_scc1 {nan}')
        g.label(back)

        def recover():
            g.label(nan)
            g.i(f'v_mov_b32 v{V_T0}, 0')
            for t in range(4, 9):
                for hf in range(2):
                    g.i(f'ds_read_b32 v{V_T1}, v{V_L16} offset:{L_M + 1024*t + 8*hf}')
                    g.i('s_waitcnt lgkmcnt(0)')
                    g.i(f'v_max_u32 v{V_T0}, v{V_T0}, v{V_T1}')
            g.i(f'v_cmp_eq_u32 s[{S_NAN}:{S_NAN+1}], -1, v{V_T0}')
            g.i(f's_cmp_eq_u64 s[{S_NAN}:{S_NAN+1}], 0')
            g.i(f's_cbranch_scc1 {back}')
            g.i(f's_add_u32 s{S_TRY2}, s{S_TRY2}, 1')
            if 'stat' in opt:
                g.i('s_add_u32 s93, s93, 1')
            g.i(f's_cmp_gt_u32 s{S_TRY2}, {SPIN_MAX}')
            g.i(f's_cbranch_scc1 {bail}')
            g.i(f's_mov_b64 s[{S_PM}:{S_PM+1}], 0')
            for k in range(0, 16, 2):
                g.i(f'v_mov_b64 {vr(V_ACC+k,2)}, 0')
            g.i('s_waitcnt vmcnt(0)')
            g.i('s_barrier')
            g.i(f's_branch {redo}')
            g.forget()
        cold.append(recover)
        vs(1)
        for r in range(4):
            g.i(f'v_cndmask_b32_dpp v{V_KXD+r}, v{V_KXD+4+r}, v{V_KXD+r}, vcc quad_perm:[0,1,0,1] row_mask:0xf bank_mask:0xf')
        g.i(f'ds_write_b128 v{V_SW}, {vr(V_KXD,4)} offset:{L_QK + 1024*role}')
        g.i(f'v_cndmask_b32_dpp v{T0R+2}, v{T0R+3}, v{T0R+2}, vcc quad_perm:[0,1,0,1] row_mask:0xf bank_mask:0xf')
        g.i(f'ds_write_b32 v{V_SW}, v{T0R+2} offset:{L_SM + 4*role}', tag='sw')
        self.stamp('S issued', 9)
        X = V_STG
        M = Q1
        SH = K1
        PB = V_KXD + 2
        WL_, WM, WR = V_X0 - 2, V_T0, V_KXD
        fill += [f'v_mov_b32 v{PB}, 0', f'v_mov_b32 v{PB+5}, 0', f'v_mov_b32 v{WL_}, 0', f'v_mov_b32 v{WR+1}, 0',
                 f'v_lshrrev_b32 v{SH}, 3, v{V_L16}', f'v_and_b32 v{SH}, 16, v{SH}']
        vs(self.nb)
        assert vq[0][0] > 2
        g.wait_lds('sw')
        self.stamp('S written', 1)
        g.i('s_barrier')
        self.stamp('B2')
        rd = [(lambda w=w: g.i(f'ds_read_b128 {vr(X+4*w,4)}, v{V_L16} offset:{L_QK + 1024*w}', tag=('sx', w))) for w in range(4)]
        rd.append(lambda: g.i(f'ds_read_b128 {vr(M,4)}, v{V_L16} offset:{L_SM}', tag='sm'))
        rd[0]()
        mq[0:0] = rd[1:]
        vs(len(vq) - 5)
        g.wait_lds(('sx', 1))
        fill += [f'v_add_f32 v{X+r}, v{X+r}, v{X+4+r}' for r in range(4)]
        pop(1)
        vs(3)
        g.wait_lds('sm')
        fill += [f'v_add_f32 v{M}, v{M}, v{M+1}', f'v_add_f32 v{M+2}, v{M+2}, v{M+3}', f'v_add_f32 v{M}, v{M}, v{M+2}',
                 f'v_add_f32 v{X+8}, v{X+8}, v{X+12}', f'v_add_f32 v{X+9}, v{X+9}, v{X+13}']
        vs(2)
        assert not vq
        pop(100, 100)
        self.stamp('v done', 9)
        g.i(f'v_pk_add_f32 {vr(X+10,2)}, {vr(X+10,2)}, {vr(X+14,2)}')
        g.i(f'v_pk_add_f32 {vr(X,2)}, {vr(X,2)}, {vr(X+8,2)}')
        g.i(f'v_pk_add_f32 {vr(X+2,2)}, {vr(X+2,2)}, {vr(X+10,2)}')
        MX, MY = M + 2, M + 3
        ONE = V_AR
        g.i(f'v_max3_f32 v{MX}, v{X}, v{X+1}, v{M}')
        g.i(f'v_max3_f32 v{MX}, v{MX}, v{X+2}, v{X+3}')
        g.i(f'v_pk_add_f32 {vr(VA0,2)}, {vr(VA0,2)}, {vr(VA0+2,2)}')
        g.i(f'v_pk_add_f32 {vr(VA1,2)}, {vr(VA1,2)}, {vr(VA1+2,2)}')
        g.i(f'v_max_f32_dpp v{MY}, v{MX}, v{MX} row_ror:8 row_mask:0xf bank_mask:0xf')
        g.i(f'v_max_f32_dpp v{MX}, v{MX}, v{MX} row_ror:8 row_mask:0xf bank_mask:0xf')
        g.i(f'v_cvt_pk_bf16_f32 v{WM}, v{VA0}, v{VA0+1}')
        g.i(f'v_cvt_pk_bf16_f32 v{WM+1}, v{VA1}, v{VA1+1}')
        g.i(f'v_permlane16_swap_b32 v{MX}, v{MY}')
        g.i(f'v_max_f32 v{M+1}, v{MX}, v{MY}')
        g.i(f'v_max_f32 v{MX}, v{MX}, v{MY}')
        g.i(f'v_mov_b32 v{WL_+1}, v{WM}')
        g.i(f'v_mov_b32 v{WR}, v{WM+1}')
        g.i(f'v_permlane32_swap_b32 v{MX}, v{M+1}')
        g.i(f'v_max_f32 v{MX}, v{MX}, v{M+1}')
        g.i(f'v_mul_f32 v{MX}, s{S_C}, v{MX}')
        g.i(f'v_fma_f32 v{M}, v{M}, s{S_C}, -v{MX}')
        for r in (0, 2):
            g.i(f'v_pk_fma_f32 {vr(X+r,2)}, {vr(X+r,2)}, s[{S_C2}:{S_C2+1}], {vr(MX,2)} op_sel_hi:[1,1,0] neg_lo:[0,0,1] neg_hi:[0,0,1]')
        g.i(f'v_exp_f32 v{M}, v{M}')
        for r in range(4):
            g.i(f'v_exp_f32 v{X+r}, v{X+r}')
        g.i(f'v_cvt_pk_bf16_f32 v{M}, v{M}, 0')
        g.i(f'v_cvt_pk_bf16_f32 v{PB+2}, v{X}, v{X+1}')
        g.i(f'v_lshlrev_b32 v{PB+4}, v{SH}, v{M}')
        g.i(f'v_cvt_pk_bf16_f32 v{PB+3}, v{X+2}, v{X+3}')
        g.i(f'v_lshlrev_b32 v{PB+1}, v{SH}, v{M}')
        self.stamp('softmax done', 1)
        g.wait_vm('vx')
        DL = V_AR + 4
        D = V_STG
        g.i(f'v_mfma_f32_16x16x32_bf16 {vr(D+4,4)}, {vr(V_X0+2,4)}, {vr(PB+2,4)}, 0')
        g.i(f'v_mov_b64 {vr(ONE,2)}, s[{S_ONE}:{S_ONE+1}]')
        g.i(f'v_mov_b64 {vr(ONE+2,2)}, s[{S_ONE}:{S_ONE+1}]')
        g.i(f'v_mfma_f32_16x16x32_bf16 {vr(D,4)}, {vr(WL_,4)}, {vr(PB,4)}, 0')
        g.i(f'v_mov_b32 v{V_PUB}, v{WM}')
        g.i(f'v_mov_b32 v{V_PUB+2}, v{WM+1}')
        g.i(f'v_mfma_f32_16x16x32_bf16 {vr(DL,4)}, {vr(ONE,4)}, {vr(PB,4)}, 0')
        g.i(f'v_mov_b64 {vr(V_ACC,2)}, 0')
        g.i(f'v_mov_b64 {vr(V_ACC+2,2)}, 0')
        g.i(f'v_mfma_f32_16x16x32_bf16 {vr(D+8,4)}, {vr(WM,4)}, {vr(PB,4)}, 0')
        O = V_AR + 8
        RL = V_AR + 2
        g.i(f'v_add_f32_dpp v{O}, v{D+4}, v{D} row_ror:8 row_mask:0xf bank_mask:0x3')
        g.i(f'v_add_f32_dpp v{O+1}, v{D+5}, v{D+1} row_ror:8 row_mask:0xf bank_mask:0x3')
        g.i(f'v_mfma_f32_16x16x32_bf16 {vr(D+12,4)}, {vr(V_X1+2,4)}, {vr(PB+2,4)}, 0')
        self.stamp('pv issued', 9)
        g.i(f'v_add_f32_dpp v{RL}, v{DL}, v{DL} row_ror:8 row_mask:0xf bank_mask:0xf')
        g.i(f'v_add_f32_dpp v{O+2}, v{D+6}, v{D+2} row_ror:8 row_mask:0xf bank_mask:0x3')
        g.i(f'v_add_f32_dpp v{O+3}, v{D+7}, v{D+3} row_ror:8 row_mask:0xf bank_mask:0x3')
        g.i(f'v_rcp_f32 v{RL}, v{RL}')
        TA, TB = V_AR + 10, V_AR + 11
        VAD = V_G2
        g.i(f'v_and_b32 v{VAD}, 0xffffffdf, v{V_L16}')
        g.i(f'v_lshrrev_b32 v{VAD+1}, 2, v{V_L16}')
        g.i(f'v_mov_b64 {vr(V_ACC+4,2)}, 0')
        g.i(f'v_mov_b64 {vr(V_ACC+6,2)}, 0')
        for r in range(4):
            g.i(f'v_add_f32_dpp v{O+r}, v{D+8+r}, v{D+12+r} row_ror:8 row_mask:0xf bank_mask:0xc')
        for r in (0, 2):
            g.i(f'v_pk_mul_f32 {vr(O+r,2)}, {vr(O+r,2)}, {vr(RL,2)} op_sel_hi:[1,0]')
        g.i(f'v_cvt_pk_bf16_f32 v{O}, v{O}, v{O+1}')
        g.i(f'v_cvt_pk_bf16_f32 v{O+1}, v{O+2}, v{O+3}')
        g.i(f'ds_write_b64 v{V_OW}, {vr(O,2)} offset:{L_M + 512*role}', tag='ow')
        self.stamp('o issued', 9)
        Z = vr(V_ACC, 4)
        zm = lambda p: g.i(f'v_mfma_f32_16x16x32_bf16 {vr(V_ACC+4+4*p,4)}, {Z}, {Z}, 0')
        g.i(f's_cmp_eq_u32 s{S_STEP}, {NSEG-1}')
        zm(1)
        g.i(f's_cbranch_scc1 {done}')
        st = self.stage_list(('o', 1, 0))
        for f in st[:self.pre]:
            f()
        zm(2)
        g.wait_lds('ow')
        self.stamp('o written', 1)
        g.i('s_barrier')
        self.stamp('B3', 1)
        AL, AP = V_ACC + 20, V_ACC + 28
        for k in range(4):
            g.i(f'ds_read_b128 {vr(AP+4*k,4)}, v{VAD} offset:{L_M + 1024*(k>>1) + 32*(k&1)}', tag=('ap', k))
            if k == 1:
                zm(3)
        for f in st[self.pre:]:
            f()
        R = V_ACC + 20

        def rload(S, tg):
            for n in range(4 if role < 2 else 1):
                g.i(f'buffer_load_dwordx4 {vr(S+4*n,4)}, v{V_RED}, {WS}, s{S_RED+n} offen sc1', tag=(tg, n))

        def post(p):
            pa, OUT = V_ACC + 4 + 4 * p, V_ACC + 4 + 8 * (p >> 1)
            L = [f'v_cvt_pk_bf16_f32 v{OUT + 2*(p&1)}, v{pa}, v{pa+1}', f'v_cvt_pk_bf16_f32 v{OUT + 2*(p&1) + 1}, v{pa+2}, v{pa+3}']
            if p & 1 == 0:
                L.append(f'v_and_or_b32 v{OUT}, v{OUT}, -2, s{S_TAG}')
            else:
                L.append(lambda: g.i(f'buffer_store_dwordx4 {vr(OUT,4)}, v{V_L16}, {WS}, s{S_PST + (p >> 1)} offen {XS}',
                                     tag=('st', p >> 1)))
            return L
        self.stamp('wo start')
        g.vm_q = []
        order = [(0, 0), (0, 1), (1, 0), (0, 2), (0, 3), (1, 1), (2, 0), (1, 2), (1, 3), (2, 1), (3, 0), (2, 2), (2, 3),
                 (3, 1), ('l', 0), (3, 2), (3, 3), ('l', 1)]
        for j, (p, k) in enumerate(order):
            if p == 'l':
                smf(V_ACC, AL + 4 * k, ('l',), k, ('al', k))
            else:
                smf(V_ACC + 4 + 4 * p, AP + 4 * k, ('o', k >> 1, p), k & 1, ('ap', k))
            self.stamp(f'w{j}', 9)
            if j in (6, 10, 14):
                fill += post((j - 6) // 4)
            if j in (5, 9):
                u = (j - 5) // 4
                mq.append(lambda u=u: g.i(f'ds_read_b128 {vr(AL+4*u,4)}, v{V_L16} offset:{L_M + 1024*u}', tag=('al', u)))
            pop(3 if j == 10 else 1, 2)
        pop(100)
        for f in post(3) + half(V_ACC, TA):
            run(f)
        g.i(f'v_and_or_b32 v{TA}, v{TA}, -2, s{S_TAG}')
        g.i(f'buffer_store_dword v{TA}, v{VAD+1}, {WS}, s{S_PST+2} offen {XS}', tag=('st', 2))
        self.stamp('wo done')
        self.advance()
        if role < 3:
            RD, SN, SEL = V_AR + 2, V_AR + 6, V_G2
            g.i(f'v_bfe_u32 v{TA}, v{V_L16}, 6, 1')
            g.i(f'v_lshlrev_b32 v{TA}, 4, v{TA}')
            g.i(f'v_mov_b32 v{TB}, 0x3f80')
            g.i(f'v_lshlrev_b32 v{TA}, v{TA}, v{TB}')
            g.i(f'v_cndmask_b32 v{SEL}, 0, v{TA}, s[{S_M1}:{S_M1+1}]')
            for d in range(1, 4):
                g.i(f's_lshl_b64 vcc, s[{S_M1}:{S_M1+1}], {d}')
                g.i(f'v_cndmask_b32 v{SEL+d}, 0, v{TA}, vcc')
            g.i(f'v_mov_b64 {vr(SN,2)}, -1')
            g.i(f's_mov_b32 s{S_TRY}, 0')
            if self.dr[role] is None:
                g.wait_vm(('st', role))
            else:
                g.pad(self.dr[role])
            rload(R, 'A')
            if role == 0 and self.dq2:
                g.pad(self.dq2)
                rload(V_STG, 'B')

            def rsum(S, tg):
                if role == 2:
                    g.wait_vm((tg, 0))
                    g.i(f'v_mfma_f32_16x16x32_bf16 {vr(RD,4)}, {vr(SEL,4)}, {vr(S,4)}, 0')
                    g.i(f'v_bitop3_b32 v{TA}, v{S}, v{S+1}, s{S_TAG} bitop3:0x7e')
                    g.i(f'v_bitop3_b32 v{TB}, v{S+2}, v{S+3}, s{S_TAG} bitop3:0x7e')
                else:
                    for n in range(4):
                        g.wait_vm((tg, n))
                        g.i(f'v_mfma_f32_16x16x32_bf16 {vr(RD,4)}, {vr(SEL,4)}, {vr(S+4*n,4)}, {vr(RD,4) if n else 0}')
                        if n & 1:
                            g.i(f'v_bitop3_b32 v{TA + (n>>1)}, v{S+4*n-4}, v{S+4*n}, s{S_TAG} bitop3:0x7e')
                g.i(f'v_or_b32 v{TA}, v{TA}, v{TB}')
                g.i(f'v_and_b32 v{TA}, 1, v{TA}')
                g.i(f'v_cmp_ne_u32 vcc, 0, v{TA}')
            attempt(rload, rsum, [R, V_STG] if role == 0 and self.dq2 else [R], 98, 95)
            for rot in ((8,) if role < 2 else (8, 4, 2)):
                for r in range(4):
                    g.i(f'v_add_f32_dpp v{RD+r}, v{RD+r}, v{RD+r} row_ror:{rot} row_mask:0xf bank_mask:0xf')
            g.i(f's_mov_b64 exec, s[{S_MS}:{S_MS+1}]')
            g.i(f'v_cvt_pk_bf16_f32 v{TA}, v{RD}, v{RD+1}')
            g.i(f'v_cvt_pk_bf16_f32 v{TB}, v{RD+2}, v{RD+3}')
            g.i(f'v_min_u32 v{TA}, -2, v{TA}')
            g.i(f'buffer_store_dwordx2 {vr(TA,2)}, v{V_MST}, {WS}, s{S_MCUR} offen {XS}')
            g.i(f'buffer_store_dwordx2 {vr(SN,2)}, v{V_MST}, {WS}, s{S_MRST} offen {XS}')
            g.i('s_mov_b64 exec, -1')
            if role == 0 and self.wake:
                g.i('s_wakeup')
            self.stamp('m stored')
        else:
            g.wait_vm()
            if not self.standalone:
                nr, rk = g.newlabel('nr'), g.newlabel('rk')
                g.i(f'v_readfirstlane_b32 s{S_T0}, v{V_MST}')
                g.i(f's_cmp_ge_u32 s{S_STEP}, {NSEG - 3}')
                g.i(f's_cselect_b32 s{S_RNEED}, 0, s{S_RNEED}')
                g.i(f's_cmp_lt_u32 s{S_T0}, s{S_RNEED}')
                g.i(f's_cbranch_scc1 {nr}')
                g.label(rk)

                def notready():
                    g.label(nr)
                    self.spin_ready(S_RDY, f's{S_RNEED}', bail)
                    g.i(f's_branch {rk}')
                    g.forget()
                cold.append(notready)
                g.i(f's_add_u32 s{S_RDY}, s{S_RDY}, {P1_REP}')
                g.i(f's_add_u32 s{S_PF}, s{S_PF}, 1')
                g.i(f's_cmp_eq_u32 s{S_PF}, 3')
                g.i(f's_cselect_b32 s{S_T0}, {3 * P1_REP}, 0')
                g.i(f's_cselect_b32 s{S_T1}, 1, 0')
                g.i(f's_cselect_b32 s{S_PF}, 0, s{S_PF}')
                g.i(f's_sub_u32 s{S_RDY}, s{S_RDY}, s{S_T0}')
                g.i(f's_add_u32 s{S_RNEED}, s{S_RNEED}, s{S_T1}')
            if self.wake:
                g.i(f's_sleep {self.wake}')
            self.stamp('m stored')
        self.advance2(role)
        self.dump_stamps()
        if self.only is not None:
            g.i('s_waitcnt lgkmcnt(0)')
            g.i(f's_sub_u32 s{S_T0}, s{S_ST+2}, s{S_ST}')
            g.i(f's_add_u32 s80, s80, s{S_T0}')
        if 'stat' in opt:
            g.i(f's_cmp_lg_u32 s{S_STEP}, 6')
            g.i(f's_cbranch_scc1 {top}')
            g.i('s_memtime s[90:91]')
            g.i('s_memrealtime s[88:89]')
            for k in (80, 93, 94, 95):
                g.i(f's_mov_b32 s{k}, 0')
            g.i('s_waitcnt lgkmcnt(0)')
        g.settle()
        g.i(f's_branch {top}')
        g.forget()
        for f in cold:
            f()
```

```python
OFF_XN   = 0x0000000
OFF_KX   = 0x0400000
OFF_VX   = 0x1400000
OFF_QX   = 0x2400000
OFF_H    = 0x3400000
OFF_O    = 0x4800000
OFF_G    = 0x5800000
OFF_KM   = 0x6000000
OFF_VM   = 0x6800000
OFF_PART = 0x6C00000
OFF_MB   = 0x6E00000
OFF_SYNC = 0x6E20000
OFF_FLAG = 0x6F00000
OFF_DIAG = 0x7000000
WS_BYTES = 268435456
NSEG = 64

def colmap(t, k):
    ga, hh, x1, sg, x0 = k >> 4, (k >> 3) & 1, (k >> 2) & 1, (k >> 1) & 1, k & 1
    if t == 4:
        return 512 + 16 * ga + 8 * sg + 4 * hh + 2 * x1 + x0
    q, w = (0, t) if t < 4 else (1, t - 5)
    return 256 * q + 128 * x1 + 32 * w + 16 * x0 + 4 * ga + 2 * sg + hh

assert sorted(colmap(t, k) for t in range(9) for k in range(64)) == list(range(576))
DBG_XCC = 0
DBG_PICK = 64
DBG_BULK = 0
DBG_LN = 64
DBG_CHAIN = 128
DBG_LNOK = 224
DBG_INIT = 192
FL_KM = 0
FL_O = 4096
FL_P1 = 16384
P1_REP = 16384
FL_BYTES = 65536
N_BULK = 224
N_LN = 64
N_NOP = 26
N_REP = 10
N_ATT = N_BULK - 18 * N_REP
CHAIN_XCC = 3
```

```python
import math
from asmgen import *
from layout import *
from chain import S_WS, S_W8, S_DBG, S_W, S_PTR, SPIN_MAX, f2u

S_RANK = 15
P_MEM0, P_WQ, P_WK, P_WV, P_WO = S_PTR, S_PTR + 2, S_PTR + 4, S_PTR + 6, S_PTR + 8
P_X, P_W1, P_W2, P_OUT = 60, 62, 64, 66
S_X4, S_O4 = 68, 72
T0, T1, T2, T3 = 42, 43, 44, 45
S_TRY = 41
WS = f's[{S_WS}:{S_WS+3}]'
W8 = f's[{S_W8}:{S_W8+3}]'
LOG2E = math.log2(math.e)
V_L, V_L16 = 0, 1


def wreg(n, cnt=4):
    return ar(n, cnt) if n < 256 else vr(224 + n - 256, cnt)


class Bulk:
    def __init__(self, g, bail, opt=()):
        self.opt = set(opt)
        self.g = g
        self.bail = bail

    def srd(self, dst, ptr, nbytes):
        g = self.g
        g.i(f's_mov_b32 s{dst}, s{ptr}')
        g.i(f's_mov_b32 s{dst+1}, s{ptr+1}')
        g.i(f's_mov_b32 s{dst+2}, {nbytes}')
        g.i(f's_mov_b32 s{dst+3}, 0x20000')

    def spin(self, load, test, sleep=4):
        g = self.g
        lp, ok = g.newlabel('sp'), g.newlabel('sp')
        g.i(f's_mov_b32 s{S_TRY}, 0')
        g.settle()
        g.label(lp)
        load()
        test()
        g.i(f's_cbranch_scc1 {ok}')
        g.i(f's_sleep {sleep}')
        g.i(f's_add_u32 s{S_TRY}, s{S_TRY}, 1')
        g.i(f's_cmp_lt_u32 s{S_TRY}, {SPIN_MAX}')
        g.i(f's_cbranch_scc1 {lp}')
        g.i(f's_branch {self.bail}')
        g.label(ok)

    def wait_word(self, soff, need, vt, sleep=4):
        g = self.g

        def load():
            g.i(f'buffer_load_dword v{vt}, off, {WS}, s{soff} sc1')
            g.wait_vm()

        def test():
            g.i(f'v_readfirstlane_b32 s{T3}, v{vt}')
            g.i(f's_cmp_ge_u32 s{T3}, {need}')
        self.spin(load, test, sleep)

    def wait_ln(self, vt):
        g = self.g
        sk = g.newlabel('wl')
        g.i(f's_cmp_lg_u32 s{S_W}, 0')
        g.i(f's_cbranch_scc1 {sk}')
        g.i(f'v_mov_b32 v{vt+1}, {DBG_LNOK}')

        def load():
            g.i(f'global_load_dword v{vt}, v{vt+1}, s[{S_DBG}:{S_DBG+1}] sc1')
            g.wait_vm()

        def test():
            g.i(f'v_readfirstlane_b32 s{T3}, v{vt}')
            g.i(f's_cmp_lg_u32 s{T3}, 0')
        self.spin(load, test, 8)
        g.label(sk)
        g.i('s_barrier')

    def setup(self):
        g = self.g
        g.i(f'v_lshlrev_b32 v{V_L16}, 4, v{V_L}')
        self.srd(S_X4, P_X, 2359296)
        self.srd(S_O4, P_OUT, 2359296)

    def layernorm(self):
        g = self.g
        VA, VO, VS, VQ, VM, VR, VT, VU = 2, 3, 4, 5, 6, 8, 10, 12
        D, F = 16, 64
        g.i(f'v_and_b32 v{VT}, 7, v{V_L}')
        g.i(f'v_lshrrev_b32 v{VU}, 3, v{V_L}')
        g.i(f'v_mul_u32_u24 v{VA}, 1152, v{VU}')
        g.i(f'v_lshl_add_u32 v{VA}, v{VT}, 4, v{VA}')
        g.i(f's_lshl_b32 s20, s{S_RANK}, 2')
        g.i(f's_add_u32 s20, s20, s{S_W}')
        g.i(f's_mul_i32 s{T0}, s20, 9216')
        g.vm_q = []
        for i in range(9):
            g.i(f'buffer_load_dwordx4 {vr(D + 4*i, 4)}, v{VA}, s[{S_X4}:{S_X4+3}], s{T0} offen offset:{128*i}', tag=('x', i))
        g.i(f'v_lshlrev_b32 v{VO}, 9, v{VT}')
        g.i(f'v_lshl_add_u32 v{VO}, v{VU}, 4, v{VO}')
        g.i(f'v_mov_b32 v{VS}, 0')
        g.i(f'v_lshlrev_b32 v{VQ}, 2, v{V_L}')
        g.i(f's_lshl_b32 s{T0}, s20, 8')
        g.i(f's_add_u32 s{T0}, s{T0}, {OFF_FLAG}')
        g.i(f'buffer_store_dword v{VS}, v{VQ}, {WS}, s{T0} offen sc1')

        def allsum(r):
            g.i(f'v_add_f32_dpp v{r}, v{r}, v{r} quad_perm:[1,0,3,2] row_mask:0xf bank_mask:0xf')
            g.i(f'v_add_f32_dpp v{r}, v{r}, v{r} quad_perm:[2,3,0,1] row_mask:0xf bank_mask:0xf')
            g.i(f'v_add_f32_dpp v{r}, v{r}, v{r} row_half_mirror row_mask:0xf bank_mask:0xf')

        def rnd(r):
            g.i(f'v_cvt_pk_bf16_f32 v{r}, v{r}, v{r}')
            g.i(f'v_and_b32 v{r}, 0xffff0000, v{r}')
        for k in range(36):
            if k % 4 == 0:
                g.wait_vm(('x', k // 4))
            g.i(f'v_lshlrev_b32 v{F+2*k}, 16, v{D+k}')
            g.i(f'v_and_b32 v{F+2*k+1}, 0xffff0000, v{D+k}')
            if k == 1:
                g.i(f'v_pk_add_f32 {vr(VT,2)}, {vr(F,2)}, {vr(F+2,2)}')
            elif k > 1:
                g.i(f'v_pk_add_f32 {vr(VT,2)}, {vr(VT,2)}, {vr(F+2*k,2)}')
        g.i(f'v_add_f32 v{VS}, v{VT}, v{VT+1}')
        allsum(VS)
        g.i(f'v_mul_f32 v{VM}, {f2u(1/576):#x}, v{VS}')
        for k in range(36):
            g.i(f'v_pk_add_f32 {vr(VU,2)}, {vr(F+2*k,2)}, {vr(VM,2)} op_sel_hi:[1,0] neg_lo:[0,1] neg_hi:[0,1]')
            if k == 0:
                g.i(f'v_pk_mul_f32 {vr(VT,2)}, {vr(VU,2)}, {vr(VU,2)}')
            else:
                g.i(f'v_pk_fma_f32 {vr(VT,2)}, {vr(VU,2)}, {vr(VU,2)}, {vr(VT,2)}')
        g.i(f'v_add_f32 v{VQ}, v{VT}, v{VT+1}')
        allsum(VQ)
        g.i(f'v_mul_f32 v{VQ}, {f2u(1/576):#x}, v{VQ}')
        rnd(VQ)
        g.i(f'v_add_f32 v{VQ}, {f2u(1e-5):#x}, v{VQ}')
        rnd(VQ)
        g.i(f'v_sqrt_f32 v{VQ}, v{VQ}')
        rnd(VQ)
        g.i(f'v_rcp_f32 v{VR}, v{VQ}')
        rnd(VM)
        g.i(f's_mul_i32 s{T0}, s{S_RANK}, 36864')
        g.i(f's_lshl_b32 s{T1}, s{S_W}, 7')
        g.i(f's_add_u32 s{T0}, s{T0}, s{T1}')
        for k in range(36):
            a, d = F + 2 * k, D + k
            g.i(f'v_pk_add_f32 {vr(a,2)}, {vr(a,2)}, {vr(VM,2)} op_sel_hi:[1,0] neg_lo:[0,1] neg_hi:[0,1]')
            g.i(f'v_cvt_pk_bf16_f32 v{d}, v{a}, v{a+1}')
            g.i(f'v_lshlrev_b32 v{a}, 16, v{d}')
            g.i(f'v_and_b32 v{a+1}, 0xffff0000, v{d}')
            g.i(f'v_pk_mul_f32 {vr(a,2)}, {vr(a,2)}, {vr(VR,2)} op_sel_hi:[1,0]')
            g.i(f'v_cvt_pk_bf16_f32 v{d}, v{a}, v{a+1}')
            if k % 4 == 3:
                g.i(f's_add_u32 s{T1}, s{T0}, {OFF_XN + 4096*(k//4)}')
                g.i(f'buffer_store_dwordx4 {vr(d-3, 4)}, v{VO}, {WS}, s{T1} offen sc1')
        g.wait_vm()
        g.i('s_barrier')
        sk = g.newlabel('lns')
        g.i(f's_cmp_lg_u32 s{S_W}, 0')
        g.i(f's_cbranch_scc1 {sk}')
        g.i('s_mov_b64 exec, 1')
        g.i(f'v_mov_b32 v2, {DBG_LN}')
        g.i('v_mov_b32 v3, 1')
        g.i(f'global_atomic_add v4, v2, v3, s[{S_DBG}:{S_DBG+1}] sc0')
        g.i(f'v_mov_b32 v2, {DBG_LNOK}')
        g.wait_vm()
        g.i(f'v_readfirstlane_b32 s{T0}, v4')
        nl = g.newlabel('lns')
        g.i(f's_cmp_lg_u32 s{T0}, {N_LN - 1}')
        g.i(f's_cbranch_scc1 {nl}')
        g.i(f'global_store_dword v2, v3, s[{S_DBG}:{S_DBG+1}] sc1')
        g.label(nl)
        g.i('s_mov_b64 exec, -1')
        g.label(sk)

    def load_weights(self, ntile, nstep, s_off, s_pitch):
        g = self.g
        VA, VT, VX, VY = 2, 3, 4, 5
        seg = 64 * ntile
        lpr = seg // 16
        rpi = 1024 // seg
        spb = 4 * rpi // 16
        nblk = nstep // spb
        sh = lpr.bit_length() - 1
        g.i(f'v_lshrrev_b32 v{VX}, {sh}, v{V_L}')
        g.i(f'v_mul_lo_u32 v{VA}, v{VX}, s{s_pitch}')
        g.i(f'v_and_b32 v{VX}, {lpr-1}, v{V_L}')
        g.i(f'v_lshl_add_u32 v{VA}, v{VX}, 4, v{VA}')
        g.i(f'v_lshrrev_b32 v{VX}, 5, v{V_L}')
        g.i(f'v_bfe_u32 v{VY}, v{V_L}, 2, 2')
        g.i(f'v_lshl_add_u32 v{VX}, v{VX}, 3, v{VY}')
        g.i(f'v_mul_u32_u24 v{VT}, {seg}, v{VX}')
        g.i(f'v_bfe_u32 v{VX}, v{V_L}, 4, 1')
        g.i(f'v_lshl_add_u32 v{VT}, v{VX}, 5, v{VT}')
        g.i(f'v_and_b32 v{VX}, 3, v{V_L}')
        g.i(f'v_lshl_add_u32 v{VT}, v{VX}, 3, v{VT}')
        g.i(f's_mul_i32 s{T2}, s{S_W}, 36864')
        g.i(f'v_add_u32 v{VT}, s{T2}, v{VT}')
        g.i(f's_mul_i32 s{T1}, s{s_pitch}, {rpi}')
        g.i(f's_mov_b32 s{T0}, s{s_off}')
        g.vm_q = []

        def issue(n):
            for q in range(4):
                g.i(f's_add_u32 m0, s{T2}, {(n % 9) * 4096 + q * 1024}')
                g.i(f'buffer_load_dwordx4 v{VA}, {W8}, s{T0} offen lds', tag=('w', n))
                g.i(f's_add_u32 s{T0}, s{T0}, s{T1}')
        for n in range(min(9, nblk)):
            issue(n)
        for n in range(nblk):
            g.wait_vm(('w', n))
            for st in range(spb):
                for x in range(ntile):
                    r = 4 * ((n * spb + st) * ntile + x)
                    for hf in range(2):
                        off = (n % 9) * 4096 + (16 * st + 4 * hf) * seg + 64 * x
                        g.i(f'ds_read_b64_tr_b16 {wreg(r + 2*hf, 2)}, v{VT} offset:{off}')
            g.wait_lds()
            if n + 9 < nblk:
                issue(n + 9)

    def silu_ops(self, src, a, b, t):
        return [f'v_lshlrev_b32 v{a}, 16, v{src}', f'v_and_b32 v{b}, 0xffff0000, v{src}',
                f'v_mul_f32 v{t}, {f2u(-LOG2E):#x}, v{a}', f'v_mul_f32 v{t+1}, {f2u(-LOG2E):#x}, v{b}',
                f'v_exp_f32 v{t}, v{t}', f'v_exp_f32 v{t+1}, v{t+1}',
                f'v_add_f32 v{t}, 1.0, v{t}', f'v_add_f32 v{t+1}, 1.0, v{t+1}',
                f'v_rcp_f32 v{t}, v{t}', f'v_rcp_f32 v{t+1}, v{t+1}',
                f'v_mul_f32 v{a}, v{a}, v{t}', f'v_mul_f32 v{b}, v{b}, v{t+1}',
                f'v_cvt_pk_bf16_f32 v{src}, v{a}, v{b}']

    def project(self):
        g = self.g
        S_B, S_REP, S_OFF, S_PITCH, S_OUT, S_OSTR, S_A, S_N, S_I, S_FL, S_ST, S_LW, S_SW = range(16, 29)
        kv, dec, q2, w8 = [g.newlabel('pj') for _ in range(4)]
        S_NR = 29
        g.i(f's_mov_b32 s{S_NR}, 3')
        g.i(f's_sub_u32 s{T0}, s{S_RANK}, 64')
        g.i(f's_cmp_lt_u32 s{T0}, 96')
        g.i(f's_cbranch_scc1 {kv}')
        g.i(f's_cmp_ge_u32 s{S_RANK}, {32 + 180}')
        g.i(f's_cbranch_scc1 {q2}')
        g.i(f's_cmp_lt_u32 s{S_RANK}, 64')
        g.i(f's_cselect_b32 s{T0}, 32, 128')
        g.i(f's_sub_u32 s{T0}, s{S_RANK}, s{T0}')
        g.i(f's_mul_hi_u32 s{S_B}, s{T0}, {(1 << 32) // 3 + 1}')
        g.i(f's_mul_i32 s{T1}, s{S_B}, 3')
        g.i(f's_sub_u32 s{S_REP}, s{T0}, s{T1}')
        g.i(f's_cmp_lt_u32 s{S_B}, 18')
        g.i(f's_cselect_b32 s{T0}, 48, 14')
        g.i(f's_add_u32 s{S_B}, s{S_B}, s{T0}')
        g.i(f's_branch {w8}')
        g.label(q2)
        g.i(f's_sub_u32 s{T0}, s{S_RANK}, {32 + 180}')
        g.i(f's_and_b32 s{S_REP}, s{T0}, 1')
        g.i(f's_lshr_b32 s{S_B}, s{T0}, 1')
        g.i(f's_add_u32 s{S_B}, s{S_B}, {Q2}')
        g.i(f's_mov_b32 s{S_NR}, 2')
        g.label(w8)
        if 'nowarm' not in self.opt:
            nw = g.newlabel('nw')
            g.i(f's_cmp_lt_u32 s{S_RANK}, 192')
            g.i(f's_cbranch_scc1 {nw}')
            lab = [g.newlabel('nw') for _ in range(5)]
            for w in range(1, 4):
                g.i(f's_cmp_eq_u32 s{S_W}, {w}')
                g.i(f's_cbranch_scc1 {lab[w]}')
            for w, p in enumerate((P_WQ, P_WK, P_WV, P_WO)):
                g.label(lab[w])
                self.srd(S_W8, p, 4718592)
                g.i(f's_branch {lab[4]}')
            g.label(lab[4])
            g.i(f's_sub_u32 s{T0}, s{S_RANK}, 192')
            g.i(f's_lshl_b32 s{T0}, s{T0}, 13')
            g.i(f'v_lshlrev_b32 v8, 7, v{V_L}')
            for n in range(18):
                g.i(f'buffer_load_dword v9, v8, {W8}, s{T0} offen')
                g.i(f's_add_u32 s{T0}, s{T0}, {32 * 8192}')
            g.wait_vm()
            g.label(nw)
        if 'eager' not in self.opt:
            self.wait_ln(2)
        g.i(f's_branch {dec}')
        g.label(kv)
        g.i(f's_and_b32 s{S_B}, s{T0}, 31')
        g.i(f's_lshr_b32 s{S_REP}, s{T0}, 5')
        g.label(dec)
        lq, lh, lv, go = [g.newlabel('pj') for _ in range(4)]
        VST = 6
        g.i(f'v_mov_b32 v{VST}, v{V_L16}')
        g.i(f's_mov_b32 s{S_PITCH}, 8192')
        g.i(f's_mov_b32 s{S_OSTR}, {32 * 8192}')
        g.i(f's_and_b32 s{T2}, s{S_W}, 1')
        g.i(f's_cmp_ge_u32 s{S_B}, 48')
        g.i(f's_cbranch_scc1 {lh}')
        g.i(f's_cmp_ge_u32 s{S_B}, 32')
        g.i(f's_cbranch_scc1 {lq}')
        g.i(f's_lshl_b32 s{S_OFF}, s{S_B}, 8')
        g.i(f's_lshl_b32 s{T0}, s{T2}, 7')
        g.i(f's_add_u32 s{S_OFF}, s{S_OFF}, s{T0}')
        g.i(f's_lshl_b32 s{S_OUT}, s{S_B}, 13')
        g.i(f's_lshl_b32 s{T0}, s{T2}, 12')
        g.i(f's_add_u32 s{S_OUT}, s{S_OUT}, s{T0}')
        g.i(f's_cmp_ge_u32 s{S_W}, 2')
        g.i(f's_cbranch_scc1 {lv}')
        self.srd(S_W8, P_WK, 4718592)
        g.i(f's_add_u32 s{S_OUT}, s{S_OUT}, {OFF_KX}')
        g.i(f'v_and_b32 v{VST}, 35, v{V_L}')
        g.i(f'v_bfe_u32 v2, v{V_L}, 3, 2')
        g.i(f'v_lshl_add_u32 v{VST}, v2, 2, v{VST}')
        g.i(f'v_bfe_u32 v2, v{V_L}, 2, 1')
        g.i(f'v_lshl_add_u32 v{VST}, v2, 4, v{VST}')
        g.i(f'v_lshlrev_b32 v{VST}, 4, v{VST}')
        g.i(f's_mov_b32 s{S_SW}, 0')
        g.i(f's_branch {go}')
        g.label(lv)
        self.srd(S_W8, P_WV, 4718592)
        g.i(f's_add_u32 s{S_OUT}, s{S_OUT}, {OFF_VX}')
        g.i(f's_mov_b32 s{S_SW}, 1')
        g.i(f's_branch {go}')
        g.label(lq)
        g.i(f's_sub_u32 s{T0}, s{S_B}, 32')
        g.i(f's_lshl_b32 s{T0}, s{T0}, 2')
        g.i(f's_add_u32 s{T0}, s{T0}, s{S_W}')
        g.i(f's_lshl_b32 s{S_OFF}, s{T0}, 7')
        g.i(f's_lshl_b32 s{S_OUT}, s{T0}, 12')
        g.i(f's_add_u32 s{S_OUT}, s{S_OUT}, {OFF_QX}')
        self.srd(S_W8, P_WQ, 4718592)
        g.i(f's_mov_b32 s{S_SW}, 0')
        g.i(f's_branch {go}')
        g.label(lh)
        g.i(f's_sub_u32 s{T0}, s{S_B}, 48')
        g.i(f's_lshl_b32 s{T0}, s{T0}, 2')
        g.i(f's_add_u32 s{T0}, s{T0}, s{S_W}')
        g.i(f's_lshl_b32 s{S_OFF}, s{T0}, 7')
        g.i(f's_lshl_b32 s{S_OUT}, s{T0}, 12')
        g.i(f's_add_u32 s{S_OUT}, s{S_OUT}, {OFF_H}')
        g.i(f's_mov_b32 s{S_PITCH}, 9216')
        g.i(f's_mov_b32 s{S_OSTR}, 294912')
        self.srd(S_W8, P_W1, 5308416)
        g.i(f's_mov_b32 s{S_SW}, 2')
        g.label(go)
        self.load_weights(2, 36, S_OFF, S_PITCH)
        g.i(f's_mul_i32 s{T0}, s{S_OSTR}, s{S_REP}')
        g.i(f's_add_u32 s{S_OUT}, s{S_OUT}, s{T0}')
        g.i(f's_mul_i32 s{S_OSTR}, s{S_OSTR}, s{S_NR}')
        g.i(f's_sub_u32 s{S_OUT}, s{S_OUT}, s{S_OSTR}')
        g.i(f's_mul_i32 s{S_A}, s{S_REP}, 36864')
        g.i(f's_mul_i32 s{S_LW}, s{S_W}, 9216')
        g.i(f's_add_u32 s{S_A}, s{S_A}, s{S_LW}')
        g.i(f's_cmp_eq_u32 s{S_REP}, 0')
        g.i(f's_cselect_b32 s{S_N}, 22, 21')
        g.i(f's_cmp_eq_u32 s{S_NR}, 2')
        g.i(f's_cselect_b32 s{S_N}, 32, s{S_N}')
        g.i(f's_mul_i32 s{S_NR}, s{S_NR}, 36864')
        g.i(f's_lshl_b32 s{S_FL}, s{S_REP}, 7')
        g.i(f's_add_u32 s{S_FL}, s{S_FL}, s{S_B}')
        g.i(f's_lshl_b32 s{S_FL}, s{S_FL}, 7')
        g.i(f's_add_u32 s{S_FL}, s{S_FL}, {OFF_FLAG + FL_P1}')
        self.stamp()
        self.wait_ln(2)
        VA, VP = 2, 3
        ACC, PK, RING, TMP = 16, 48, 64, 96

        def dma(stage_sgpr):
            L = []
            for q in range(3):
                for z in range(3):
                    def f(q=q, z=z):
                        if z == 0:
                            g.i(f's_add_u32 m0, s{stage_sgpr}, {q * 3072}')
                            g.i(f's_add_u32 s{T0}, s{S_A}, {OFF_XN + q * 3072}')
                        g.i(f'buffer_load_dwordx4 v{V_L16}, {WS}, s{T0} offen offset:{1024*z} sc1 lds')
                    L.append(f)
            L.append(lambda: g.i(f's_add_u32 s{S_A}, s{S_A}, s{S_NR}'))
            return L
        for st in range(2):
            g.i(f's_add_u32 s{T1}, s{S_LW}, {st * 36864}')
            for f in dma(T1):
                f()
        if 'cyc' in self.opt:
            g.i('s_memtime s[96:97]')
            g.i('s_memrealtime s[98:99]')
            g.i('s_waitcnt lgkmcnt(0)')
        g.i(f's_mov_b32 s{S_I}, 0')
        g.i(f's_mov_b32 s{S_ST}, 0')
        labs = [g.newlabel('pv') for _ in range(3)]
        end = g.newlabel('pe')
        g.i(f's_cmp_eq_u32 s{S_SW}, 1')
        g.i(f's_cbranch_scc1 {labs[1]}')
        g.i(f's_cmp_eq_u32 s{S_SW}, 2')
        g.i(f's_cbranch_scc1 {labs[2]}')

        def epilogue_ops(silu):
            L = []
            if silu:
                for k in range(0, 16, 2):
                    A = self.silu_ops(PK + k, TMP, TMP + 1, TMP + 2)
                    B = self.silu_ops(PK + k + 1, TMP + 4, TMP + 5, TMP + 6)
                    for p, q in zip(A, B):
                        L += [p, q]
            for n in range(4):
                p = PK + 4 * n
                L += [f'v_permlane32_swap_b32 v{p}, v{p+2}', f'v_permlane32_swap_b32 v{p+1}, v{p+3}',
                      f'buffer_store_dwordx4 {vr(p,4)}, v{VST}, {WS}, s{S_OUT} offen offset:{1024*n} {"" if "plainst" in self.opt else "sc1"}']
            return L

        def publish(sval):
            sk = g.newlabel('pp')
            g.i(f's_cmp_lg_u32 s{S_W}, 0')
            g.i(f's_cbranch_scc1 {sk}')
            g.i(f'v_mov_b32 v{VP}, s{sval}')
            g.i('s_mov_b64 exec, 1')
            g.i(f'buffer_store_dword v{VP}, off, {WS}, s{S_FL} sc1')
            g.i('s_mov_b64 exec, -1')
            g.label(sk)

        for var in range(3):
            g.label(labs[var])
            g.forget()
            silu = var == 2
            first, top = g.newlabel('pf'), g.newlabel('pt')

            def body(with_epi):
                g.lds_q = []
                g.i(f's_waitcnt vmcnt({13 if with_epi else 9})')
                g.i('s_barrier')
                g.i(f'v_add_u32 v{VA}, s{S_ST}, v{V_L16}')
                for u in range(5):
                    g.i(f'ds_read_b128 {vr(RING + 4*u, 4)}, v{VA} offset:{1024*u}', tag=('a', u))
                g.i(f's_sub_u32 s{T2}, s{S_I}, 2')
                g.i(f's_max_i32 s{T2}, s{T2}, 0')
                publish(T2)
                g.i(f's_sub_u32 s{T1}, s{S_ST}, 36864')
                g.i(f's_cmp_eq_u32 s{S_ST}, 0')
                g.i(f's_cselect_b32 s{T1}, {2 * 36864}, s{T1}')
                g.i(f's_add_u32 s{T1}, s{T1}, s{S_LW}')
                dq = dma(T1)
                fill = epilogue_ops(silu) if with_epi else []
                per = 4 if silu else 1
                for u in range(36):
                    g.wait_lds(('a', u))
                    a = vr(RING + 4 * (u % 6), 4)
                    for x in range(2):
                        w = wreg(4 * (2 * u + x))
                        c = vr(ACC + 16 * x, 16) if u else '0'
                        ops = f'{a}, {w}' if var == 1 else f'{w}, {a}'
                        g.i(f'v_mfma_f32_32x32x16_bf16 {vr(ACC + 16*x, 16)}, {ops}, {c}')
                        if x == 0 and u + 5 < 36:
                            g.i(f'ds_read_b128 {vr(RING + 4*((u+5) % 6), 4)}, v{VA} offset:{1024*(u+5)}', tag=('a', u + 5))
                        if x == 1 and dq:
                            dq.pop(0)()
                        for _ in range(per):
                            if fill and not (dq and fill[0].startswith('buffer')):
                                g.i(fill.pop(0))
                assert not fill
                g.i(f's_add_u32 s{S_ST}, s{S_ST}, 36864')
                g.i(f's_cmp_eq_u32 s{S_ST}, {3 * 36864}')
                g.i(f's_cselect_b32 s{S_ST}, 0, s{S_ST}')
                g.i(f's_add_u32 s{S_OUT}, s{S_OUT}, s{S_OSTR}')
                g.i(f's_add_u32 s{S_I}, s{S_I}, 1')
                for k in range(16):
                    g.i(f'v_cvt_pk_bf16_f32 v{PK+k}, v{ACC+2*k}, v{ACC+2*k+1}')
            body(False)
            g.i('s_waitcnt vmcnt(9)')
            g.settle()
            g.label(top)
            body(True)
            g.i(f's_cmp_lt_u32 s{S_I}, s{S_N}')
            g.settle()
            g.i(f's_cbranch_scc1 {top}')
            for f in epilogue_ops(silu):
                g.i(f)
            g.i(f's_branch {end}')
        g.label(end)
        g.forget()
        if 'cyc' in self.opt:
            g.i('s_memtime s[76:77]')
            g.i('s_memrealtime s[78:79]')
            g.i('s_waitcnt lgkmcnt(0)')
            g.i('s_sub_u32 s88, s76, s96')
            g.i('s_sub_u32 s89, s78, s98')
        g.wait_vm()
        g.i('s_barrier')
        publish(S_N)

    def stream_gemm(self, gate):
        g = self.g
        S_SL, S_RP, S_OFF, S_PITCH, S_RT, S_A, S_AN, S_FLG, S_NEED, S_GL, S_XO, S_PRE = range(16, 28)
        NS = 72 if gate else 64
        RN = NS // 2
        TILE = NS * 4 * 1024
        BASE = OFF_H if gate else OFF_O
        VF, VFA, VRW, VRR, VG, VXO, VT = 2, 3, 4, 5, 6, 7, 8
        ACC, RING = 16, 64
        L_RED, L_G = 0, 147456
        if gate:
            g.i(f's_sub_u32 s{T0}, s{S_RANK}, {N_LIGHT}')
            g.i(f's_mul_hi_u32 s{S_RP}, s{T0}, {(1 << 32) // 18 + 1}')
            g.i(f's_mul_i32 s{T1}, s{S_RP}, 18')
            g.i(f's_sub_u32 s{S_SL}, s{T0}, s{T1}')
        self.srd(S_W8, P_W2 if gate else P_WO, 5308416 if gate else 4718592)
        g.i(f's_mov_b32 s{S_PITCH}, 1152')
        g.i(f's_mul_i32 s{S_OFF}, s{S_W}, {NS * 16 * 1152}')
        g.i(f's_lshl_b32 s{T0}, s{S_SL}, 6')
        g.i(f's_add_u32 s{S_OFF}, s{S_OFF}, s{T0}')
        g.i('s_barrier')
        self.load_weights(1, NS, S_OFF, S_PITCH)
        self.stamp()
        g.i('s_barrier')
        g.i(f's_lshl_b32 s{T0}, s{S_W}, 12')
        g.i(f'v_add_u32 v{VRW}, s{T0}, v{V_L16}')
        g.i(f's_lshl_b32 s{T0}, s{S_W}, 10')
        g.i(f'v_add_u32 v{VRR}, s{T0}, v{V_L16}')
        g.i(f'v_lshrrev_b32 v{VG}, 1, v{VRR}')
        g.i(f'v_add_u32 v{VG}, {L_G}, v{VG}')
        g.i(f'v_and_b32 v{VT}, 31, v{V_L}')
        g.i(f'v_mul_u32_u24 v{VXO}, 1152, v{VT}')
        g.i(f'v_lshrrev_b32 v{VT}, 5, v{V_L}')
        g.i(f'v_lshl_add_u32 v{VXO}, v{VT}, 3, v{VXO}')
        g.i(f's_lshl_b32 s{T0}, s{S_SL}, 6')
        g.i(f's_lshl_b32 s{T1}, s{S_W}, 4')
        g.i(f's_add_u32 s{T0}, s{T0}, s{T1}')
        g.i(f'v_add_u32 v{VXO}, s{T0}, v{VXO}')
        g.i(f'v_min_u32 v{VFA}, 17, v{V_L}')
        g.i(f'v_lshlrev_b32 v{VFA}, 7, v{VFA}')
        g.i(f's_mov_b32 s{S_RT}, s{S_RP}')
        g.i(f's_mov_b32 s{S_GL}, 0')

        def flag_addr(rt):
            if gate:
                g.i(f's_mul_hi_u32 s{S_NEED}, s{rt}, {(1 << 32) // 3 + 1}')
                g.i(f's_mul_i32 s{T0}, s{S_NEED}, 3')
                g.i(f's_sub_u32 s{T0}, s{rt}, s{T0}')
                g.i(f's_lshl_b32 s{T0}, s{T0}, 14')
                g.i(f's_add_u32 s{S_FLG}, s{T0}, {OFF_FLAG + FL_P1 + 48 * 128}')
                g.i(f's_add_u32 s{S_NEED}, s{S_NEED}, 1')
            else:
                g.i(f's_lshl_b32 s{T0}, s{rt}, 7')
                g.i(f's_add_u32 s{S_FLG}, s{T0}, {OFF_FLAG + FL_O}')
                g.i(f's_mov_b32 s{S_NEED}, 32')

        def flag_load(tag=None):
            if gate:
                g.i(f'buffer_load_dword v{VF}, v{VFA}, {WS}, s{S_FLG} offen sc1', tag=tag)
            else:
                g.i(f'buffer_load_dword v{VF}, off, {WS}, s{S_FLG} sc1', tag=tag)

        def flag_test():
            g.i(f'v_cmp_gt_u32 vcc, s{S_NEED}, v{VF}')
            g.i(f's_cmp_eq_u64 vcc, 0')

        def aaddr(dst, rt):
            g.i(f's_mul_i32 s{dst}, s{rt}, {TILE}')
            g.i(f's_mul_i32 s{T0}, s{S_W}, {NS * 1024}')
            g.i(f's_add_u32 s{dst}, s{dst}, s{T0}')
            g.i(f's_add_u32 s{dst}, s{dst}, {BASE}')

        def aload(sreg, n):
            g.i(f'buffer_load_dwordx4 {vr(RING + 4*(n % RN), 4)}, v{V_L16}, {WS}, s{sreg} offen offset:{1024*(n%4)} sc1')
            if n % 4 == 3:
                g.i(f's_add_u32 s{sreg}, s{sreg}, 4096')

        def mm(n):
            g.i(f'v_mfma_f32_32x32x16_bf16 {vr(ACC + 16*(n&1), 16)}, {wreg(4*n)}, {vr(RING + 4*(n % RN), 4)}, '
                f'{vr(ACC + 16*(n&1), 16) if n > 1 else 0}')
        cold, warm, nopre, epi, end = [g.newlabel('sg') for _ in range(5)]
        g.label(cold)
        flag_addr(S_RT)

        def ld():
            flag_load(); g.wait_vm()
        self.spin(ld, flag_test, 40 if gate else 4)
        aaddr(S_A, S_RT)
        for n in range(RN):
            aload(S_A, n)
        g.settle()
        g.label(warm)
        g.forget()
        g.i(f's_add_u32 s{T2}, s{S_RT}, {N_REP}')
        g.i(f's_min_u32 s{T2}, s{T2}, 63')
        flag_addr(T2)
        aaddr(S_AN, T2)
        g.i(f's_mul_i32 s{S_XO}, s{S_RT}, {32 * 1152}')
        for n in range(RN):
            g.i(f's_waitcnt vmcnt({RN - 1})')
            mm(n)
            aload(S_A, n + RN)
            if n == 0:
                flag_load()
                if not gate:
                    g.i(f'buffer_load_dwordx2 {vr(VT+6,2)}, v{VXO}, s[{S_X4}:{S_X4+3}], s{S_XO} offen')
        g.i(f's_waitcnt vmcnt({RN - 1})')
        flag_test()
        g.i(f's_cselect_b32 s{S_PRE}, 1, 0')
        g.i(f's_add_u32 s{T2}, s{S_RT}, {N_REP}')
        g.i(f's_cmp_lt_u32 s{T2}, 64')
        g.i(f's_cselect_b32 s{S_PRE}, s{S_PRE}, 0')
        g.i(f's_cmp_eq_u32 s{S_PRE}, 0')
        g.i(f's_cbranch_scc1 {nopre}')
        hist = list(g.hist)
        for n in range(RN, NS):
            g.i(f's_waitcnt vmcnt({RN - 1})')
            mm(n)
            aload(S_AN, n - RN)
        g.i(f's_mov_b32 s{S_A}, s{S_AN}')
        g.settle()
        g.i(f's_branch {epi}')
        g.label(nopre)
        g.hist = hist
        for n in range(RN, NS):
            g.i(f's_waitcnt vmcnt({NS - 1 - n})')
            mm(n)
        g.settle()
        g.label(epi)
        g.lds_q = []
        for r in range(0, 16, 2):
            g.i(f'v_pk_add_f32 {vr(ACC+r,2)}, {vr(ACC+r,2)}, {vr(ACC+16+r,2)}')
        for q in range(4):
            g.i(f'ds_write_b128 v{VRW}, {vr(ACC+4*q,4)} offset:{L_RED + 1024*q}')
        g.wait_lds()
        g.i('s_barrier')
        for w in range(4):
            g.i(f'ds_read_b128 {vr(ACC+4*w,4)}, v{VRR} offset:{L_RED + 4096*w}')
        if not gate:
            g.i(f'ds_read_b64 {vr(VT+4,2)}, v{VG}')
        g.i(f'v_xor_b32 v{VRW}, 0x4000, v{VRW}')
        g.i(f'v_xor_b32 v{VRR}, 0x4000, v{VRR}')
        g.wait_lds()
        for k in (0, 2):
            g.i(f'v_pk_add_f32 {vr(ACC+k,2)}, {vr(ACC+k,2)}, {vr(ACC+4+k,2)}')
            g.i(f'v_pk_add_f32 {vr(ACC+8+k,2)}, {vr(ACC+8+k,2)}, {vr(ACC+12+k,2)}')
        for k in (0, 2):
            g.i(f'v_pk_add_f32 {vr(ACC+k,2)}, {vr(ACC+k,2)}, {vr(ACC+8+k,2)}')
        g.i(f'v_cvt_pk_bf16_f32 v{ACC+4}, v{ACC}, v{ACC+1}')
        g.i(f'v_cvt_pk_bf16_f32 v{ACC+5}, v{ACC+2}, v{ACC+3}')
        if gate:
            A = self.silu_ops(ACC + 4, VT, VT + 1, VT + 2)
            B = self.silu_ops(ACC + 5, VT + 4, VT + 5, VT + 6)
            for p, q in zip(A, B):
                g.i(p); g.i(q)
            g.i(f'ds_write_b64 v{VG}, {vr(ACC+4,2)}')
        else:
            for k in range(2):
                s_, g_, x_ = ACC + 4 + k, VT + 4 + k, VT + 6 + k
                a, b, c, d = ACC + 8, ACC + 9, ACC + 10, ACC + 11
                g.i(f'v_lshlrev_b32 v{a}, 16, v{s_}')
                g.i(f'v_and_b32 v{b}, 0xffff0000, v{s_}')
                g.i(f'v_lshlrev_b32 v{c}, 16, v{g_}')
                g.i(f'v_and_b32 v{d}, 0xffff0000, v{g_}')
                g.i(f'v_mul_f32 v{a}, v{a}, v{c}')
                g.i(f'v_mul_f32 v{b}, v{b}, v{d}')
                g.i(f'v_cvt_pk_bf16_f32 v{s_}, v{a}, v{b}')
                g.i(f'v_lshlrev_b32 v{a}, 16, v{s_}')
                g.i(f'v_and_b32 v{b}, 0xffff0000, v{s_}')
                g.i(f'v_lshlrev_b32 v{c}, 16, v{x_}')
                g.i(f'v_and_b32 v{d}, 0xffff0000, v{x_}')
                g.i(f'v_add_f32 v{a}, v{a}, v{c}')
                g.i(f'v_add_f32 v{b}, v{b}, v{d}')
                g.i(f'v_cvt_pk_bf16_f32 v{s_}, v{a}, v{b}')
            g.i(f'buffer_store_dwordx2 {vr(ACC+4,2)}, v{VXO}, s[{S_O4}:{S_O4+3}], s{S_XO} offen')
        g.i(f'v_add_u32 v{VG}, 2048, v{VG}')
        g.i(f's_add_u32 s{S_RT}, s{S_RT}, {N_REP}')
        g.i(f's_cmp_eq_u32 s{S_PRE}, 1')
        g.settle()
        g.i(f's_cbranch_scc1 {warm}')
        g.i(f's_cmp_lt_u32 s{S_RT}, 64')
        g.i(f's_cbranch_scc1 {cold}')
        g.wait_lds()

    def attention(self):
        g = self.g
        S_U, S_S, S_HD, S_BLK, S_F1, S_NEED, S_C, S_LB = range(16, 24)
        VK, VF, VFA, VKW, VKR, VVR, VMX, VL, VT, VKK = 2, 3, 4, 5, 6, 7, 8, 9, 10, 15
        MASK, Q, K, V, SX, SM, KM, VM, REC, PB, O = 16, 32, 64, 96, 128, 144, 160, 192, 200, 216, 32
        g.i(f's_lshl_b32 s{S_U}, s{S_RANK}, 2')
        g.i(f's_add_u32 s{S_U}, s{S_U}, s{S_W}')
        g.i(f's_mov_b32 s{S_C}, {f2u(128 ** -0.5 * LOG2E):#x}')
        g.i(f's_lshl_b32 s{S_LB}, s{S_W}, 12')
        J, HF = VT, VT + 1
        g.i(f'v_and_b32 v{J}, 31, v{V_L}')
        g.i(f'v_lshrrev_b32 v{HF}, 5, v{V_L}')
        g.i(f'v_and_b32 v{VK}, 7, v{J}')
        g.i(f'v_bfe_u32 v{VT+2}, v{J}, 3, 1')
        g.i(f'v_lshl_add_u32 v{VK}, v{VT+2}, 4, v{VK}')
        g.i(f'v_bfe_u32 v{VT+2}, v{J}, 4, 1')
        g.i(f'v_lshl_add_u32 v{VK}, v{VT+2}, 3, v{VK}')
        g.i(f'v_lshlrev_b32 v{VK}, 4, v{VK}')
        g.i(f'v_lshl_add_u32 v{VK}, v{HF}, 9, v{VK}')
        g.i(f'v_lshlrev_b32 v{VT+2}, 3, v{HF}')
        g.i(f'v_sub_u32 v{VT+2}, v{J}, v{VT+2}')
        g.i(f'v_mov_b32 v{VT+3}, {f2u(-1e30):#x}')
        for r in range(16):
            g.i(f'v_cmp_le_i32 vcc, {16*(r>>3) + (r&7)}, v{VT+2}')
            g.i(f'v_cndmask_b32 v{MASK+r}, v{VT+3}, 0, vcc')
        g.i(f'v_and_b32 v{VT+2}, 15, v{V_L}')
        g.i(f'v_lshrrev_b32 v{VT+3}, 4, v{V_L}')
        g.i(f'v_lshlrev_b32 v{VKW}, 4, v{VT+2}')
        g.i(f'v_lshl_add_u32 v{VKW}, v{VT+3}, 2, v{VKW}')
        g.i(f'v_add_u32 v{VKW}, s{S_LB}, v{VKW}')
        g.i(f'v_and_b32 v{VT+2}, 12, v{V_L}')
        g.i(f'v_lshl_add_u32 v{VKK}, v{VT+2}, 4, v{VKW}')
        g.i(f'v_bfe_u32 v{VT+2}, v{V_L}, 2, 2')
        g.i(f'v_lshl_add_u32 v{VT+2}, v{HF}, 3, v{VT+2}')
        g.i(f'v_lshlrev_b32 v{VKR}, 4, v{VT+2}')
        g.i(f'v_and_b32 v{VT+2}, 1, v{V_L}')
        g.i(f'v_lshl_add_u32 v{VKR}, v{VT+2}, 3, v{VKR}')
        g.i(f'v_add_u32 v{VKR}, s{S_LB}, v{VKR}')
        g.i(f'v_lshlrev_b32 v{VVR}, 4, v{J}')
        g.i(f'v_lshl_add_u32 v{VVR}, v{HF}, 3, v{VVR}')
        g.i(f'v_add_u32 v{VVR}, s{S_LB}, v{VVR}')
        self.wait_ln(VT + 2)
        top, end = g.newlabel('at'), g.newlabel('ae')
        g.label(top)
        g.forget()
        g.i(f's_lshr_b32 s{S_S}, s{S_U}, 5')
        g.i(f's_and_b32 s{S_HD}, s{S_U}, 31')
        g.i(f's_lshl_b32 s{S_BLK}, s{S_U}, 13')
        VN = VT + 4
        g.i(f's_mul_hi_u32 s{S_NEED}, s{S_S}, {(1 << 32) // 3 + 1}')
        g.i(f's_mul_i32 s{T0}, s{S_NEED}, 3')
        g.i(f's_sub_u32 s{T0}, s{S_S}, s{T0}')
        g.i(f's_lshr_b32 s{T2}, s{S_S}, 1')
        g.i(f's_and_b32 s{T1}, s{S_S}, 1')
        g.i(f's_cmp_ge_u32 s{S_HD}, {2 * (Q2 - 32)}')
        g.i(f's_cselect_b32 s{T1}, s{T1}, s{T0}')
        g.i(f's_cselect_b32 s{T2}, s{T2}, s{S_NEED}')
        g.i(f'v_mov_b32 v{VN}, s{T2}')
        g.i(f'v_writelane_b32 v{VN}, s{S_NEED}, 0')
        g.i(f's_lshl_b32 s{T0}, s{T0}, 7')
        g.i(f's_add_u32 s{T0}, s{T0}, s{S_HD}')
        g.i(f's_lshl_b32 s{T0}, s{T0}, 7')
        g.i(f's_lshl_b32 s{T1}, s{T1}, 7')
        g.i(f's_lshr_b32 s{T2}, s{S_HD}, 1')
        g.i(f's_add_u32 s{T1}, s{T1}, s{T2}')
        g.i(f's_add_u32 s{T1}, s{T1}, 32')
        g.i(f's_lshl_b32 s{T1}, s{T1}, 7')
        g.i(f'v_mov_b32 v{VFA}, s{T1}')
        g.i(f'v_writelane_b32 v{VFA}, s{T0}, 0')
        g.i(f's_mov_b32 s{S_F1}, {OFF_FLAG + FL_P1}')

        def ld():
            g.i(f'buffer_load_dword v{VF}, v{VFA}, {WS}, s{S_F1} offen sc1')
            g.wait_vm()

        def tst():
            g.i(f'v_cmp_ge_u32 vcc, v{VN}, v{VF}')
            g.i(f's_cmp_eq_u64 vcc, 0')
        self.spin(ld, tst, 40)
        g.vm_q = []
        for base, dst, va, tg in ((OFF_QX, Q, V_L16, 'q'), (OFF_KX, K, VK, 'k'), (OFF_VX, V, V_L16, 'v')):
            for hb in range(2):
                g.i(f's_add_u32 s{T0}, s{S_BLK}, {base + 4096*hb}')
                for n in range(4):
                    g.i(f'buffer_load_dwordx4 {vr(dst + 16*hb + 4*n, 4)}, v{va}, {WS}, s{T0} offen offset:{1024*n} sc1', tag=tg)
        g.wait_vm('k')
        for u in range(8):
            g.i(f'v_mfma_f32_32x32x16_bf16 {vr(SX,16)}, {vr(K+4*u,4)}, {vr(Q+4*u,4)}, {vr(SX if u else MASK,16)}')
        g.i(f'v_max3_f32 v{VMX}, v{SX}, v{SX+1}, v{SX+2}')
        for r in range(3, 15, 2):
            g.i(f'v_max3_f32 v{VMX}, v{VMX}, v{SX+r}, v{SX+r+1}')
        g.i(f'v_max_f32 v{VMX}, v{VMX}, v{SX+15}')
        g.i(f's_lshl_b32 s{T2}, s{S_HD}, 7')
        g.i(f's_add_u32 s{T2}, s{T2}, {OFF_FLAG + FL_KM}')
        g.i(f's_add_u32 s{S_NEED}, s{S_S}, 1')
        self.wait_word(T2, f's{S_NEED}', VF, 4)
        g.i(f's_lshl_b32 s{T0}, s{S_U}, 12')
        g.i(f's_add_u32 s{T0}, s{T0}, {OFF_KM}')
        g.vm_q = []; g.lds_q = []
        for w in range(4):
            g.i(f'buffer_load_dwordx4 {vr(REC+4*w,4)}, v{V_L16}, {WS}, s{T0} offen offset:{1024*w} sc1', tag=('r', w))
        for w in range(4):
            g.wait_vm(('r', w))
            g.i(f'ds_write_b32 v{VKK}, v{REC+4*w+1} offset:{512*w}')
            g.i(f'ds_write_b32 v{VKK}, v{REC+4*w+3} offset:{512*w + 64}')
            g.i(f'ds_write2st64_b32 v{VKW}, v{REC+4*w}, v{REC+4*w+2} offset0:{8+2*w} offset1:{8+2*w+1}')
        g.wait_lds()
        for u in range(8):
            g.i(f'ds_read_b64_tr_b16 {vr(KM+4*u,2)}, v{VKR} offset:{256*u}', tag=('km', u))
            g.i(f'ds_read_b64_tr_b16 {vr(KM+4*u+2,2)}, v{VKR} offset:{256*u + 64}', tag=('km', u))
            if u >= 4:
                g.wait_lds(('km', u - 4))
                g.i(f'v_mfma_f32_32x32x16_bf16 {vr(SM,16)}, {vr(KM+4*(u-4),4)}, {vr(Q+4*(u-4),4)}, {vr(SM,16) if u > 4 else 0}')
        for nb in range(4):
            g.i(f'ds_read_b64 {vr(VM+2*nb,2)}, v{VVR} offset:{2048 + 512*nb}', tag='vm')
        for u in range(4, 8):
            g.wait_lds(('km', u))
            g.i(f'v_mfma_f32_32x32x16_bf16 {vr(SM,16)}, {vr(KM+4*u,4)}, {vr(Q+4*u,4)}, {vr(SM,16)}')
        g.i(f'v_max3_f32 v{VMX}, v{VMX}, v{SM}, v{SM+1}')
        g.i(f'v_max3_f32 v{VMX}, v{VMX}, v{SM+2}, v{SM+3}')
        g.i(f'v_mov_b32 v{VT}, v{VMX}')
        g.i(f'v_permlane32_swap_b32 v{VMX}, v{VT}')
        g.i(f'v_max_f32 v{VMX}, v{VMX}, v{VT}')
        g.i(f'v_mul_f32 v{VMX}, s{S_C}, v{VMX}')
        vals = list(range(SX, SX + 20))
        for r in vals:
            g.i(f'v_fma_f32 v{r}, v{r}, s{S_C}, -v{VMX}')
        for r in vals:
            g.i(f'v_exp_f32 v{r}, v{r}')
        for k in range(10):
            g.i(f'v_cvt_pk_bf16_f32 v{PB+k}, v{SX+2*k}, v{SX+2*k+1}')
        g.wait_lds()
        sums = [f'v_add_f32 v{VL}, v{SX}, v{SX+1}'] + [f'v_add_f32 v{VL}, v{VL}, v{r}' for r in vals[2:]] + \
            [f'v_mov_b32 v{VT}, v{VL}', 's_nop 1', f'v_permlane32_swap_b32 v{VL}, v{VT}', f'v_add_f32 v{VL}, v{VL}, v{VT}',
             f'v_rcp_f32 v{VL}, v{VL}']
        for st in range(3):
            for nb in range(4):
                o = vr(O + 16 * nb, 16)
                g.i([f'v_mfma_f32_32x32x16_bf16 {o}, {vr(V+8*nb,4)}, {vr(PB,4)}, 0',
                     f'v_mfma_f32_32x32x16_bf16 {o}, {vr(V+8*nb+4,4)}, {vr(PB+4,4)}, {o}',
                     f'v_mfma_f32_32x32x8_bf16 {o}, {vr(VM+2*nb,2)}, {vr(PB+8,2)}, {o}'][st])
                for _ in range(4):
                    if sums:
                        g.i(sums.pop(0))
        assert not sums
        g.i(f's_add_u32 s{T0}, s{S_BLK}, {OFF_O}')
        g.i(f's_add_u32 s{T1}, s{T0}, 4096')
        for n in range(8):
            o, p = O + 8 * n, KM + 4 * n
            for r in range(8):
                g.i(f'v_mul_f32 v{o+r}, v{o+r}, v{VL}')
            for k in range(4):
                g.i(f'v_cvt_pk_bf16_f32 v{p+k}, v{o+2*k}, v{o+2*k+1}')
            g.i(f'v_permlane32_swap_b32 v{p}, v{p+2}')
            g.i(f'v_permlane32_swap_b32 v{p+1}, v{p+3}')
            g.i(f'buffer_store_dwordx4 {vr(p,4)}, v{V_L16}, {WS}, s{T0 if n < 4 else T1} offen offset:{1024*(n%4)} sc1')
        g.i(f's_lshl_b32 s{T0}, s{S_S}, 7')
        g.i(f's_add_u32 s{T0}, s{T0}, {OFF_FLAG + FL_O}')
        g.i(f'v_mov_b32 v{VF}, 1')
        g.wait_vm()
        g.i('s_mov_b64 exec, 1')
        g.i(f'buffer_atomic_add v{VF}, off, {WS}, s{T0}')
        g.i('s_mov_b64 exec, -1')
        g.i(f's_add_u32 s{S_U}, s{S_U}, {4 * N_LIGHT}')
        g.i(f's_cmp_lt_u32 s{S_U}, 2048')
        g.settle()
        g.i(f's_cbranch_scc1 {top}')
```

```python
OFF_XN   = 0x0000000
OFF_KX   = 0x0400000
OFF_VX   = 0x1400000
OFF_QX   = 0x2400000
OFF_H    = 0x3400000
OFF_O    = 0x4800000
OFF_G    = 0x5800000
OFF_KM   = 0x6000000
OFF_VM   = 0x6800000
OFF_PART = 0x6C00000
OFF_MB   = 0x6E00000
OFF_SYNC = 0x6E20000
OFF_FLAG = 0x6F00000
OFF_DIAG = 0x7000000
WS_BYTES = 268435456
NSEG = 64

def colmap(t, k):
    ga, hh, x1, sg, x0 = k >> 4, (k >> 3) & 1, (k >> 2) & 1, (k >> 1) & 1, k & 1
    if t == 4:
        return 512 + 16 * ga + 8 * sg + 4 * hh + 2 * x1 + x0
    q, w = (0, t) if t < 4 else (1, t - 5)
    return 256 * q + 128 * x1 + 32 * w + 16 * x0 + 4 * ga + 2 * sg + hh

assert sorted(colmap(t, k) for t in range(9) for k in range(64)) == list(range(576))
DBG_XCC = 0
DBG_PICK = 64
DBG_HEAVY = 0
DBG_LIGHT = 96
DBG_LN = 64
DBG_CHAIN = 128
DBG_LNOK = 224
DBG_INIT = 192
FL_KM = 0
FL_O = 4096
FL_P1 = 16384
P1_REP = 16384
FL_BYTES = 65536
N_LIGHT, N_HEAVY = 32, 192
N_LN = 64
N_REP = 10
Q2 = 42
LIGHT_XCC = 2
CHAIN_XCC = 3
```

```python
import sys
from asmgen import *
from layout import *
import chain as C
import bulk as B

NAME = 'recurrent_scan__memory_aug_recurrent_mem_tr__dense_activation_silu__prompt'


def dispatch(g, l_chain, l_bulk, force_slow, LIGHT_XCC=LIGHT_XCC):
    S_W, S_H, T0, T1, DBG, XCC = C.S_W, C.S_H, C.S_T0, C.S_T1, C.S_DBG, C.S_XCC
    g.i('v_lshrrev_b32 v1, 6, v0')
    g.i('v_and_b32 v0, 63, v0')
    g.i(f'v_readfirstlane_b32 s{S_W}, v1')
    g.i(f's_getreg_b32 s{XCC}, hwreg(HW_REG_XCC_ID, 0, 4)')
    rd, tb, tc, wr = [g.newlabel('el') for _ in range(4)]
    g.i(f'v_mov_b32 v2, {C.L_EL}')
    g.i(f's_cmp_lg_u32 s{S_W}, 0')
    g.i(f's_cbranch_scc1 {rd}')
    g.i('s_mov_b64 exec, 1')
    g.i('v_mov_b32 v4, 1')

    CL = {'c': (DBG_CHAIN, 32, 0), 'l': (DBG_LIGHT, N_LIGHT, 32), 'h': (DBG_HEAVY, N_HEAVY, 64)}

    def tickets(order):
        for c in order:
            off, cap, base = CL[c]
            g.i(f'v_mov_b32 v3, {off}')
            g.i(f'global_atomic_add v5, v3, v4, s[{DBG}:{DBG+1}] sc0')
            g.wait_vm()
            g.i(f'v_readfirstlane_b32 s{T0}, v5')
            g.i(f's_add_u32 s{S_H}, s{T0}, {base}')
            g.i(f's_cmp_lt_u32 s{T0}, {cap}')
            g.i(f's_cbranch_scc1 {wr}')
        g.i(f's_mov_b32 s{S_H}, 256')
        g.i(f's_branch {wr}')
    if force_slow:
        g.i('s_cmp_lt_u32 s2, 16')
    else:
        g.i(f's_cmp_eq_u32 s{XCC}, {CHAIN_XCC}')
    g.i(f's_cbranch_scc1 {tc}')
    g.i(f's_cmp_eq_u32 s{XCC}, {LIGHT_XCC}')
    g.i(f's_cbranch_scc1 {tb}')
    tickets('hlc')
    g.label(tb)
    tickets('lhc')
    g.label(tc)
    tickets('clh')
    g.label(wr)
    g.i(f'v_mov_b32 v5, s{S_H}')
    g.i('ds_write_b32 v2, v5')
    g.i('s_mov_b64 exec, -1')
    g.wait_lds()
    g.label(rd)
    g.i('s_barrier')
    g.i('ds_read_b32 v5, v2')
    g.wait_lds()
    g.i(f'v_readfirstlane_b32 s{S_H}, v5')
    g.i('s_barrier')
    g.i(f's_cmp_lt_u32 s{S_H}, 32')
    g.i(f's_cbranch_scc1 {l_chain}')
    g.i(f's_cmp_ge_u32 s{S_H}, 256')
    g.i(f's_cbranch_scc1 fin0')
    g.i(f's_sub_u32 s{S_H}, s{S_H}, 32')


def build(out, diag=0, force_slow=False, prof=False, header='', bopt=(), **kw):
    g = Gen()
    name = NAME + '_kernel'
    g.raw(header + f'; @launch grid=(256,1,1) block=(256,1,1) lds={C.LDS_BYTES}')
    g.raw('.amdgcn_target "amdgcn-amd-amdhsa--gfx950"')
    g.raw('.text'); g.raw(f'.globl {name}'); g.raw('.p2align 8'); g.raw(f'.type {name},@function')
    g.label(name)
    g.i('s_cmp_ge_u32 s2, 256')
    g.i('s_cbranch_scc1 fin0')
    nprof = [0]

    def stamp():
        if prof:
            g.i('s_memrealtime s[100:101]')
            g.i('s_waitcnt lgkmcnt(0)')
            g.i(f's_mov_b32 s{88 + nprof[0]}, s100')
            nprof[0] += 1

    def dump(base):
        if prof:
            for k in range(8):
                g.i(f'v_writelane_b32 v14, s{88 + k}, {k}')
            g.i(f's_lshl_b32 s42, s{C.S_H}, 2')
            g.i(f's_add_u32 s42, s42, s{C.S_W}')
            g.i(f's_lshl_b32 s42, s42, 5')
            g.i(f's_add_u32 s42, s42, {OFF_DIAG + 0x200000 + base}')
            g.i('v_mbcnt_lo_u32_b32 v15, -1, 0')
            g.i('v_lshlrev_b32 v15, 2, v15')
            g.i('s_mov_b64 exec, 0xff')
            g.i(f'buffer_store_dword v14, v15, s[4:7], s42 offen')
            if prof == 2:
                g.i('s_not_b32 s88, s88')
                g.i('v_writelane_b32 v14, s88, 0')
                g.i(f'v_add_u32 v15, {4 if base == 0 else 28}, v15')
                g.i(f's_mov_b64 exec, {0x1f if base == 0 else 0xfe}')
                g.i(f'global_atomic_umax v15, v14, s[{C.S_DBG}:{C.S_DBG+1}]')
    g.i(f's_load_dwordx2 s[{B.P_X}:{B.P_X+1}], s[0:1], 0')
    g.i(f's_load_dwordx2 s[{C.S_PTR}:{C.S_PTR+1}], s[0:1], 8')
    g.i(f's_load_dwordx2 s[{C.S_PTR+2}:{C.S_PTR+3}], s[0:1], 16')
    g.i(f's_load_dwordx4 s[{C.S_PTR+4}:{C.S_PTR+7}], s[0:1], 24')
    g.i(f's_load_dwordx2 s[{C.S_PTR+8}:{C.S_PTR+9}], s[0:1], 40')
    g.i(f's_load_dwordx2 s[{B.P_W1}:{B.P_W1+1}], s[0:1], 64')
    g.i(f's_load_dwordx4 s[{B.P_W2}:{B.P_W2+3}], s[0:1], 72')
    g.i(f's_load_dwordx2 s[{C.S_DBG}:{C.S_DBG+1}], s[0:1], 88')
    g.i(f's_load_dwordx2 s[{C.S_WS}:{C.S_WS+1}], s[0:1], 96')
    if prof:
        for k in range(8):
            g.i(f's_mov_b32 s{88+k}, 0')
    stamp()
    g.i('s_waitcnt lgkmcnt(0)')
    g.i(f's_mov_b32 s{C.S_WS+2}, {WS_BYTES}')
    g.i(f's_mov_b32 s{C.S_WS+3}, 0x20000')
    dispatch(g, 'chain_far', 'bulk', force_slow, kw.pop('lx', LIGHT_XCC))
    g.i('s_branch bulk')
    g.label('chain_far')
    g.i('s_branch chain')
    g.label('fin0')
    g.i('s_endpgm')
    g.forget()
    g.label('chain')
    stamp()
    ch = C.Chain(g, diag=diag, standalone=False, opt=kw.pop('opt', ()))
    for k_, v_ in kw.items():
        setattr(ch, k_, v_)
    ch.prologue()
    stamp()
    ch.after_wait = stamp
    ch.start('fin1', 'done')
    g.label('done')
    ch.finish('done2')
    g.label('done2')
    stamp()
    dump(0)
    g.label('fin1')
    g.i('s_endpgm')
    g.forget()
    g.label('bulk')
    nprof[0] = 1
    stamp()
    b = B.Bulk(g, 'fin2', bopt)
    b.setup()
    g.i(f's_cmp_ge_u32 s{B.S_RANK}, {N_LN}')
    g.i('s_cbranch_scc1 proj')
    b.layernorm()
    stamp()
    g.i(f's_cmp_lt_u32 s{B.S_RANK}, {N_LIGHT}')
    g.i('s_cbranch_scc1 attn')
    g.label('proj')
    nprof[0] = 2
    b.stamp = stamp
    b.project()
    stamp()
    g.i(f's_cmp_ge_u32 s{B.S_RANK}, {N_LIGHT + 18 * N_REP}')
    g.i('s_cbranch_scc1 bend')
    b.stream_gemm(True)
    stamp()
    b.stream_gemm(False)
    stamp()
    g.i('s_branch bend')
    g.label('fin2')
    g.i('s_endpgm')
    g.forget()
    g.label('attn')
    if 'noattn' in bopt:
        g.i('s_endpgm')
    b.attention()
    nprof[0] = 7
    stamp()
    g.label('bend')
    dump(4096)
    g.i('s_endpgm')
    g.raw(f'''.section .rodata,"a"
.p2align 6
.amdhsa_kernel {name}
  .amdhsa_next_free_vgpr 512
  .amdhsa_next_free_sgpr 102
  .amdhsa_accum_offset 256
  .amdhsa_group_segment_fixed_size 0
  .amdhsa_kernarg_size 104
  .amdhsa_user_sgpr_count 2
  .amdhsa_user_sgpr_kernarg_segment_ptr 1
  .amdhsa_system_sgpr_workgroup_id_x 1
.end_amdhsa_kernel''')
    open(out, 'w').write(g.text())
    if diag:
        open(out[:-2] + '_names.txt', 'w').write('\n'.join(ch.names))
    print(out, 'nops', g.nops, 'lines', len(g.lines), 'bytes', len(g.text()))


if __name__ == '__main__':
    ref = open(f'cdna_kernels/{NAME}.s.ref').read()
    header = ref[:ref.index('; @launch')]
    best = dict(dm=[20, 0, 0, 20], dq=28, wake=10, dr=[50, None, None], pre=4)
    build(f'cdna_kernels/{NAME}.s', header=header, **best)
    build('full_prof.s', prof=True, **best)
    build('full_slow.s', prof=True, force_slow=True, **best)
    build('full_diag.s', prof=True, diag=4, **best)
    build('full_h.s', prof=2, header=header, **best)
    build('full_diag5.s', prof=True, diag=4, lx=5, **best)
    build('full_diagn.s', prof=True, diag=4, bopt=('noattn',), **best)
```

```python
import math
from asmgen import *
from layout import *
from chain import S_WS, S_W8, S_DBG, S_W, S_PTR, SPIN_MAX, f2u

S_RANK = 15
P_MEM0, P_WQ, P_WK, P_WV, P_WO = S_PTR, S_PTR + 2, S_PTR + 4, S_PTR + 6, S_PTR + 8
P_X, P_W1, P_W2, P_OUT = 60, 62, 64, 66
S_X4, S_O4 = 68, 72
T0, T1, T2, T3 = 42, 43, 44, 45
S_TRY = 41
WS = f's[{S_WS}:{S_WS+3}]'
W8 = f's[{S_W8}:{S_W8+3}]'
LOG2E = math.log2(math.e)
V_L, V_L16 = 0, 1


def wreg(n, cnt=4):
    return ar(n, cnt) if n < 256 else vr(224 + n - 256, cnt)


class Bulk:
    def __init__(self, g, bail, opt=()):
        self.opt = set(opt)
        self.ahead = 9
        self.g = g
        self.bail = bail

    def srd(self, dst, ptr, nbytes):
        g = self.g
        g.i(f's_mov_b32 s{dst}, s{ptr}')
        g.i(f's_mov_b32 s{dst+1}, s{ptr+1}')
        g.i(f's_mov_b32 s{dst+2}, {nbytes}')
        g.i(f's_mov_b32 s{dst+3}, 0x20000')

    def spin(self, load, test, sleep=4):
        g = self.g
        lp, ok = g.newlabel('sp'), g.newlabel('sp')
        g.i(f's_mov_b32 s{S_TRY}, 0')
        g.settle()
        g.label(lp)
        load()
        test()
        g.i(f's_cbranch_scc1 {ok}')
        g.i(f's_sleep {sleep}')
        g.i(f's_add_u32 s{S_TRY}, s{S_TRY}, 1')
        g.i(f's_cmp_lt_u32 s{S_TRY}, {SPIN_MAX}')
        g.i(f's_cbranch_scc1 {lp}')
        g.i(f's_branch {self.bail}')
        g.label(ok)

    def wait_word(self, soff, need, vt, sleep=4):
        g = self.g

        def load():
            g.i(f'buffer_load_dword v{vt}, off, {WS}, s{soff} sc1')
            g.wait_vm()

        def test():
            g.i(f'v_readfirstlane_b32 s{T3}, v{vt}')
            g.i(f's_cmp_ge_u32 s{T3}, {need}')
        self.spin(load, test, sleep)

    def wait_ln(self, vt, word=DBG_LNOK):
        g = self.g
        sk = g.newlabel('wl')
        g.i(f's_cmp_lg_u32 s{S_W}, 0')
        g.i(f's_cbranch_scc1 {sk}')
        g.i(f'v_mov_b32 v{vt+1}, {word}')

        def load():
            g.i(f'global_load_dword v{vt}, v{vt+1}, s[{S_DBG}:{S_DBG+1}] sc1')
            g.wait_vm()

        def test():
            g.i(f'v_readfirstlane_b32 s{T3}, v{vt}')
            g.i(f's_cmp_lg_u32 s{T3}, 0')
        self.spin(load, test, 8)
        g.label(sk)
        g.i('s_barrier')

    def setup(self):
        g = self.g
        g.i(f'v_lshlrev_b32 v{V_L16}, 4, v{V_L}')
        self.srd(S_X4, P_X, 2359296)
        self.srd(S_O4, P_OUT, 2359296)

    def layernorm(self):
        g = self.g
        VA, VO, VS, VQ, VM, VR, VT, VU = 2, 3, 4, 5, 6, 8, 10, 12
        D, F = 16, 64
        g.i(f'v_and_b32 v{VT}, 7, v{V_L}')
        g.i(f'v_lshrrev_b32 v{VU}, 3, v{V_L}')
        g.i(f'v_mul_u32_u24 v{VA}, 1152, v{VU}')
        g.i(f'v_lshl_add_u32 v{VA}, v{VT}, 4, v{VA}')
        g.i(f's_lshl_b32 s20, s{S_RANK}, 2')
        g.i(f's_add_u32 s20, s20, s{S_W}')
        g.i(f's_mul_i32 s{T0}, s20, 9216')
        g.vm_q = []
        for i in range(9):
            g.i(f'buffer_load_dwordx4 {vr(D + 4*i, 4)}, v{VA}, s[{S_X4}:{S_X4+3}], s{T0} offen offset:{128*i}', tag=('x', i))
        g.i(f'v_lshlrev_b32 v{VO}, 9, v{VT}')
        g.i(f'v_lshl_add_u32 v{VO}, v{VU}, 4, v{VO}')
        g.i(f'v_mov_b32 v{VS}, 0')
        g.i(f'v_lshlrev_b32 v{VQ}, 2, v{V_L}')
        g.i(f's_lshl_b32 s{T0}, s20, 8')
        g.i(f's_add_u32 s{T0}, s{T0}, {OFF_FLAG}')
        g.i(f'buffer_store_dword v{VS}, v{VQ}, {WS}, s{T0} offen sc1')
        for k in range(4):
            g.i(f'v_mov_b32 v{F+k}, -1')
        g.i(f's_lshl_b32 s{T0}, s20, 11')
        g.i(f's_add_u32 s{T0}, s{T0}, {OFF_KM + SEG_DIRECT * 131072}')
        g.i(f'buffer_store_dwordx4 {vr(F,4)}, v{V_L16}, {WS}, s{T0} offen sc1')
        g.i(f'buffer_store_dwordx4 {vr(F,4)}, v{V_L16}, {WS}, s{T0} offen offset:1024 sc1')

        def allsum(r):
            g.i(f'v_add_f32_dpp v{r}, v{r}, v{r} quad_perm:[1,0,3,2] row_mask:0xf bank_mask:0xf')
            g.i(f'v_add_f32_dpp v{r}, v{r}, v{r} quad_perm:[2,3,0,1] row_mask:0xf bank_mask:0xf')
            g.i(f'v_add_f32_dpp v{r}, v{r}, v{r} row_half_mirror row_mask:0xf bank_mask:0xf')

        def rnd(r):
            g.i(f'v_cvt_pk_bf16_f32 v{r}, v{r}, v{r}')
            g.i(f'v_and_b32 v{r}, 0xffff0000, v{r}')
        for k in range(36):
            if k % 4 == 0:
                g.wait_vm(('x', k // 4))
            g.i(f'v_lshlrev_b32 v{F+2*k}, 16, v{D+k}')
            g.i(f'v_and_b32 v{F+2*k+1}, 0xffff0000, v{D+k}')
            if k == 1:
                g.i(f'v_pk_add_f32 {vr(VT,2)}, {vr(F,2)}, {vr(F+2,2)}')
            elif k > 1:
                g.i(f'v_pk_add_f32 {vr(VT,2)}, {vr(VT,2)}, {vr(F+2*k,2)}')
        g.i(f'v_add_f32 v{VS}, v{VT}, v{VT+1}')
        allsum(VS)
        g.i(f'v_mul_f32 v{VM}, {f2u(1/576):#x}, v{VS}')
        for k in range(36):
            g.i(f'v_pk_add_f32 {vr(VU,2)}, {vr(F+2*k,2)}, {vr(VM,2)} op_sel_hi:[1,0] neg_lo:[0,1] neg_hi:[0,1]')
            if k == 0:
                g.i(f'v_pk_mul_f32 {vr(VT,2)}, {vr(VU,2)}, {vr(VU,2)}')
            else:
                g.i(f'v_pk_fma_f32 {vr(VT,2)}, {vr(VU,2)}, {vr(VU,2)}, {vr(VT,2)}')
        g.i(f'v_add_f32 v{VQ}, v{VT}, v{VT+1}')
        allsum(VQ)
        g.i(f'v_mul_f32 v{VQ}, {f2u(1/576):#x}, v{VQ}')
        rnd(VQ)
        g.i(f'v_add_f32 v{VQ}, {f2u(1e-5):#x}, v{VQ}')
        rnd(VQ)
        g.i(f'v_sqrt_f32 v{VQ}, v{VQ}')
        rnd(VQ)
        g.i(f'v_rcp_f32 v{VR}, v{VQ}')
        rnd(VM)
        g.i(f's_mul_i32 s{T0}, s{S_RANK}, 36864')
        g.i(f's_lshl_b32 s{T1}, s{S_W}, 7')
        g.i(f's_add_u32 s{T0}, s{T0}, s{T1}')
        for k in range(36):
            a, d = F + 2 * k, D + k
            g.i(f'v_pk_add_f32 {vr(a,2)}, {vr(a,2)}, {vr(VM,2)} op_sel_hi:[1,0] neg_lo:[0,1] neg_hi:[0,1]')
            g.i(f'v_cvt_pk_bf16_f32 v{d}, v{a}, v{a+1}')
            g.i(f'v_lshlrev_b32 v{a}, 16, v{d}')
            g.i(f'v_and_b32 v{a+1}, 0xffff0000, v{d}')
            g.i(f'v_pk_mul_f32 {vr(a,2)}, {vr(a,2)}, {vr(VR,2)} op_sel_hi:[1,0]')
            g.i(f'v_cvt_pk_bf16_f32 v{d}, v{a}, v{a+1}')
            if k % 4 == 3:
                g.i(f's_add_u32 s{T1}, s{T0}, {OFF_XN + 4096*(k//4)}')
                g.i(f'buffer_store_dwordx4 {vr(d-3, 4)}, v{VO}, {WS}, s{T1} offen sc1')
        g.wait_vm()
        g.i('s_barrier')
        sk = g.newlabel('lns')
        g.i(f's_cmp_lg_u32 s{S_W}, 0')
        g.i(f's_cbranch_scc1 {sk}')
        g.i('s_mov_b64 exec, 1')
        g.i(f'v_mov_b32 v2, {DBG_LN}')
        g.i('v_mov_b32 v3, 1')
        g.i(f'global_atomic_add v4, v2, v3, s[{S_DBG}:{S_DBG+1}] sc0')
        g.i(f'v_mov_b32 v2, {DBG_LNOK}')
        g.wait_vm()
        g.i(f'v_readfirstlane_b32 s{T0}, v4')
        nl = g.newlabel('lns')
        g.i(f's_cmp_lg_u32 s{T0}, {N_LN - 1}')
        g.i(f's_cbranch_scc1 {nl}')
        g.i(f'global_store_dword v2, v3, s[{S_DBG}:{S_DBG+1}] sc1')
        g.label(nl)
        g.i('s_mov_b64 exec, -1')
        g.label(sk)

    def load_weights(self, ntile, nstep, s_off, s_pitch):
        g = self.g
        VA, VT, VX, VY = 2, 3, 4, 5
        seg = 64 * ntile
        lpr = seg // 16
        rpi = 1024 // seg
        spb = 4 * rpi // 16
        nblk = nstep // spb
        sh = lpr.bit_length() - 1
        g.i(f'v_lshrrev_b32 v{VX}, {sh}, v{V_L}')
        g.i(f'v_mul_lo_u32 v{VA}, v{VX}, s{s_pitch}')
        g.i(f'v_and_b32 v{VX}, {lpr-1}, v{V_L}')
        g.i(f'v_lshl_add_u32 v{VA}, v{VX}, 4, v{VA}')
        g.i(f'v_lshrrev_b32 v{VX}, 5, v{V_L}')
        g.i(f'v_bfe_u32 v{VY}, v{V_L}, 2, 2')
        g.i(f'v_lshl_add_u32 v{VX}, v{VX}, 3, v{VY}')
        g.i(f'v_mul_u32_u24 v{VT}, {seg}, v{VX}')
        g.i(f'v_bfe_u32 v{VX}, v{V_L}, 4, 1')
        g.i(f'v_lshl_add_u32 v{VT}, v{VX}, 5, v{VT}')
        g.i(f'v_and_b32 v{VX}, 3, v{V_L}')
        g.i(f'v_lshl_add_u32 v{VT}, v{VX}, 3, v{VT}')
        g.i(f's_mul_i32 s{T2}, s{S_W}, 36864')
        g.i(f'v_add_u32 v{VT}, s{T2}, v{VT}')
        g.i(f's_mul_i32 s{T1}, s{s_pitch}, {rpi}')
        g.i(f's_mov_b32 s{T0}, s{s_off}')
        g.vm_q = []

        def issue(n):
            for q in range(4):
                g.i(f's_add_u32 m0, s{T2}, {(n % 9) * 4096 + q * 1024}')
                g.i(f'buffer_load_dwordx4 v{VA}, {W8}, s{T0} offen {"nt" if "wnt" in self.opt else ""} lds', tag=('w', n))
                g.i(f's_add_u32 s{T0}, s{T0}, s{T1}')
        for n in range(min(9, nblk)):
            issue(n)
        for n in range(nblk):
            g.wait_vm(('w', n))
            for st in range(spb):
                for x in range(ntile):
                    r = 4 * ((n * spb + st) * ntile + x)
                    for hf in range(2):
                        off = (n % 9) * 4096 + (16 * st + 4 * hf) * seg + 64 * x
                        g.i(f'ds_read_b64_tr_b16 {wreg(r + 2*hf, 2)}, v{VT} offset:{off}')
            g.wait_lds()
            if n + 9 < nblk:
                issue(n + 9)

    def silu_ops(self, src, a, b, t):
        return [f'v_lshlrev_b32 v{a}, 16, v{src}', f'v_and_b32 v{b}, 0xffff0000, v{src}',
                f'v_mul_f32 v{t}, {f2u(-LOG2E):#x}, v{a}', f'v_mul_f32 v{t+1}, {f2u(-LOG2E):#x}, v{b}',
                f'v_exp_f32 v{t}, v{t}', f'v_exp_f32 v{t+1}, v{t+1}',
                f'v_add_f32 v{t}, 1.0, v{t}', f'v_add_f32 v{t+1}, 1.0, v{t+1}',
                f'v_rcp_f32 v{t}, v{t}', f'v_rcp_f32 v{t+1}, v{t+1}',
                f'v_mul_f32 v{a}, v{a}, v{t}', f'v_mul_f32 v{b}, v{b}, v{t+1}',
                f'v_cvt_pk_bf16_f32 v{src}, v{a}, v{b}']

    def project(self):
        g = self.g
        S_B, S_REP, S_OFF, S_PITCH, S_OUT, S_OSTR, S_A, S_N, S_I, S_FL, S_ST, S_LW, S_SW = range(16, 29)
        kv, dec, q2, w8 = [g.newlabel('pj') for _ in range(4)]
        S_NR = 29
        g.i(f's_mov_b32 s{S_NR}, 3')
        g.i(f's_sub_u32 s{T0}, s{S_RANK}, 64')
        g.i(f's_cmp_lt_u32 s{T0}, 96')
        g.i(f's_cbranch_scc1 {kv}')
        g.i(f's_cmp_ge_u32 s{S_RANK}, {32 + 180}')
        g.i(f's_cbranch_scc1 {q2}')
        g.i(f's_cmp_lt_u32 s{S_RANK}, 64')
        g.i(f's_cselect_b32 s{T0}, 32, 128')
        g.i(f's_sub_u32 s{T0}, s{S_RANK}, s{T0}')
        g.i(f's_mul_hi_u32 s{S_B}, s{T0}, {(1 << 32) // 3 + 1}')
        g.i(f's_mul_i32 s{T1}, s{S_B}, 3')
        g.i(f's_sub_u32 s{S_REP}, s{T0}, s{T1}')
        g.i(f's_cmp_lt_u32 s{S_B}, 18')
        g.i(f's_cselect_b32 s{T0}, 48, 14')
        g.i(f's_add_u32 s{S_B}, s{S_B}, s{T0}')
        g.i(f's_branch {w8}')
        g.label(q2)
        g.i(f's_sub_u32 s{T0}, s{S_RANK}, {32 + 180}')
        g.i(f's_and_b32 s{S_REP}, s{T0}, 1')
        g.i(f's_lshr_b32 s{S_B}, s{T0}, 1')
        g.i(f's_add_u32 s{S_B}, s{S_B}, {Q2}')
        g.i(f's_mov_b32 s{S_NR}, 2')
        g.label(w8)
        if 'eager' not in self.opt:
            self.wait_ln(2, DBG_GO if 'qhlate' in self.opt else DBG_LNOK)
        g.i(f's_branch {dec}')
        g.label(kv)
        g.i(f's_and_b32 s{S_B}, s{T0}, 31')
        g.i(f's_lshr_b32 s{S_REP}, s{T0}, 5')
        g.label(dec)
        lq, lh, lv, go = [g.newlabel('pj') for _ in range(4)]
        VST = 6
        g.i(f'v_mov_b32 v{VST}, v{V_L16}')
        g.i(f's_mov_b32 s{S_PITCH}, 8192')
        g.i(f's_mov_b32 s{S_OSTR}, {32 * 8192}')
        g.i(f's_and_b32 s{T2}, s{S_W}, 1')
        g.i(f's_cmp_ge_u32 s{S_B}, 48')
        g.i(f's_cbranch_scc1 {lh}')
        g.i(f's_cmp_ge_u32 s{S_B}, 32')
        g.i(f's_cbranch_scc1 {lq}')
        g.i(f's_lshl_b32 s{S_OFF}, s{S_B}, 8')
        g.i(f's_lshl_b32 s{T0}, s{T2}, 7')
        g.i(f's_add_u32 s{S_OFF}, s{S_OFF}, s{T0}')
        g.i(f's_lshl_b32 s{S_OUT}, s{S_B}, 13')
        g.i(f's_lshl_b32 s{T0}, s{T2}, 12')
        g.i(f's_add_u32 s{S_OUT}, s{S_OUT}, s{T0}')
        g.i(f's_cmp_ge_u32 s{S_W}, 2')
        g.i(f's_cbranch_scc1 {lv}')
        self.srd(S_W8, P_WK, 4718592)
        g.i(f's_add_u32 s{S_OUT}, s{S_OUT}, {OFF_KX}')
        g.i(f'v_and_b32 v{VST}, 35, v{V_L}')
        g.i(f'v_bfe_u32 v2, v{V_L}, 3, 2')
        g.i(f'v_lshl_add_u32 v{VST}, v2, 2, v{VST}')
        g.i(f'v_bfe_u32 v2, v{V_L}, 2, 1')
        g.i(f'v_lshl_add_u32 v{VST}, v2, 4, v{VST}')
        g.i(f'v_lshlrev_b32 v{VST}, 4, v{VST}')
        g.i(f's_mov_b32 s{S_SW}, 0')
        g.i(f's_branch {go}')
        g.label(lv)
        self.srd(S_W8, P_WV, 4718592)
        g.i(f's_add_u32 s{S_OUT}, s{S_OUT}, {OFF_VX}')
        g.i(f's_mov_b32 s{S_SW}, 1')
        g.i(f's_branch {go}')
        g.label(lq)
        g.i(f's_sub_u32 s{T0}, s{S_B}, 32')
        g.i(f's_lshl_b32 s{T0}, s{T0}, 2')
        g.i(f's_add_u32 s{T0}, s{T0}, s{S_W}')
        g.i(f's_lshl_b32 s{S_OFF}, s{T0}, 7')
        g.i(f's_lshl_b32 s{S_OUT}, s{T0}, 12')
        g.i(f's_add_u32 s{S_OUT}, s{S_OUT}, {OFF_QX}')
        self.srd(S_W8, P_WQ, 4718592)
        g.i(f's_mov_b32 s{S_SW}, 0')
        g.i(f's_branch {go}')
        g.label(lh)
        g.i(f's_sub_u32 s{T0}, s{S_B}, 48')
        g.i(f's_lshl_b32 s{T0}, s{T0}, 2')
        g.i(f's_add_u32 s{T0}, s{T0}, s{S_W}')
        g.i(f's_lshl_b32 s{S_OFF}, s{T0}, 7')
        g.i(f's_lshl_b32 s{S_OUT}, s{T0}, 12')
        g.i(f's_add_u32 s{S_OUT}, s{S_OUT}, {OFF_H}')
        g.i(f's_mov_b32 s{S_PITCH}, 9216')
        g.i(f's_mov_b32 s{S_OSTR}, 294912')
        self.srd(S_W8, P_W1, 5308416)
        g.i(f's_mov_b32 s{S_SW}, 2')
        g.label(go)
        self.load_weights(2, 36, S_OFF, S_PITCH)
        g.i(f's_mul_i32 s{T0}, s{S_OSTR}, s{S_REP}')
        g.i(f's_add_u32 s{S_OUT}, s{S_OUT}, s{T0}')
        g.i(f's_mul_i32 s{S_OSTR}, s{S_OSTR}, s{S_NR}')
        g.i(f's_sub_u32 s{S_OUT}, s{S_OUT}, s{S_OSTR}')
        g.i(f's_mul_i32 s{S_A}, s{S_REP}, 36864')
        g.i(f's_mul_i32 s{S_LW}, s{S_W}, 9216')
        g.i(f's_add_u32 s{S_A}, s{S_A}, s{S_LW}')
        g.i(f's_cmp_eq_u32 s{S_REP}, 0')
        g.i(f's_cselect_b32 s{S_N}, 22, 21')
        g.i(f's_cmp_eq_u32 s{S_NR}, 2')
        g.i(f's_cselect_b32 s{S_N}, 32, s{S_N}')
        g.i(f's_mul_i32 s{S_NR}, s{S_NR}, 36864')
        g.i(f's_lshl_b32 s{S_FL}, s{S_REP}, 7')
        g.i(f's_add_u32 s{S_FL}, s{S_FL}, s{S_B}')
        g.i(f's_lshl_b32 s{S_FL}, s{S_FL}, 7')
        g.i(f's_add_u32 s{S_FL}, s{S_FL}, {OFF_FLAG + FL_P1}')
        self.stamp()
        self.wait_ln(2)
        VA, VP = 2, 3
        ACC, PK, RING, TMP = 16, 48, 64, 96

        def dma(stage_sgpr):
            L = []
            for q in range(3):
                for z in range(3):
                    def f(q=q, z=z):
                        if z == 0:
                            g.i(f's_add_u32 m0, s{stage_sgpr}, {q * 3072}')
                            g.i(f's_add_u32 s{T0}, s{S_A}, {OFF_XN + q * 3072}')
                        g.i(f'buffer_load_dwordx4 v{V_L16}, {WS}, s{T0} offen offset:{1024*z} sc1 lds')
                    L.append(f)
            L.append(lambda: g.i(f's_add_u32 s{S_A}, s{S_A}, s{S_NR}'))
            return L
        for st in range(2):
            g.i(f's_add_u32 s{T1}, s{S_LW}, {st * 36864}')
            for f in dma(T1):
                f()
        if 'cyc' in self.opt:
            g.i('s_memtime s[96:97]')
            g.i('s_memrealtime s[98:99]')
            g.i('s_waitcnt lgkmcnt(0)')
        g.i(f's_mov_b32 s{S_I}, 0')
        g.i(f's_mov_b32 s{S_ST}, 0')
        labs = [g.newlabel('pv') for _ in range(3)]
        end = g.newlabel('pe')
        g.i(f's_cmp_eq_u32 s{S_SW}, 1')
        g.i(f's_cbranch_scc1 {labs[1]}')
        g.i(f's_cmp_eq_u32 s{S_SW}, 2')
        g.i(f's_cbranch_scc1 {labs[2]}')

        def epilogue_ops(silu):
            L = []
            if silu:
                for k in range(0, 16, 2):
                    A = self.silu_ops(PK + k, TMP, TMP + 1, TMP + 2)
                    B = self.silu_ops(PK + k + 1, TMP + 4, TMP + 5, TMP + 6)
                    for p, q in zip(A, B):
                        L += [p, q]
            for n in range(4):
                p = PK + 4 * n
                L += [f'v_permlane32_swap_b32 v{p}, v{p+2}', f'v_permlane32_swap_b32 v{p+1}, v{p+3}',
                      f'buffer_store_dwordx4 {vr(p,4)}, v{VST}, {WS}, s{S_OUT} offen offset:{1024*n} {"" if "plainst" in self.opt else "sc1"}']
            return L

        def publish(sval):
            sk = g.newlabel('pp')
            g.i(f's_cmp_lg_u32 s{S_W}, 0')
            g.i(f's_cbranch_scc1 {sk}')
            g.i(f'v_mov_b32 v{VP}, s{sval}')
            g.i('s_mov_b64 exec, 1')
            g.i(f'buffer_store_dword v{VP}, off, {WS}, s{S_FL} sc1')
            g.i('s_mov_b64 exec, -1')
            g.label(sk)

        for var in range(3):
            g.label(labs[var])
            g.forget()
            silu = var == 2
            first, top = g.newlabel('pf'), g.newlabel('pt')

            def body(with_epi):
                g.lds_q = []
                g.i(f's_waitcnt vmcnt({13 if with_epi else 9})')
                g.i('s_barrier')
                g.i(f'v_add_u32 v{VA}, s{S_ST}, v{V_L16}')
                for u in range(5):
                    g.i(f'ds_read_b128 {vr(RING + 4*u, 4)}, v{VA} offset:{1024*u}', tag=('a', u))
                g.i(f's_sub_u32 s{T2}, s{S_I}, 2')
                g.i(f's_max_i32 s{T2}, s{T2}, 0')
                publish(T2)
                g.i(f's_sub_u32 s{T1}, s{S_ST}, 36864')
                g.i(f's_cmp_eq_u32 s{S_ST}, 0')
                g.i(f's_cselect_b32 s{T1}, {2 * 36864}, s{T1}')
                g.i(f's_add_u32 s{T1}, s{T1}, s{S_LW}')
                dq = dma(T1)
                fill = epilogue_ops(silu) if with_epi else []
                per = 4 if silu else 1
                for u in range(36):
                    g.wait_lds(('a', u))
                    a = vr(RING + 4 * (u % 6), 4)
                    for x in range(2):
                        w = wreg(4 * (2 * u + x))
                        c = vr(ACC + 16 * x, 16) if u else '0'
                        ops = f'{a}, {w}' if var == 1 else f'{w}, {a}'
                        g.i(f'v_mfma_f32_32x32x16_bf16 {vr(ACC + 16*x, 16)}, {ops}, {c}')
                        if x == 0 and u + 5 < 36:
                            g.i(f'ds_read_b128 {vr(RING + 4*((u+5) % 6), 4)}, v{VA} offset:{1024*(u+5)}', tag=('a', u + 5))
                        if x == 1 and dq:
                            dq.pop(0)()
                        for _ in range(per):
                            if fill and not (dq and fill[0].startswith('buffer')):
                                g.i(fill.pop(0))
                assert not fill
                g.i(f's_add_u32 s{S_ST}, s{S_ST}, 36864')
                g.i(f's_cmp_eq_u32 s{S_ST}, {3 * 36864}')
                g.i(f's_cselect_b32 s{S_ST}, 0, s{S_ST}')
                g.i(f's_add_u32 s{S_OUT}, s{S_OUT}, s{S_OSTR}')
                g.i(f's_add_u32 s{S_I}, s{S_I}, 1')
                for k in range(16):
                    g.i(f'v_cvt_pk_bf16_f32 v{PK+k}, v{ACC+2*k}, v{ACC+2*k+1}')
            body(False)
            g.i('s_waitcnt vmcnt(9)')
            g.settle()
            g.label(top)
            body(True)
            g.i(f's_cmp_lt_u32 s{S_I}, s{S_N}')
            g.settle()
            g.i(f's_cbranch_scc1 {top}')
            for f in epilogue_ops(silu):
                g.i(f)
            g.i(f's_branch {end}')
        g.label(end)
        g.forget()
        if 'cyc' in self.opt:
            g.i('s_memtime s[76:77]')
            g.i('s_memrealtime s[78:79]')
            g.i('s_waitcnt lgkmcnt(0)')
            g.i('s_sub_u32 s88, s76, s96')
            g.i('s_sub_u32 s89, s78, s98')
        g.wait_vm()
        g.i('s_barrier')
        publish(S_N)

    def stream_gemm(self, gate):
        g = self.g
        S_SL, S_RP, S_OFF, S_PITCH, S_RT, S_A, S_AN, S_FLG, S_NEED, S_RAW, S_XO, S_PRE = range(16, 28)
        S_EX = 30
        LAST = 66 if gate else 62
        NS = 72 if gate else 64
        RN = NS // 2
        TILE = NS * 4 * 1024
        BASE = OFF_H if gate else OFF_O
        VF, VFA, VRW, VRR, VG, VXO, VT = 2, 3, 4, 5, 6, 7, 8
        ACC, RING = 16, 64
        L_RED, L_G = 0, 147456
        if gate:
            g.i(f's_sub_u32 s{T0}, s{S_RANK}, {N_LIGHT}')
            g.i(f's_mul_hi_u32 s{S_RP}, s{T0}, {(1 << 32) // 18 + 1}')
            g.i(f's_mul_i32 s{T1}, s{S_RP}, 18')
            g.i(f's_sub_u32 s{S_SL}, s{T0}, s{T1}')
        self.srd(S_W8, P_W2 if gate else P_WO, 5308416 if gate else 4718592)
        g.i(f's_mov_b32 s{S_PITCH}, 1152')
        g.i(f's_mul_i32 s{S_OFF}, s{S_W}, {NS * 16 * 1152}')
        g.i(f's_lshl_b32 s{T0}, s{S_SL}, 6')
        g.i(f's_add_u32 s{S_OFF}, s{S_OFF}, s{T0}')
        g.i('s_barrier')
        self.load_weights(1, NS, S_OFF, S_PITCH)
        self.stamp()
        g.i('s_barrier')
        g.i(f's_lshl_b32 s{T0}, s{S_W}, 12')
        g.i(f'v_add_u32 v{VRW}, s{T0}, v{V_L16}')
        g.i(f's_lshl_b32 s{T0}, s{S_W}, 10')
        g.i(f'v_add_u32 v{VRR}, s{T0}, v{V_L16}')
        g.i(f'v_lshrrev_b32 v{VG}, 1, v{VRR}')
        g.i(f'v_add_u32 v{VG}, {L_G}, v{VG}')
        g.i(f'v_and_b32 v{VT}, 31, v{V_L}')
        g.i(f'v_mul_u32_u24 v{VXO}, 1152, v{VT}')
        g.i(f'v_lshrrev_b32 v{VT}, 5, v{V_L}')
        g.i(f'v_lshl_add_u32 v{VXO}, v{VT}, 3, v{VXO}')
        g.i(f's_lshl_b32 s{T0}, s{S_SL}, 6')
        g.i(f's_lshl_b32 s{T1}, s{S_W}, 4')
        g.i(f's_add_u32 s{T0}, s{T0}, s{T1}')
        g.i(f'v_add_u32 v{VXO}, s{T0}, v{VXO}')
        if gate:
            g.i(f'v_min_u32 v{VFA}, 17, v{V_L}')
        else:
            g.i(f'v_and_b32 v{VFA}, 7, v{V_L}')
            g.i(f's_lshl_b32 s{T0}, s{S_W}, 3')
            g.i(f'v_add_u32 v{VFA}, s{T0}, v{VFA}')
        g.i(f'v_lshlrev_b32 v{VFA}, 7, v{VFA}')
        g.i(f's_mov_b32 s{S_RT}, s{S_RP}')
        g.i(f's_mov_b32 s{S_RAW}, s{S_RP}')
        g.i(f's_mov_b64 s[{S_EX}:{S_EX+1}], -1')

        def tile_of(dst, raw):
            g.i(f's_sub_u32 s{T0}, 127, s{raw}')
            g.i(f's_min_u32 s{dst}, s{raw}, s{T0}')

        def flag_addr(rt):
            if gate:
                g.i(f's_mul_hi_u32 s{S_NEED}, s{rt}, {(1 << 32) // 3 + 1}')
                g.i(f's_mul_i32 s{T0}, s{S_NEED}, 3')
                g.i(f's_sub_u32 s{T0}, s{rt}, s{T0}')
                g.i(f's_lshl_b32 s{T0}, s{T0}, 14')
                g.i(f's_add_u32 s{S_FLG}, s{T0}, {OFF_FLAG + FL_P1 + 48 * 128}')
                g.i(f's_add_u32 s{S_NEED}, s{S_NEED}, 1')
            else:
                g.i(f's_and_b32 s{T0}, s{rt}, 3')
                g.i(f's_lshl_b32 s{T0}, s{T0}, 12')
                g.i(f's_add_u32 s{S_FLG}, s{T0}, {OFF_FLAG + FL_O}')
                g.i(f's_lshr_b32 s{S_NEED}, s{rt}, 2')
                g.i(f's_add_u32 s{S_NEED}, s{S_NEED}, 1')

        def flag_load(tag=None):
            g.i(f'buffer_load_dword v{VF}, v{VFA}, {WS}, s{S_FLG} offen sc1', tag=tag)

        def flag_test():
            g.i(f'v_cmp_gt_u32 vcc, s{S_NEED}, v{VF}')
            g.i(f's_cmp_eq_u64 vcc, 0')

        def aaddr(dst, rt):
            g.i(f's_mul_i32 s{dst}, s{rt}, {TILE}')
            g.i(f's_mul_i32 s{T0}, s{S_W}, {NS * 1024}')
            g.i(f's_add_u32 s{dst}, s{dst}, s{T0}')
            g.i(f's_add_u32 s{dst}, s{dst}, {BASE}')

        def aload(sreg, n):
            g.i(f'buffer_load_dwordx4 {vr(RING + 4*(n % RN), 4)}, v{V_L16}, {WS}, s{sreg} offen offset:{1024*(n%4)} sc1')
            if n % 4 == 3:
                g.i(f's_add_u32 s{sreg}, s{sreg}, 4096')

        def mm(n):
            g.i(f'v_mfma_f32_32x32x16_bf16 {vr(ACC + 16*(n&1), 16)}, {wreg(4*n)}, {vr(RING + 4*(n % RN), 4)}, '
                f'{vr(ACC + 16*(n&1), 16) if n > 1 else 0}')
        cold, warm, nopre, epi, end = [g.newlabel('sg') for _ in range(5)]
        g.label(cold)
        flag_addr(S_RT)

        def ld():
            flag_load(); g.wait_vm()
        self.spin(ld, flag_test, 40 if gate else 4)
        aaddr(S_A, S_RT)
        for n in range(RN):
            aload(S_A, n)
        g.settle()
        g.label(warm)
        g.forget()
        g.i(f's_add_u32 s{T2}, s{S_RAW}, {N_REP}')
        tile_of(T2, T2)
        flag_addr(T2)
        aaddr(S_AN, T2)
        g.i(f's_mul_i32 s{S_XO}, s{S_RT}, {32 * 1152}')
        for n in range(RN):
            g.i(f's_waitcnt vmcnt({RN - 1})')
            mm(n)
            aload(S_A, n + RN)
            if n == 0:
                flag_load()
                if not gate:
                    g.i(f'buffer_load_dwordx2 {vr(VT+6,2)}, v{VXO}, s[{S_X4}:{S_X4+3}], s{S_XO} offen')
        g.i(f's_waitcnt vmcnt({RN - 1})')
        flag_test()
        g.i(f's_cselect_b32 s{S_PRE}, 1, 0')
        g.i(f's_add_u32 s{T2}, s{S_RAW}, {N_REP}')
        g.i(f's_cmp_lt_u32 s{T2}, {LAST}')
        g.i(f's_cselect_b32 s{S_PRE}, s{S_PRE}, 0')
        g.i(f's_cmp_eq_u32 s{S_PRE}, 0')
        g.i(f's_cbranch_scc1 {nopre}')
        hist = list(g.hist)
        for n in range(RN, NS):
            g.i(f's_waitcnt vmcnt({RN - 1})')
            mm(n)
            aload(S_AN, n - RN)
        g.i(f's_mov_b32 s{S_A}, s{S_AN}')
        g.settle()
        g.i(f's_branch {epi}')
        g.label(nopre)
        g.hist = hist
        for n in range(RN, NS):
            g.i(f's_waitcnt vmcnt({NS - 1 - n})')
            mm(n)
        g.settle()
        g.label(epi)
        g.lds_q = []
        for r in range(0, 16, 2):
            g.i(f'v_pk_add_f32 {vr(ACC+r,2)}, {vr(ACC+r,2)}, {vr(ACC+16+r,2)}')
        for q in range(4):
            g.i(f'ds_write_b128 v{VRW}, {vr(ACC+4*q,4)} offset:{L_RED + 1024*q}')
        g.wait_lds()
        g.i('s_barrier')
        for w in range(4):
            g.i(f'ds_read_b128 {vr(ACC+4*w,4)}, v{VRR} offset:{L_RED + 4096*w}')
        if not gate:
            g.i(f'ds_read_b64 {vr(VT+4,2)}, v{VG}')
        g.i(f'v_xor_b32 v{VRW}, 0x4000, v{VRW}')
        g.i(f'v_xor_b32 v{VRR}, 0x4000, v{VRR}')
        g.wait_lds()
        fin = g.newlabel('sf')
        g.label(fin)
        for k in (0, 2):
            g.i(f'v_pk_add_f32 {vr(ACC+k,2)}, {vr(ACC+k,2)}, {vr(ACC+4+k,2)}')
            g.i(f'v_pk_add_f32 {vr(ACC+8+k,2)}, {vr(ACC+8+k,2)}, {vr(ACC+12+k,2)}')
        for k in (0, 2):
            g.i(f'v_pk_add_f32 {vr(ACC+k,2)}, {vr(ACC+k,2)}, {vr(ACC+8+k,2)}')
        g.i(f'v_cvt_pk_bf16_f32 v{ACC+4}, v{ACC}, v{ACC+1}')
        g.i(f'v_cvt_pk_bf16_f32 v{ACC+5}, v{ACC+2}, v{ACC+3}')
        if gate:
            A = self.silu_ops(ACC + 4, VT, VT + 1, VT + 2)
            B = self.silu_ops(ACC + 5, VT + 4, VT + 5, VT + 6)
            for p, q in zip(A, B):
                g.i(p); g.i(q)
            g.i(f'ds_write_b64 v{VG}, {vr(ACC+4,2)}')
        else:
            for k in range(2):
                s_, g_, x_ = ACC + 4 + k, VT + 4 + k, VT + 6 + k
                a, b, c, d = ACC + 8, ACC + 9, ACC + 10, ACC + 11
                g.i(f'v_lshlrev_b32 v{a}, 16, v{s_}')
                g.i(f'v_and_b32 v{b}, 0xffff0000, v{s_}')
                g.i(f'v_lshlrev_b32 v{c}, 16, v{g_}')
                g.i(f'v_and_b32 v{d}, 0xffff0000, v{g_}')
                g.i(f'v_mul_f32 v{a}, v{a}, v{c}')
                g.i(f'v_mul_f32 v{b}, v{b}, v{d}')
                g.i(f'v_cvt_pk_bf16_f32 v{s_}, v{a}, v{b}')
                g.i(f'v_lshlrev_b32 v{a}, 16, v{s_}')
                g.i(f'v_and_b32 v{b}, 0xffff0000, v{s_}')
                g.i(f'v_lshlrev_b32 v{c}, 16, v{x_}')
                g.i(f'v_and_b32 v{d}, 0xffff0000, v{x_}')
                g.i(f'v_add_f32 v{a}, v{a}, v{c}')
                g.i(f'v_add_f32 v{b}, v{b}, v{d}')
                g.i(f'v_cvt_pk_bf16_f32 v{s_}, v{a}, v{b}')
            g.i(f's_mov_b64 exec, s[{S_EX}:{S_EX+1}]')
            g.i(f'buffer_store_dwordx2 {vr(ACC+4,2)}, v{VXO}, s[{S_O4}:{S_O4+3}], s{S_XO} offen')
            g.i('s_mov_b64 exec, -1')
        g.i(f'v_add_u32 v{VG}, 2048, v{VG}')
        g.i(f's_add_u32 s{S_RAW}, s{S_RAW}, {N_REP}')
        tile_of(S_RT, S_RAW)
        g.i(f's_cmp_eq_u32 s{S_PRE}, 1')
        g.settle()
        g.i(f's_cbranch_scc1 {warm}')
        g.i(f's_cmp_lt_u32 s{S_RAW}, {LAST}')
        g.i(f's_cbranch_scc1 {cold}')
        g.wait_lds()
        if gate:
            return
        g.i(f's_cmp_ge_u32 s{S_RAW}, 66')
        g.i(f's_cbranch_scc1 {end}')
        VH = VT
        g.i(f's_cmp_ge_u32 s{S_RAW}, 64')
        g.i(f's_cselect_b32 s{T1}, 256, 0')
        g.i(f's_cselect_b32 s{S_EX}, 16, 0')
        g.i(f's_lshl_b32 s{S_EX}, 0xffff, s{S_EX}')
        g.i(f's_mov_b32 s{S_EX+1}, s{S_EX}')
        g.i(f'v_xor_b32 v{VH+1}, s{T1}, v{V_L16}')
        g.i(f'v_and_b32 v{VH+1}, 256, v{VH+1}')
        g.i(f'v_xor_b32 v{VH}, v{VH+1}, v{V_L16}')
        g.i(f'v_lshl_add_u32 v{VH}, v{VH+1}, 2, v{VH}')
        g.i(f's_mul_i32 s{S_XO}, s{S_RT}, {32 * 1152}')
        g.i(f'buffer_load_dwordx2 {vr(VT+6,2)}, v{VXO}, s[{S_X4}:{S_X4+3}], s{S_XO} offen')
        g.i(f'ds_read_b64 {vr(VT+4,2)}, v{VG}')
        g.i(f'v_and_b32 v{VRW}, 0x3fff, v{VRW}')
        g.i(f'v_and_b32 v{VRR}, 0x3fff, v{VRR}')
        g.i(f'v_xor_b32 v{VH+2}, 256, v{VRR}')
        flag_addr(S_RT)
        aaddr(S_A, S_RT)
        g.wait_lds()
        g.i('s_barrier')
        if 'nocp' not in self.opt:
            g.i('s_getpc_b64 s[32:33]')
            g.i(f'v_lshlrev_b32 v{VH+3}, 6, v{V_L}')
            g.i(f'global_load_dword v{VH+3}, v{VH+3}, s[32:33]')
        self.spin(ld, flag_test, 1)
        self.at(1)()
        for m in range(RN):
            g.i(f'buffer_load_dwordx4 {vr(RING + 4*m, 4)}, v{VH}, {WS}, s{S_A} offen offset:{2048*(m%2)} sc1')
            if m % 2:
                g.i(f's_add_u32 s{S_A}, s{S_A}, 4096')
        for n in range(NS):
            if n % 2 == 0:
                g.i(f's_waitcnt vmcnt({RN - 1 - n//2})')
            g.i(f'v_mfma_f32_32x32x16_bf16 {vr(ACC + 16*(n&1), 16)}, {wreg(4*n)}, {vr(RING + 4*(n//2), 4)}, '
                f'{vr(ACC + 16*(n&1), 16) if n > 1 else 0}')
        for q in range(8):
            g.i(f'ds_write_b128 v{VRW}, {vr(ACC+4*q,4)} offset:{L_RED + 16384*(q>>2) + 1024*(q&3)}')
        g.wait_lds()
        g.i('s_barrier')
        for w in range(4):
            g.i(f'ds_read_b128 {vr(ACC+4*w,4)}, v{VRR} offset:{L_RED + 4096*w}')
            g.i(f'ds_read_b128 {vr(ACC+16+4*w,4)}, v{VH+2} offset:{L_RED + 16384 + 4096*w}')
        g.wait_lds()
        for r in range(0, 16, 2):
            g.i(f'v_pk_add_f32 {vr(ACC+r,2)}, {vr(ACC+r,2)}, {vr(ACC+16+r,2)}')
        g.i(f's_mov_b32 s{S_PRE}, 0')
        g.settle()
        g.i(f's_branch {fin}')
        g.label(end)
        g.forget()

    def attention(self):
        g = self.g
        S_U, S_S, S_HD, S_BLK, S_F1, S_NEED, S_C, S_LB = range(16, 24)
        VK, VF, VFA, VKW, VKR, VVR, VMX, VL, VT, VKK = 2, 3, 4, 5, 6, 7, 8, 9, 10, 15
        MASK, Q, K, V, SX, SM, KM, VM, REC, PB, O = 16, 32, 64, 96, 128, 144, 160, 192, 200, 216, 32
        g.i(f's_lshl_b32 s{S_U}, s{S_RANK}, 2')
        g.i(f's_add_u32 s{S_U}, s{S_U}, s{S_W}')
        g.i(f's_mov_b32 s{S_C}, {f2u(128 ** -0.5 * LOG2E):#x}')
        g.i(f's_lshl_b32 s{S_LB}, s{S_W}, 12')
        J, HF = VT, VT + 1
        g.i(f'v_and_b32 v{J}, 31, v{V_L}')
        g.i(f'v_lshrrev_b32 v{HF}, 5, v{V_L}')
        g.i(f'v_and_b32 v{VK}, 7, v{J}')
        g.i(f'v_bfe_u32 v{VT+2}, v{J}, 3, 1')
        g.i(f'v_lshl_add_u32 v{VK}, v{VT+2}, 4, v{VK}')
        g.i(f'v_bfe_u32 v{VT+2}, v{J}, 4, 1')
        g.i(f'v_lshl_add_u32 v{VK}, v{VT+2}, 3, v{VK}')
        g.i(f'v_lshlrev_b32 v{VK}, 4, v{VK}')
        g.i(f'v_lshl_add_u32 v{VK}, v{HF}, 9, v{VK}')
        g.i(f'v_lshlrev_b32 v{VT+2}, 3, v{HF}')
        g.i(f'v_sub_u32 v{VT+2}, v{J}, v{VT+2}')
        g.i(f'v_mov_b32 v{VT+3}, {f2u(-1e30):#x}')
        for r in range(16):
            g.i(f'v_cmp_le_i32 vcc, {16*(r>>3) + (r&7)}, v{VT+2}')
            g.i(f'v_cndmask_b32 v{MASK+r}, v{VT+3}, 0, vcc')
        g.i(f'v_and_b32 v{VT+2}, 15, v{V_L}')
        g.i(f'v_lshrrev_b32 v{VT+3}, 4, v{V_L}')
        g.i(f'v_lshlrev_b32 v{VKW}, 4, v{VT+2}')
        g.i(f'v_lshl_add_u32 v{VKW}, v{VT+3}, 2, v{VKW}')
        g.i(f'v_add_u32 v{VKW}, s{S_LB}, v{VKW}')
        g.i(f'v_and_b32 v{VT+2}, 12, v{V_L}')
        g.i(f'v_lshl_add_u32 v{VKK}, v{VT+2}, 4, v{VKW}')
        g.i(f'v_bfe_u32 v{VT+2}, v{V_L}, 2, 2')
        g.i(f'v_lshl_add_u32 v{VT+2}, v{HF}, 3, v{VT+2}')
        g.i(f'v_lshlrev_b32 v{VKR}, 4, v{VT+2}')
        g.i(f'v_and_b32 v{VT+2}, 1, v{V_L}')
        g.i(f'v_lshl_add_u32 v{VKR}, v{VT+2}, 3, v{VKR}')
        g.i(f'v_add_u32 v{VKR}, s{S_LB}, v{VKR}')
        g.i(f'v_lshlrev_b32 v{VVR}, 4, v{J}')
        g.i(f'v_lshl_add_u32 v{VVR}, v{HF}, 3, v{VVR}')
        g.i(f'v_add_u32 v{VVR}, s{S_LB}, v{VVR}')
        self.wait_ln(VT + 2)
        top, end = g.newlabel('at'), g.newlabel('ae')
        g.label(top)
        g.forget()
        g.i(f's_lshr_b32 s{S_S}, s{S_U}, 5')
        g.i(f's_and_b32 s{S_HD}, s{S_U}, 31')
        g.i(f's_lshl_b32 s{S_BLK}, s{S_U}, 13')
        VN = VT + 4
        g.i(f's_mul_hi_u32 s{S_NEED}, s{S_S}, {(1 << 32) // 3 + 1}')
        g.i(f's_mul_i32 s{T0}, s{S_NEED}, 3')
        g.i(f's_sub_u32 s{T0}, s{S_S}, s{T0}')
        g.i(f's_lshr_b32 s{T2}, s{S_S}, 1')
        g.i(f's_and_b32 s{T1}, s{S_S}, 1')
        g.i(f's_cmp_ge_u32 s{S_HD}, {2 * (Q2 - 32)}')
        g.i(f's_cselect_b32 s{T1}, s{T1}, s{T0}')
        g.i(f's_cselect_b32 s{T2}, s{T2}, s{S_NEED}')
        g.i(f'v_mov_b32 v{VN}, s{T2}')
        g.i(f'v_writelane_b32 v{VN}, s{S_NEED}, 0')
        g.i(f's_lshl_b32 s{T0}, s{T0}, 7')
        g.i(f's_add_u32 s{T0}, s{T0}, s{S_HD}')
        g.i(f's_lshl_b32 s{T0}, s{T0}, 7')
        g.i(f's_lshl_b32 s{T1}, s{T1}, 7')
        g.i(f's_lshr_b32 s{T2}, s{S_HD}, 1')
        g.i(f's_add_u32 s{T1}, s{T1}, s{T2}')
        g.i(f's_add_u32 s{T1}, s{T1}, 32')
        g.i(f's_lshl_b32 s{T1}, s{T1}, 7')
        g.i(f'v_mov_b32 v{VFA}, s{T1}')
        g.i(f'v_writelane_b32 v{VFA}, s{T0}, 0')
        g.i(f's_mov_b32 s{S_F1}, {OFF_FLAG + FL_P1}')

        def ld():
            g.i(f'buffer_load_dword v{VF}, v{VFA}, {WS}, s{S_F1} offen sc1')
            g.wait_vm()

        def tst():
            g.i(f'v_cmp_ge_u32 vcc, v{VN}, v{VF}')
            g.i(f's_cmp_eq_u64 vcc, 0')
        self.spin(ld, tst, 40)
        g.vm_q = []
        for base, dst, va, tg in ((OFF_QX, Q, V_L16, 'q'), (OFF_KX, K, VK, 'k'), (OFF_VX, V, V_L16, 'v')):
            for hb in range(2):
                g.i(f's_add_u32 s{T0}, s{S_BLK}, {base + 4096*hb}')
                for n in range(4):
                    g.i(f'buffer_load_dwordx4 {vr(dst + 16*hb + 4*n, 4)}, v{va}, {WS}, s{T0} offen offset:{1024*n} sc1', tag=tg)
        if 'mall' in self.opt:
            nm = g.newlabel('nm')
            AH = self.ahead
            g.i(f'v_readfirstlane_b32 s{T1}, v{VF}')
            g.i(f's_add_u32 s{T2}, s{S_NEED}, {AH // 3}')
            g.i(f's_cmp_ge_u32 s{T2}, s{T1}')
            g.i(f's_cbranch_scc1 {nm}')
            g.i(f'v_lshlrev_b32 v{VT+2}, 3, v{V_L16}')
            for base in (OFF_KX, OFF_VX):
                g.i(f's_add_u32 s{T0}, s{S_BLK}, {base + AH * 32 * 8192}')
                g.i(f'buffer_load_dword v{VT+3}, v{VT+2}, {WS}, s{T0} offen sc1')
            g.label(nm)
            g.vm_q = g.vm_q[:-2]
        g.wait_vm('k')
        for u in range(8):
            g.i(f'v_mfma_f32_32x32x16_bf16 {vr(SX,16)}, {vr(K+4*u,4)}, {vr(Q+4*u,4)}, {vr(SX if u else MASK,16)}')
        g.i(f'v_max3_f32 v{VMX}, v{SX}, v{SX+1}, v{SX+2}')
        for r in range(3, 15, 2):
            g.i(f'v_max3_f32 v{VMX}, v{VMX}, v{SX+r}, v{SX+r+1}')
        g.i(f'v_max_f32 v{VMX}, v{VMX}, v{SX+15}')
        g.i(f's_lshl_b32 s{T2}, s{S_HD}, 7')
        g.i(f's_add_u32 s{T2}, s{T2}, {OFF_FLAG + FL_KM}')
        g.i(f's_add_u32 s{S_NEED}, s{S_S}, 1')
        g.i(f's_lshl_b32 s{T0}, s{S_U}, 12')
        g.i(f's_add_u32 s{T0}, s{T0}, {OFF_KM}')
        direct, have = g.newlabel('ad'), g.newlabel('ah')

        def rec():
            for w in range(4):
                g.i(f'buffer_load_dwordx4 {vr(REC+4*w,4)}, v{V_L16}, {WS}, s{T0} offen offset:{1024*w} sc1')
            g.wait_vm()
        g.i(f's_cmp_ge_u32 s{S_S}, {SEG_DIRECT}')
        g.i(f's_cbranch_scc1 {direct}')
        self.wait_word(T2, f's{S_NEED}', VF, 8)
        rec()
        g.i(f's_branch {have}')
        g.label(direct)

        def rtst():
            g.i(f'v_max3_u32 v{VF}, v{REC}, v{REC+4}, v{REC+8}')
            g.i(f'v_max_u32 v{VF}, v{VF}, v{REC+12}')
            g.i(f'v_cmp_eq_u32 vcc, -1, v{VF}')
            g.i('s_cmp_eq_u64 vcc, 0')
        self.spin(rec, rtst, 1)
        g.label(have)
        self.at(6)()
        g.vm_q = []; g.lds_q = []
        for w in range(4):
            g.wait_vm(('r', w))
            g.i(f'ds_write_b32 v{VKK}, v{REC+4*w+1} offset:{512*w}')
            g.i(f'ds_write_b32 v{VKK}, v{REC+4*w+3} offset:{512*w + 64}')
            g.i(f'ds_write2st64_b32 v{VKW}, v{REC+4*w}, v{REC+4*w+2} offset0:{8+2*w} offset1:{8+2*w+1}')
        g.wait_lds()
        for u in range(8):
            g.i(f'ds_read_b64_tr_b16 {vr(KM+4*u,2)}, v{VKR} offset:{256*u}', tag=('km', u))
            g.i(f'ds_read_b64_tr_b16 {vr(KM+4*u+2,2)}, v{VKR} offset:{256*u + 64}', tag=('km', u))
            if u >= 4:
                g.wait_lds(('km', u - 4))
                g.i(f'v_mfma_f32_32x32x16_bf16 {vr(SM,16)}, {vr(KM+4*(u-4),4)}, {vr(Q+4*(u-4),4)}, {vr(SM,16) if u > 4 else 0}')
        for nb in range(4):
            g.i(f'ds_read_b64 {vr(VM+2*nb,2)}, v{VVR} offset:{2048 + 512*nb}', tag='vm')
        for u in range(4, 8):
            g.wait_lds(('km', u))
            g.i(f'v_mfma_f32_32x32x16_bf16 {vr(SM,16)}, {vr(KM+4*u,4)}, {vr(Q+4*u,4)}, {vr(SM,16)}')
        g.i(f'v_max3_f32 v{VMX}, v{VMX}, v{SM}, v{SM+1}')
        g.i(f'v_max3_f32 v{VMX}, v{VMX}, v{SM+2}, v{SM+3}')
        g.i(f'v_mov_b32 v{VT}, v{VMX}')
        g.i(f'v_permlane32_swap_b32 v{VMX}, v{VT}')
        g.i(f'v_max_f32 v{VMX}, v{VMX}, v{VT}')
        g.i(f'v_mul_f32 v{VMX}, s{S_C}, v{VMX}')
        vals = list(range(SX, SX + 20))
        for r in vals:
            g.i(f'v_fma_f32 v{r}, v{r}, s{S_C}, -v{VMX}')
        for r in vals:
            g.i(f'v_exp_f32 v{r}, v{r}')
        for k in range(10):
            g.i(f'v_cvt_pk_bf16_f32 v{PB+k}, v{SX+2*k}, v{SX+2*k+1}')
        g.wait_lds()
        sums = [f'v_add_f32 v{VL}, v{SX}, v{SX+1}'] + [f'v_add_f32 v{VL}, v{VL}, v{r}' for r in vals[2:]] + \
            [f'v_mov_b32 v{VT}, v{VL}', 's_nop 1', f'v_permlane32_swap_b32 v{VL}, v{VT}', f'v_add_f32 v{VL}, v{VL}, v{VT}',
             f'v_rcp_f32 v{VL}, v{VL}']
        for st in range(3):
            for nb in range(4):
                o = vr(O + 16 * nb, 16)
                g.i([f'v_mfma_f32_32x32x16_bf16 {o}, {vr(V+8*nb,4)}, {vr(PB,4)}, 0',
                     f'v_mfma_f32_32x32x16_bf16 {o}, {vr(V+8*nb+4,4)}, {vr(PB+4,4)}, {o}',
                     f'v_mfma_f32_32x32x8_bf16 {o}, {vr(VM+2*nb,2)}, {vr(PB+8,2)}, {o}'][st])
                for _ in range(4):
                    if sums:
                        g.i(sums.pop(0))
        assert not sums
        g.i(f's_add_u32 s{T0}, s{S_BLK}, {OFF_O}')
        g.i(f's_add_u32 s{T1}, s{T0}, 4096')
        for n in range(8):
            o, p = O + 8 * n, KM + 4 * n
            for r in range(8):
                g.i(f'v_mul_f32 v{o+r}, v{o+r}, v{VL}')
            for k in range(4):
                g.i(f'v_cvt_pk_bf16_f32 v{p+k}, v{o+2*k}, v{o+2*k+1}')
            g.i(f'v_permlane32_swap_b32 v{p}, v{p+2}')
            g.i(f'v_permlane32_swap_b32 v{p+1}, v{p+3}')
            g.i(f'buffer_store_dwordx4 {vr(p,4)}, v{V_L16}, {WS}, s{T0 if n < 4 else T1} offen offset:{1024*(n%4)} sc1')
        g.i(f's_and_b32 s{T0}, s{S_U}, 127')
        g.i(f's_lshl_b32 s{T0}, s{T0}, 7')
        g.i(f's_add_u32 s{T0}, s{T0}, {OFF_FLAG + FL_O}')
        g.i(f's_lshr_b32 s{T1}, s{S_U}, 7')
        g.i(f's_add_u32 s{T1}, s{T1}, 1')
        g.i(f'v_mov_b32 v{VF}, s{T1}')
        g.wait_vm()
        g.i('s_mov_b64 exec, 1')
        g.i(f'buffer_store_dword v{VF}, off, {WS}, s{T0} sc1')
        g.i('s_mov_b64 exec, -1')
        g.i(f's_add_u32 s{S_U}, s{S_U}, {4 * N_LIGHT}')
        g.i(f's_cmp_lt_u32 s{S_U}, 2048')
        g.settle()
        g.i(f's_cbranch_scc1 {top}')
```

```python
import math, struct
from asmgen import *
from layout import *

S_C2 = 2
S_WS = 4
S_W8 = 8
S_DBG = 12
S_W, S_H, S_STEP = 14, 15, 16
S_MCUR = 17
S_PST = 18
S_KX, S_VX, S_KM = 21, 22, 23
S_RED = 24
S_MS, S_M1 = 28, 30
S_RDY, S_PF = 32, 33
S_M3, S_ONE = 34, 36
S_MP, S_RNEED = 38, 39
S_C = 40
S_TRY = 41
S_T0, S_T1, S_T2, S_T3 = 42, 43, 44, 45
S_TAG, S_MRST = 46, 47
S_PTR = 48
S_FLG, S_XCC = 58, 59
S_ST = 60
S_SYN, S_SYO = 84, 85
S_MG = 86
S_PM = 72
S_NAN = 74
S_TRY2 = 76
V_L16, V_IDX, V_ID0, V_ID1, V_WL, V_SW, V_OW, V_RED, V_MST, V_KV = range(10)
V_G2 = 10
V_ACC = 14
V_X0 = 30
V_T0, V_T1 = 34, 35
V_X1 = 36
V_KXD = 40
V_AR = 48
V_STG = 60
V_PUB = 76
L_M = 0
L_QK = 9216
L_SM = 13312
L_EL = 15360
L_W = 16384
LDS_BYTES = 163840
SPIN_MAX = 300000
HS = 9216
WS = f's[{S_WS}:{S_WS+3}]'


def f2u(x):
    return struct.unpack('<I', struct.pack('<f', x))[0]


CHUNKS = [('q', t) for t in range(9)] + [('k', t) for t in range(9)] + [('v', t) for t in range(9)] + \
         [('o', u, p) for p in range(4) for u in range(2)] + [('l',)]
LDS_PAIRS = [('k', 1), ('k', 3), ('k', 5), ('k', 7), ('v', 2), ('o', 1, 0), ('o', 1, 1), ('o', 1, 2), ('o', 1, 3)]
STG_NEXT = {LDS_PAIRS[i]: LDS_PAIRS[i + 1] for i in (0, 1, 2, 3, 5, 6, 7)}
REG_PAIRS = [p for p in CHUNKS if p not in LDS_PAIRS]
SEQ = REG_PAIRS + LDS_PAIRS
LDS_BLOCK = {p: SEQ.index(p) % 9 for p in LDS_PAIRS}
REGBASE = {}
for _n, _p in enumerate(REG_PAIRS):
    for _x in range(2):
        _s = 2 * _n + _x
        REGBASE[(_p, _x)] = ('a', 8 * _s) if _s < 32 else ('v', 80 + 8 * (_s - 32))
assert len(REG_PAIRS) == 27 and len(SEQ) == 36


def wfrag(p, x, off=0, n=8):
    k, b = REGBASE[(p, x)]
    return (ar if k == 'a' else vr)(b + off, n)


class Chain:
    def __init__(self, g, diag=0, standalone=True, opt=()):
        self.g = g
        self.diag = diag
        self.standalone = standalone
        self.opt = set(opt)
        self.nst = 0
        self.names = []
        self.staged = [None] * 4
        self.ring = {}
        self.mp, self.nb, self.io, self.bp = 13, 5, 9, 0
        self.dr, self.dm, self.dq = [None, None, None], [0, 0, 0, 0], None
        self.sync = None
        self.wake = 0
        self.only = None
        self.gon = -1
        self.pffl = self.pubfl = 'sc1'
        self.kvfl, self.wfl = 'sc1 nt', ''
        self.pre, self.dq2, self.late = 0, 0, 0
        self.after_wait = lambda: None
        self.at_final = lambda: None

    def stamp(self, name='', lvl=0):
        if self.only is not None:
            if name in self.only:
                k = self.only.index(name)
                self.g.i(f's_memtime s[{S_ST + 2*k}:{S_ST + 2*k + 1}]')
            return
        if not self.diag or (lvl and lvl != self.diag):
            return
        op = 's_memrealtime' if self.diag == 3 else 's_memtime'
        self.g.i(f'{op} s[{S_ST + 2*self.nst}:{S_ST + 2*self.nst + 1}]')
        self.names.append(name)
        self.nst += 1
        assert self.nst <= 6

    def dump_stamps(self):
        if not self.diag:
            return
        g = self.g
        g.wait_lds()
        for k in range(self.nst):
            g.i(f'v_writelane_b32 v{V_T0}, s{S_ST + 2*k}, {k}')
        g.i(f'v_writelane_b32 v{V_T0}, s100, 29')
        g.i(f'v_writelane_b32 v{V_T0}, s98, 30')
        g.i(f'v_writelane_b32 v{V_T0}, s99, 31')
        g.i(f's_lshl_b32 s{S_T0}, s{S_STEP}, 5')
        g.i(f's_add_u32 s{S_T0}, s{S_T0}, s{S_H}')
        g.i(f's_lshl_b32 s{S_T0}, s{S_T0}, 2')
        g.i(f's_add_u32 s{S_T0}, s{S_T0}, s{S_W}')
        g.i(f's_lshl_b32 s{S_T0}, s{S_T0}, 7')
        g.i(f's_add_u32 s{S_T0}, s{S_T0}, {OFF_DIAG - 32*4*128}')
        g.i(f'v_lshrrev_b32 v{V_T1}, 2, v{V_L16}')
        g.i(f's_mov_b64 exec, 0xffffffff')
        g.i(f'buffer_store_dword v{V_T0}, v{V_T1}, {WS}, s{S_T0} offen')
        g.i(f's_mov_b64 exec, -1')

    def set_srd(self, ptr, nbytes):
        g = self.g
        g.i(f's_mov_b32 s{S_W8}, s{ptr}')
        g.i(f's_mov_b32 s{S_W8+1}, s{ptr+1}')
        g.i(f's_mov_b32 s{S_W8+2}, {nbytes}')
        g.i(f's_mov_b32 s{S_W8+3}, 0x20000')

    def prologue(self):
        g = self.g
        L, I_, G_, A, B, C, D, E = range(14, 22)
        LA, LB, LO, LL, TR0, TR1, TQ0, TQ1, TL0, TL1, D0, TMP = range(22, 34)
        TO = [V_X1, V_X1 + 2]
        g.i(f'v_mov_b32 v{L}, v0')
        g.i(f'v_and_b32 v{I_}, 15, v{L}')
        g.i(f'v_lshrrev_b32 v{G_}, 4, v{L}')
        g.i(f'v_lshrrev_b32 v{A}, 1, v{G_}')
        g.i(f'v_and_b32 v{B}, 1, v{G_}')
        g.i(f'v_lshlrev_b32 v{C}, 2, v{G_}')
        g.i(f'v_xor_b32 v{C}, v{C}, v{I_}')
        g.i(f'v_lshlrev_b32 v{C}, 4, v{C}')
        g.i(f'v_lshlrev_b32 v{LA}, 1, v{A}')
        g.i(f'v_lshl_add_u32 v{LA}, v{B}, 4, v{LA}')
        g.i(f'v_lshl_add_u32 v{LA}, v{LA}, 13, v{C}')
        g.i(f'v_lshl_add_u32 v{D}, v{A}, 3, v{B}')
        g.i(f'v_lshl_add_u32 v{LB}, v{D}, 13, v{C}')
        g.i(f'v_mul_u32_u24 v{LO}, 1152, v{D}')
        g.i(f'v_add_u32 v{LO}, v{LO}, v{C}')
        g.i(f's_lshl_b32 s{S_T2}, s{S_H}, 8')
        g.i(f's_lshl_b32 s{S_T0}, s{S_W}, 15')
        g.i(f's_add_u32 s{S_MG}, s{S_T2}, s{S_T0}')
        g.i(f's_lshl_b32 s{S_T0}, s{S_W}, 17')
        g.i(f's_add_u32 s{S_T2}, s{S_T2}, s{S_T0}')
        g.i(f's_lshl_b32 s{S_T3}, s{S_H}, 3')
        g.i(f's_add_u32 s{S_T3}, s{S_T3}, s{S_W}')
        g.i(f's_mul_i32 s{S_T3}, s{S_T3}, {16*1152}')
        g.i(f's_mul_i32 s{S_PF}, s{S_W}, 36864')
        g.i(f's_add_u32 s{S_PF}, s{S_PF}, {L_W}')
        ptr = {'q': S_PTR + 2, 'k': S_PTR + 4, 'v': S_PTR + 6, 'o': S_PTR + 8, 'l': S_PTR + 8}
        cur = [None]

        def issue(n):
            p = SEQ[n]
            if cur[0] != ptr[p[0]]:
                self.set_srd(ptr[p[0]], 4718592)
                cur[0] = ptr[p[0]]
            for q in range(4):
                hh, x1 = q >> 1, q & 1
                if p[0] == 'o':
                    uni, base, va = (64 * p[1] + 2 * q) * 1152 + 256 * p[2], S_T3, LO
                elif p[0] == 'l':
                    uni, base, va = (64 * hh + 4 * x1) * 1152 + 1024, S_T3, LL
                elif p[1] == 4:
                    uni, base, va = (512 + 2 * q) * 8192, S_T2, LB
                else:
                    qd, w = (0, p[1]) if p[1] < 4 else (1, p[1] - 5)
                    uni, base, va = (256 * qd + 32 * w + 128 * x1 + hh) * 8192, S_MG, LA
                g.i(f's_add_u32 m0, s{S_PF}, {(n % 9) * 4096 + q * 1024}')
                g.i(f's_add_u32 s{S_T0}, s{base}, {uni}')
                g.i(f'buffer_load_dwordx4 v{va}, s[{S_W8}:{S_W8+3}], s{S_T0} offen {self.wfl} lds', tag=('w', n))
        if 'nocode' not in self.opt:
            g.i('s_getpc_b64 s[70:71]')
            g.i(f'v_lshlrev_b32 v{E}, 7, v{L}')
            g.i(f's_lshl_b32 s{S_T0}, s{S_W}, 13')
            g.i(f'v_add_u32 v{E}, s{S_T0}, v{E}')
            g.i(f'global_load_dword v{V_AR+4}, v{E}, s[70:71]')
        g.vm_q = []
        for n in range(8):
            issue(n)
        g.i(f'v_lshlrev_b32 v{V_L16}, 4, v{L}')
        g.i(f'v_bfe_u32 v{A}, v{L}, 4, 1')
        g.i(f'v_bfe_u32 v{B}, v{L}, 3, 1')
        g.i(f'v_lshl_add_u32 v{A}, v{A}, 3, v{B}')
        g.i(f'v_lshrrev_b32 v{B}, 5, v{L}')
        g.i(f'v_lshl_add_u32 v{A}, v{B}, 1, v{A}')
        g.i(f'v_mul_u32_u24 v{LL}, 1152, v{A}')
        g.i(f'v_and_b32 v{B}, 7, v{L}')
        g.i(f'v_lshl_add_u32 v{LL}, v{B}, 4, v{LL}')
        g.i(f'v_lshrrev_b32 v{A}, 1, v{G_}')
        g.i(f'v_mul_u32_u24 v{E}, 36864, v{A}')
        g.i(f'v_add_u32 v{E}, {L_W}, v{E}')
        g.i(f'v_and_b32 v{A}, 1, v{G_}')
        g.i(f'v_lshrrev_b32 v{B}, 2, v{I_}')
        g.i(f'v_lshl_add_u32 v{A}, v{A}, 3, v{B}')
        g.i(f'v_and_b32 v{C}, 3, v{I_}')
        g.i(f'v_lshl_add_u32 v{TL0}, v{A}, 7, v{E}')
        g.i(f'v_lshl_add_u32 v{TL0}, v{C}, 3, v{TL0}')
        g.i(f's_lshl_b32 s{S_T0}, s{S_W}, 5')
        g.i(f'v_add_u32 v{TL0}, s{S_T0}, v{TL0}')
        g.i(f'v_lshl_add_u32 v{TR0}, v{A}, 8, v{E}')
        g.i(f'v_xor_b32 v{D}, s{S_W}, v{B}')
        g.i(f'v_lshl_add_u32 v{TR0}, v{D}, 6, v{TR0}')
        g.i(f'v_lshl_add_u32 v{TQ0}, v{C}, 4, v{TR0}')
        g.i(f'v_lshl_add_u32 v{TR0}, v{C}, 3, v{TR0}')
        g.i(f'v_and_b32 v{A}, 1, v{G_}')
        g.i(f'v_lshl_add_u32 v{TMP}, v{A}, 11, v{E}')
        g.i(f'v_lshl_add_u32 v{TMP}, v{C}, 3, v{TMP}')
        g.i(f'v_lshrrev_b32 v{A}, 1, v{B}')
        g.i(f'v_lshl_add_u32 v{TMP}, v{A}, 5, v{TMP}')
        for x in range(2):
            g.i(f'v_and_b32 v{A}, 1, v{B}')
            g.i(f'v_or_b32 v{A}, {2*x}, v{A}')
            g.i(f'v_lshl_add_u32 v{TO[x]}, v{A}, 8, v{TMP}')
            g.i(f'v_xor_b32 v{A}, s{S_W}, v{A}')
            g.i(f'v_lshl_add_u32 v{TO[x]}, v{A}, 6, v{TO[x]}')
        for r in (TR0, TQ0, TL0, TO[0], TO[1]):
            g.i(f'v_add_u32 v{r+1}, {2*36864}, v{r}')
        g.i(f'v_add_u32 v{V_WL}, s{S_PF}, v{V_L16}')
        g.i(f'v_bfe_u32 v{A}, v{I_}, 1, 1')
        g.i(f'v_mul_u32_u24 v{D}, 0xaaaa, v{A}')
        g.i(f'v_add_u32 v{V_IDX}, 0x4444, v{D}')
        g.i(f'v_and_b32 v{C}, 1, v{I_}')
        g.i(f'v_lshlrev_b32 v{D}, 4, v{C}')
        g.i(f'v_mov_b32 v{E}, 0x3f80')
        g.i(f'v_lshlrev_b32 v{D}, v{D}, v{E}')
        g.i(f'v_cmp_eq_u32 vcc, v{B}, v{G_}')
        g.i(f'v_cndmask_b32 v{D}, 0, v{D}, vcc')
        g.i(f'v_cmp_eq_u32 vcc, 0, v{A}')
        g.i(f'v_cndmask_b32 v{V_ID0}, 0, v{D}, vcc')
        g.i(f'v_cndmask_b32 v{V_ID1}, v{D}, 0, vcc')
        g.i(f'v_lshl_add_u32 v{D}, v{B}, 1, v{C}')
        g.i(f'v_lshlrev_b32 v{V_SW}, 8, v{G_}')
        g.i(f'v_lshl_add_u32 v{V_SW}, v{D}, 4, v{V_SW}')
        g.i(f'v_lshl_add_u32 v{V_SW}, v{A}, 7, v{V_SW}')
        g.i(f'v_lshrrev_b32 v{D}, 1, v{I_}')
        g.i(f'v_lshlrev_b32 v{V_OW}, 6, v{D}')
        g.i(f'v_lshl_add_u32 v{V_OW}, v{C}, 4, v{V_OW}')
        g.i(f'v_lshrrev_b32 v{D}, 1, v{G_}')
        g.i(f'v_lshl_add_u32 v{V_OW}, v{D}, 5, v{V_OW}')
        g.i(f'v_and_b32 v{D}, 1, v{G_}')
        g.i(f'v_lshl_add_u32 v{V_OW}, v{D}, 3, v{V_OW}')
        g.i(f'v_lshlrev_b32 v{V_KV}, 9, v{G_}')
        g.i(f'v_lshl_add_u32 v{V_KV}, v{I_}, 4, v{V_KV}')
        self.scalar_consts()
        lq, lx, l3 = g.newlabel('rq'), g.newlabel('rx'), g.newlabel('r3')
        g.i(f's_lshr_b32 s{S_T0}, s{S_H}, 3')
        g.i(f's_bfe_u32 s{S_T1}, s{S_H}, 0x20001')
        g.i(f'v_mul_u32_u24 v{D0}, 576, v{D}')
        g.i(f's_mul_i32 s{S_TRY}, s{S_T1}, 1152')
        g.i(f'v_add_u32 v{D0}, s{S_TRY}, v{D0}')
        g.i(f's_cmp_lt_u32 s{S_W}, 2')
        g.i(f's_cbranch_scc1 {lq}')
        g.i(f's_cmp_eq_u32 s{S_W}, 3')
        g.i(f's_cbranch_scc1 {l3}')
        g.i(f'v_lshrrev_b32 v{B}, 1, v{L}')
        g.i(f'v_mul_u32_u24 v{V_RED}, {HS}, v{B}')
        g.i(f'v_lshl_add_u32 v{V_RED}, v{C}, 4, v{V_RED}')
        g.i(f's_lshl_b32 s{S_TRY}, s{S_H}, 5')
        g.i(f'v_add_u32 v{V_RED}, s{S_TRY}, v{V_RED}')
        g.i(f'v_add_u32 v{V_RED}, 8192, v{V_RED}')
        g.i(f'v_lshlrev_b32 v{V_MST}, 4, v{D}')
        g.i(f'v_lshl_add_u32 v{V_MST}, v{C}, 3, v{V_MST}')
        g.i(f'v_add_u32 v{V_MST}, s{S_TRY}, v{V_MST}')
        g.i(f'v_add_u32 v{V_MST}, 4096, v{V_MST}')
        g.i(f's_lshl_b32 s{S_T0}, s{S_T0}, 4')
        g.i(f's_and_b32 s{S_T1}, s{S_H}, 1')
        g.i(f's_lshl_b32 s{S_T1}, s{S_T1}, 3')
        g.i(f's_add_u32 s{S_T0}, s{S_T0}, s{S_T1}')
        g.i(f's_add_u32 s{S_T0}, s{S_T0}, 512')
        g.i(f'v_lshl_add_u32 v{D0}, v{C}, 2, v{D0}')
        g.i(f'v_add_lshl_u32 v{D0}, v{D0}, s{S_T0}, 1')
        g.i(f's_mov_b32 s{S_MS}, 0x00030003')
        g.i(f's_mov_b32 s{S_T0}, 2')
        g.i(f's_mov_b32 s{S_T1}, 4')
        g.i(f's_branch {lx}')
        g.label(l3)
        g.i(f'v_lshlrev_b32 v{V_RED}, 7, v{L}')
        g.i(f'v_mov_b32 v{V_MST}, 0')
        g.i(f's_branch {lx}')
        g.label(lq)
        g.i(f'v_lshrrev_b32 v{B}, 3, v{L}')
        g.i(f'v_mul_u32_u24 v{V_RED}, {HS}, v{B}')
        g.i(f'v_and_b32 v{B}, 7, v{L}')
        g.i(f'v_lshl_add_u32 v{V_RED}, v{B}, 4, v{V_RED}')
        g.i(f's_lshl_b32 s{S_TRY}, s{S_W}, 5')
        g.i(f's_add_u32 s{S_TRY}, s{S_TRY}, s{S_H}')
        g.i(f's_lshl_b32 s{S_TRY}, s{S_TRY}, 7')
        g.i(f'v_add_u32 v{V_RED}, s{S_TRY}, v{V_RED}')
        g.i(f'v_bfe_u32 v{E}, v{L}, 2, 1')
        g.i(f'v_lshlrev_b32 v{V_MST}, 8, v{E}')
        g.i(f'v_lshl_add_u32 v{V_MST}, v{A}, 5, v{V_MST}')
        g.i(f'v_lshl_add_u32 v{V_MST}, v{D}, 4, v{V_MST}')
        g.i(f'v_lshl_add_u32 v{V_MST}, v{C}, 3, v{V_MST}')
        g.i(f's_mul_i32 s{S_TRY}, s{S_W}, 5')
        g.i(f's_add_u32 s{S_TRY}, s{S_TRY}, s{S_T0}')
        g.i(f's_lshl_b32 s{S_TRY}, s{S_TRY}, 10')
        g.i(f's_lshl_b32 s{S_T1}, s{S_T1}, 6')
        g.i(f's_add_u32 s{S_TRY}, s{S_TRY}, s{S_T1}')
        g.i(f's_and_b32 s{S_T1}, s{S_H}, 1')
        g.i(f's_lshl_b32 s{S_RNEED}, s{S_T1}, 9')
        g.i(f's_add_u32 s{S_TRY}, s{S_TRY}, s{S_RNEED}')
        g.i(f'v_add_u32 v{V_MST}, s{S_TRY}, v{V_MST}')
        g.i(f's_lshl_b32 s{S_T0}, s{S_T0}, 5')
        g.i(f's_lshl_b32 s{S_T1}, s{S_T1}, 3')
        g.i(f's_add_u32 s{S_T0}, s{S_T0}, s{S_T1}')
        g.i(f's_lshl_b32 s{S_T1}, s{S_W}, 8')
        g.i(f's_add_u32 s{S_T0}, s{S_T0}, s{S_T1}')
        g.i(f'v_add_u32 v{D0}, v{D0}, v{B}')
        g.i(f'v_add_lshl_u32 v{D0}, v{D0}, s{S_T0}, 1')
        g.i(f's_mov_b32 s{S_T0}, 32')
        g.i(f's_mov_b32 s{S_T1}, 256')
        g.label(lx)
        P0 = 68
        g.i(f's_mov_b32 s{P0}, s{S_PTR}')
        g.i(f's_mov_b32 s{P0+1}, s{S_PTR+1}')
        g.i(f's_mov_b32 s{P0+2}, 9216')
        g.i(f's_mov_b32 s{P0+3}, 0x20000')
        for k in range(4):
            g.i(f'v_mov_b32 v{V_KXD+k}, 0')
        g.i(f'v_mov_b64 {vr(V_PUB,2)}, -1')
        g.i(f'v_mov_b64 {vr(V_PUB+2,2)}, 0')
        g.i(f's_add_u32 s{S_TRY}, s{S_T0}, s{S_T1}')
        sk = g.newlabel('ix')
        g.i(f's_cmp_eq_u32 s{S_W}, 3')
        g.i(f's_cbranch_scc1 {sk}')
        g.i(f'buffer_load_ushort v{V_AR}, v{D0}, s[{P0}:{P0+3}], 0 offen')
        g.i(f'buffer_load_ushort v{V_AR+1}, v{D0}, s[{P0}:{P0+3}], s{S_T0} offen')
        g.i(f'buffer_load_ushort v{V_AR+2}, v{D0}, s[{P0}:{P0+3}], s{S_T1} offen')
        g.i(f'buffer_load_ushort v{V_AR+3}, v{D0}, s[{P0}:{P0+3}], s{S_TRY} offen')
        g.i(f's_mov_b64 exec, s[{S_MS}:{S_MS+1}]')
        for k in range(1, 4):
            g.i(f's_mov_b32 s{S_T0}, {OFF_MB + 16384 * k}')
            g.i(f'buffer_store_dwordx2 {vr(V_PUB,2)}, v{V_MST}, {WS}, s{S_T0} offen sc1')
        g.i('s_mov_b64 exec, -1')
        g.label(sk)
        for j in range(3):
            if j == 2:
                g.i(f's_mov_b64 exec, 0xffff')
            g.i(f'buffer_store_dwordx4 {vr(V_KXD,4)}, v{V_L16}, {WS}, s{S_PST+j} offen sc1')
            g.i(f's_xor_b32 s{S_T0}, s{S_PST+j}, 0x100000')
            g.i(f'buffer_store_dwordx4 {vr(V_KXD,4)}, v{V_L16}, {WS}, s{S_T0} offen sc1')
        g.i('s_mov_b64 exec, 1')
        g.i(f'buffer_store_dword v{V_KXD}, off, {WS}, s{S_SYO} sc1')
        g.i('s_mov_b64 exec, -1')
        g.vm_q = [t for t in g.vm_q if t]
        for n, p in enumerate(SEQ):
            g.wait_vm(('w', n))
            g.i('s_barrier')
            if n + 8 < len(SEQ):
                issue(n + 8)
            if n == 9:
                s2 = g.newlabel('m0')
                g.i(f's_cmp_eq_u32 s{S_W}, 3')
                g.i(f's_cbranch_scc1 {s2}')
                g.i(f'v_lshl_or_b32 v{V_T0}, v{V_AR+1}, 16, v{V_AR}')
                g.i(f'v_lshl_or_b32 v{V_T1}, v{V_AR+3}, 16, v{V_AR+2}')
                g.i(f'v_min_u32 v{V_T0}, -2, v{V_T0}')
                g.i(f's_mov_b64 exec, s[{S_MS}:{S_MS+1}]')
                g.i(f'buffer_store_dwordx2 {vr(V_T0,2)}, v{V_MST}, {WS}, s{S_MCUR} offen sc1')
                g.i('s_mov_b64 exec, -1')
                g.label(s2)
                g.vm_q = [t for t in g.vm_q if t]
            if n == 19:
                s2 = g.newlabel('si')
                g.i(f's_cmp_lg_u32 s{S_W}, 0')
                g.i(f's_cbranch_scc1 {s2}')
                if self.standalone:
                    g.i(f's_mov_b32 s{S_T0}, 1')
                else:
                    g.i(f's_cmp_eq_u32 s{S_XCC}, {CHAIN_XCC}')
                    g.i(f's_cselect_b32 s{S_T0}, 1, 0x10001')
                g.i('s_mov_b64 exec, 1')
                g.i(f'v_mov_b32 v{V_T0}, {DBG_INIT}')
                g.i(f'v_mov_b32 v{V_T1}, s{S_T0}')
                g.i(f'global_atomic_add v{V_T0}, v{V_T1}, s[{S_DBG}:{S_DBG+1}]')
                g.i('s_mov_b64 exec, -1')
                g.label(s2)
                g.vm_q = [t for t in g.vm_q if t]
            if n == self.gon:
                s2 = g.newlabel('go')
                g.i(f's_or_b32 s{S_T0}, s{S_W}, s{S_H}')
                g.i(f's_cbranch_scc1 {s2}')
                g.i('s_mov_b64 exec, 1')
                g.i(f'v_mov_b32 v{V_T0}, {DBG_GO}')
                g.i(f'global_store_dword v{V_T0}, v{V_IDX}, s[{S_DBG}:{S_DBG+1}] sc1')
                g.i('s_mov_b64 exec, -1')
                g.label(s2)
                g.vm_q = [t for t in g.vm_q if t]
            blk = (n % 9) * 4096
            inlds = p in LDS_PAIRS
            for x in range(2):
                for q in range(4):
                    dst = vr(V_STG + 8 * x + 2 * q, 2) if inlds else wfrag(p, x, 2 * q, 2)
                    if p[0] in 'qk':
                        va, off = TQ0, 1024 * (q & 1) + 8 * x
                    elif p[0] == 'l':
                        va, off = TL0, 512 * (q & 1) + 2048 * x
                    elif p[0] == 'o':
                        va, off = TO[x], 1024 * (q & 1)
                    else:
                        va, off = TR0, 1024 * (q & 1) + 32 * x
                    g.i(f'ds_read_b64_tr_b16 {dst}, v{va + (q >> 1)} offset:{blk + off}')
            g.wait_lds()
            if inlds:
                g.i('s_barrier')
                for y in range(4):
                    g.i(f'ds_write_b128 v{V_WL}, {vr(V_STG + 4 * y, 4)} offset:{blk + y * 1024}')
                g.wait_lds()

    def scalar_consts(self):
        g = self.g
        g.i(f's_mov_b32 s{S_STEP}, 0')
        g.i(f's_mov_b32 s{S_MCUR}, {OFF_MB}')
        g.i(f's_mov_b32 s{S_MRST}, {OFF_MB + 3 * 16384}')
        g.i(f's_mov_b32 s{S_TAG}, 1')
        g.i(f's_mov_b32 s{S_SYN}, {OFF_SYNC}')
        g.i(f's_lshl_b32 s{S_SYO}, s{S_H}, 4')
        g.i(f's_add_u32 s{S_SYO}, s{S_SYO}, {OFF_SYNC}')
        g.i(f's_lshl_b32 s{S_FLG}, s{S_H}, 7')
        g.i(f's_add_u32 s{S_RDY}, s{S_FLG}, {OFF_FLAG + FL_P1}')
        g.i(f's_add_u32 s{S_FLG}, s{S_FLG}, {OFF_FLAG + FL_KM}')
        g.i(f's_mul_i32 s{S_T0}, s{S_H}, {HS}')
        g.i(f's_lshl_b32 s{S_T1}, s{S_W}, 8')
        g.i(f's_add_u32 s{S_PST+2}, s{S_T0}, s{S_T1}')
        g.i(f's_add_u32 s{S_PST+2}, s{S_PST+2}, {OFF_PART + 8192}')
        g.i(f's_lshl_b32 s{S_T1}, s{S_W}, 10')
        g.i(f's_add_u32 s{S_T0}, s{S_T0}, s{S_T1}')
        g.i(f's_add_u32 s{S_PST}, s{S_T0}, {OFF_PART}')
        g.i(f's_add_u32 s{S_PST+1}, s{S_T0}, {OFF_PART + 4096}')
        for n in range(4):
            g.i(f's_mov_b32 s{S_RED + n}, {OFF_PART + n * 8 * HS}')
        g.i(f's_mov_b32 s{S_MS}, 0x00ff00ff')
        g.i(f's_mov_b32 s{S_MS+1}, 0')
        g.i(f's_mov_b32 s{S_M1}, 0x11111111')
        g.i(f's_mov_b32 s{S_M1+1}, 0x11111111')
        g.i(f's_lshl_b32 s{S_T0}, s{S_H}, 12')
        g.i(f's_add_u32 s{S_T0}, s{S_T0}, s{S_T1}')
        g.i(f's_add_u32 s{S_KM}, s{S_T0}, {OFF_KM - 32 * 4096}')
        g.i(f's_lshl_b32 s{S_T0}, s{S_T0}, 1')
        g.i(f's_add_u32 s{S_KX}, s{S_T0}, {OFF_KX}')
        g.i(f's_add_u32 s{S_VX}, s{S_T0}, {OFF_VX}')
        g.i(f's_mov_b32 s{S_M3}, 0x33333333')
        g.i(f's_mov_b32 s{S_M3+1}, 0x33333333')
        g.i(f's_mov_b32 s{S_ONE}, 0x3f803f80')
        g.i(f's_mov_b32 s{S_ONE+1}, 0x3f803f80')
        g.i(f's_mov_b32 s{S_C}, {f2u(128 ** -0.5 * math.log2(math.e)):#x}')
        g.i(f's_mov_b32 s{S_C2}, s{S_C}')
        g.i(f's_mov_b32 s{S_C2+1}, s{S_C}')

    def wait_word(self, off, val, bail, mask=None):
        g = self.g
        lp, ok = g.newlabel('ww'), g.newlabel('ww')
        g.i(f's_mov_b32 s{S_TRY}, 0')
        g.i(f'v_mov_b32 v{V_T0}, {off}')
        g.label(lp)
        g.i(f'global_load_dword v{V_T1}, v{V_T0}, s[{S_DBG}:{S_DBG+1}] sc1')
        g.wait_vm()
        g.i(f'v_readfirstlane_b32 s{S_T1}, v{V_T1}')
        g.i(f's_and_b32 s{S_T0}, s{S_T1}, {mask if mask else -1}')
        g.i(f's_cmp_ge_u32 s{S_T0}, {val}')
        g.i(f's_cbranch_scc1 {ok}')
        g.i('s_sleep 2')
        g.i(f's_add_u32 s{S_TRY}, s{S_TRY}, 1')
        g.i(f's_cmp_lt_u32 s{S_TRY}, {SPIN_MAX}')
        g.i(f's_cbranch_scc1 {lp}')
        g.i(f's_branch {bail}')
        g.label(ok)

    def spin_ready(self, soff, sneed, bail):
        g = self.g
        lp, ok = g.newlabel('rd'), g.newlabel('rd')
        g.i(f's_mov_b32 s{S_TRY}, 0')
        g.label(lp)
        g.i(f'buffer_load_dword v{V_MST}, off, {WS}, s{soff} sc1')
        g.wait_vm()
        g.i(f'v_readfirstlane_b32 s{S_T0}, v{V_MST}')
        g.i(f's_cmp_ge_u32 s{S_T0}, {sneed}')
        g.i(f's_cbranch_scc1 {ok}')
        g.i('s_sleep 4')
        g.i(f's_add_u32 s{S_TRY}, s{S_TRY}, 1')
        g.i(f's_cmp_lt_u32 s{S_TRY}, {SPIN_MAX}')
        g.i(f's_cbranch_scc1 {lp}')
        g.i(f's_branch {bail}')
        g.label(ok)

    def start(self, bail, done):
        g = self.g
        self.wait_word(DBG_INIT, 32, bail, 0xffff)
        g.i(f's_lshr_b32 s{S_XCC}, s{S_T1}, 16')
        g.i(f's_mov_b32 s{S_RNEED}, 2')
        g.i(f's_mov_b32 s{S_PF}, 0')
        if not self.standalone:
            sk = g.newlabel('st')
            g.i(f's_cmp_lg_u32 s{S_W}, 3')
            g.i(f's_cbranch_scc1 {sk}')
            self.wait_word(DBG_LNOK, 1, bail)
            lp, ok = g.newlabel('rd'), g.newlabel('rd')
            g.i(f'v_min_u32 v{V_T0}, 32, v{V_L16}')
            g.i(f'v_lshlrev_b32 v{V_T0}, 10, v{V_T0}')
            g.i(f's_mov_b32 s{S_TRY}, 0')
            g.label(lp)
            g.i(f'buffer_load_dword v{V_T1}, v{V_T0}, {WS}, s{S_RDY} offen sc1')
            g.wait_vm()
            g.i(f'v_cmp_eq_u32 vcc, 0, v{V_T1}')
            g.i(f's_cbranch_vccz {ok}')
            g.i('s_sleep 4')
            g.i(f's_add_u32 s{S_TRY}, s{S_TRY}, 1')
            g.i(f's_cmp_lt_u32 s{S_TRY}, {SPIN_MAX}')
            g.i(f's_cbranch_scc1 {lp}')
            g.i(f's_branch {bail}')
            g.label(ok)
            g.label(sk)
        self.after_wait()
        if self.standalone:
            self.loops(bail, done, False)
            return
        slow = g.newlabel('slow')
        g.i(f's_cmp_lg_u32 s{S_XCC}, 0')
        g.i(f's_cbranch_scc1 {slow}')
        self.loops(bail, done, False)
        g.label(slow)
        self.loops(bail, done, True)

    def loops(self, bail, done, slow):
        g = self.g
        lab = [g.newlabel('role') for _ in range(4)]
        for w in range(1, 4):
            g.i(f's_cmp_eq_u32 s{S_W}, {w}')
            g.i(f's_cbranch_scc1 {lab[w]}')
        for w in range(4):
            g.label(lab[w])
            self.loop(bail, done, w, slow)

    def stage_list(self, p):
        def mk(y):
            def f():
                self.g.i(f'ds_read_b128 {vr(V_STG + 4 * y, 4)}, v{V_WL} offset:{LDS_BLOCK[p] * 4096 + y * 1024}',
                         tag=('stg', p, y >> 1))
                self.staged[y] = p
            f.stg = True
            return f
        return [mk(y) for y in range(4)]

    @staticmethod
    def areg(t, ph):
        return [V_AR, V_AR + 4, V_AR + 8, V_G2][(9 * ph + t) % 4]

    def aread(self, t, ph):
        self.ring[self.areg(t, ph)] = t
        self.g.i(f'ds_read_b128 {vr(self.areg(t, ph), 4)}, v{V_L16} offset:{L_M + t * 1024}', tag=('a', ph, t))

    def flag_store(self, final=False):
        g = self.g
        if final:
            g.i(f'v_mov_b32 v{V_T0}, {NSEG}')
        else:
            g.i(f's_sub_u32 s{S_T0}, s{S_STEP}, 1')
            g.i(f's_max_i32 s{S_T0}, s{S_T0}, 0')
            g.i(f'v_mov_b32 v{V_T0}, s{S_T0}')
        g.i('s_mov_b64 exec, 1')
        g.i(f'buffer_store_dword v{V_T0}, off, {WS}, s{S_FLG} sc1')
        g.i('s_mov_b64 exec, -1')

    def slow_io(self):
        g = self.g
        L = []
        if 'nopf' not in self.opt:
            def pf(base):
                def f():
                    g.i(f's_add_u32 s{S_T0}, s{base}, {2*32*8192 - 3*2048}')
                    g.i(f'buffer_load_dword v{V_MST}, v{V_RED}, {WS}, s{S_T0} offen {self.pffl}')
                return f
            L += [pf(S_KX), pf(S_VX)]
        if not self.standalone:
            L.append(f'buffer_load_dword v{V_MST}, off, {WS}, s{S_RDY} sc1')
        if 'plainpub' not in self.opt:
            L.append(self.flag_store)
        if 'pfwait' in self.opt:
            k = self.pfk
            L[k:k] = ['s_waitcnt vmcnt(0)', lambda: self.stamp('pf1', 9)]
            L[0:0] = [lambda: self.stamp('pf0', 9)]
        return L

    def advance(self):
        g = self.g
        for j in range(3):
            g.i(f's_xor_b32 s{S_PST+j}, s{S_PST+j}, 0x100000')
        g.i(f's_add_u32 s{S_MCUR}, s{S_MCUR}, 0x4000')
        g.i(f's_and_b32 s{S_MCUR}, s{S_MCUR}, 0xfffeffff')
        if 'fixkv' not in self.opt:
            g.i(f's_add_u32 s{S_KX}, s{S_KX}, {32*8192}')
            g.i(f's_add_u32 s{S_VX}, s{S_VX}, {32*8192}')
        if 'plainpub' not in self.opt:
            g.i(f's_add_u32 s{S_KM}, s{S_KM}, {32*4096}')

    def advance2(self, role):
        g = self.g
        if role < 3:
            for n in range(4 if role < 2 else 1):
                g.i(f's_xor_b32 s{S_RED+n}, s{S_RED+n}, 0x100000')
            g.i(f's_add_u32 s{S_MRST}, s{S_MRST}, 0x4000')
            g.i(f's_and_b32 s{S_MRST}, s{S_MRST}, 0xfffeffff')
        g.i(f's_and_b32 s{S_T0}, s{S_STEP}, 1')
        g.i(f's_xor_b32 s{S_TAG}, s{S_TAG}, s{S_T0}')
        g.i(f's_add_u32 s{S_STEP}, s{S_STEP}, 1')

    def loop(self, bail, done, role, slow, final=False):
        g = self.g
        opt = self.opt
        XS = 'sc1' if slow else ''
        top = g.newlabel('step')
        Q0, K0, Q1, K1 = [V_ACC + 4 * k for k in range(4)]
        VA0, VA1 = Q0, K0
        fill, mq, cold = [], [], []

        def run(f):
            g.i(f) if isinstance(f, str) else f()

        def pop(n=1, m=1):
            for _ in range(m):
                if mq:
                    run(mq.pop(0))
            for _ in range(n):
                if fill:
                    run(fill.pop(0))

        def smf(acc, a, p, x, atag=None):
            if p[0] in 'qkv':
                assert self.ring[a] == p[1], (p, self.ring)
            if p in LDS_PAIRS:
                assert self.staged[2 * x] == p and self.staged[2 * x + 1] == p, (p, x, self.staged)
                g.wait_lds2(atag, ('stg', p, x))
                b = vr(V_STG + 8 * x, 8)
            else:
                g.wait_lds2(atag)
                b = wfrag(p, x)
            g.i(f'v_smfmac_f32_16x16x64_bf16 {vr(acc,4)}, {vr(a,4)}, {b}, v{V_IDX}')
            if p in STG_NEXT:
                k = 0
                while k < len(mq) and getattr(mq[k], 'stg', False):
                    k += 1
                mq[k:k] = self.stage_list(STG_NEXT[p])[2 * x:2 * x + 2]

        def ard(t, ph):
            f = lambda: self.aread(t, ph)
            f.stg = True
            return f

        def count_try():
            g.i(f's_add_u32 s{S_TRY}, s{S_TRY}, 1')
            g.i(f's_cmp_gt_u32 s{S_TRY}, {SPIN_MAX}')
            g.i(f's_cbranch_scc1 {bail}')

        def note(sdiag, sstat):
            if self.diag:
                g.i(f's_mov_b32 s{sdiag}, s{S_TRY}')
            if 'stat' in opt:
                g.i(f's_add_u32 s{sstat}, s{sstat}, s{S_TRY}')

        def attempt(load, check, sets, sdiag, sstat, drain=False):
            again, ok = g.newlabel('pp'), g.newlabel('ok')
            check(sets[0], 'A')
            g.i(f's_cbranch_vccnz {again}')
            g.label(ok)
            note(sdiag, sstat)
            nb = len([t for t in g.vm_q if t and t[0] == 'B'])

            def retry():
                g.label(again)
                g.vm_q = [('B', k) for k in range(nb)]
                load(sets[0], 'A')
                count_try()
                if len(sets) > 1:
                    check(sets[1], 'B')
                    g.i(f's_cbranch_vccz {ok}')
                    load(sets[1], 'B')
                    g.i(f's_add_u32 s{S_TRY}, s{S_TRY}, 1')
                check(sets[0], 'A')
                g.i(f's_cbranch_vccnz {again}')
                if drain:
                    g.wait_lds()
                g.i(f's_branch {ok}')
                g.forget()
            cold.append(retry)

        FR = {0: (0, 1), 3: (2, 3), 2: (4,), 1: ()}[role]

        def mload(S, tg):
            for k, t in enumerate(FR):
                g.i(f'buffer_load_dwordx4 {vr(S+4*k,4)}, v{V_L16}, {WS}, s{S_MP if t == 4 else S_MCUR} offen '
                    f'offset:{1024*(t % 4)} sc1', tag=(tg, k))

        def mcheck(S, tg):
            for k, t in enumerate(FR):
                g.wait_vm((tg, k))
                g.i(f'ds_write_b128 v{V_L16}, {vr(S+4*k,4)} offset:{L_M + 1024*t}')
                if k == 0:
                    g.i(f'v_max_u32 v{V_T0}, v{S}, v{S+2}')
                else:
                    g.i(f'v_max3_u32 v{V_T0}, v{V_T0}, v{S+4}, v{S+6}')
            g.i(f'v_cmp_eq_u32 vcc, -1, v{V_T0}')

        SYV = V_G2 + 2

        def syload():
            g.i(f'buffer_load_dword v{SYV}, v{V_L16}, {WS}, s{S_SYN} offen sc1', tag='sy')

        def hook(n):
            if role != 3 or not self.sync:
                return
            if n == self.sync[0]:
                g.i(f's_add_u32 s{S_T2}, s{S_STEP}, 1')
                g.i(f'v_mov_b32 v{K1+1}, s{S_T2}')
                g.i(f'buffer_store_dword v{K1+1}, off, {WS}, s{S_SYO} {XS}')
            if n in self.sync[1]:
                syload()

        def hold(bridge):
            if role != 3 or not self.sync:
                return
            K = len(self.sync[1])
            sp, ok = g.newlabel('sy'), g.newlabel('sok')

            def test():
                g.i(f's_waitcnt vmcnt({K-1})')
                g.i(f'v_cmp_gt_u32 vcc, s{S_T2}, v{SYV}')
                g.i('s_cmp_lg_u32 vcc_lo, 0')
                g.i(f's_cbranch_scc1 {sp}')
            test()
            g.label(ok)

            def spin():
                g.label(sp)
                syload()
                bridge()
                count_try()
                if 'stat' in opt:
                    g.i('s_add_u32 s95, s95, 1')
                test()
                g.i(f's_branch {ok}')
                g.forget()
            cold.append(spin)

        kvx = [lambda: g.i(f'buffer_load_dwordx4 {vr(V_KXD,4)}, v{V_KV}, {WS}, s{S_KX} offen {self.kvfl}', tag='kx'),
               lambda: g.i(f'buffer_load_dwordx4 {vr(V_KXD+4,4)}, v{V_KV}, {WS}, s{S_KX} offen offset:256 {self.kvfl}', tag='kx'),
               lambda: g.i(f'buffer_load_dwordx4 {vr(V_X0,4)}, v{V_KV}, {WS}, s{S_VX} offen {self.kvfl}', tag='vx'),
               lambda: g.i(f'buffer_load_dwordx4 {vr(V_X1,4)}, v{V_KV}, {WS}, s{S_VX} offen offset:256 {self.kvfl}', tag='vx')]

        def pub():
            g.i(f's_mov_b64 exec, s[{S_PM}:{S_PM+1}]')
            g.i(f'buffer_store_dwordx4 {vr(V_PUB,4)}, v{V_L16}, {WS}, s{S_KM} offen {"" if "plainpub" in opt else self.pubfl}')
            g.i('s_mov_b64 exec, -1')

        def half(x, dst):
            return [f'v_add_f32 v{x}, v{x}, v{x+2}', f'v_add_f32 v{x+1}, v{x+1}, v{x+3}',
                    f'v_cvt_pk_bf16_f32 v{dst}, v{x}, v{x+1}']

        g.label(top)
        g.lds_q = []; g.vm_q = []
        self.nst = 0; self.names = []
        g.i(f's_mov_b32 s{S_TRY}, 0')
        G2, NG = {0: (5, 2), 3: (7, 2)}.get(role, (None, 0))
        if role == 2:
            g.i(f's_add_u32 s{S_MP}, s{S_MCUR}, 4096')
        if G2:
            g.i(f's_add_u32 s{S_MG}, s{S_MCUR}, {1024*G2}')
            g.i(f's_mov_b32 m0, {L_M + 1024*G2}')
        g.i(f's_mov_b64 s[{S_PM}:{S_PM+1}], -1')
        g.i(f's_mov_b32 s{S_TRY2}, 0')
        for k in range(0, 16, 2):
            g.i(f'v_mov_b64 {vr(V_ACC+k,2)}, 0')
        MA = V_KXD
        if FR:
            if self.dm[role] is None:
                g.i('s_waitcnt vmcnt(0)')
            else:
                g.pad(self.dm[role])
            mload(MA, 'A')
            if self.dq is not None:
                g.pad(self.dq)
                mload(V_STG, 'B')
                attempt(mload, mcheck, [MA, V_STG], 99, 94)
            else:
                attempt(mload, mcheck, [MA], 99, 94)
        redo = g.newlabel('redo')
        g.label(redo)
        g.vm_q = []

        def g2dma():
            for k in range(NG):
                g.i(f'buffer_load_dwordx4 v{V_L16}, {WS}, s{S_MG} offen offset:{1024*k} sc1 lds', tag='g2')
        if not self.late:
            g2dma()
        g.wait_lds()
        self.stamp('m in lds', 9)
        g.i('s_barrier')
        if self.late:
            g2dma()
        self.stamp('B1')
        if self.diag:
            g.i('s_memrealtime s[100:101]')
        for t in range(3):
            self.aread(t, 0)
        if FR and self.dq is not None:
            mq.append(f's_waitcnt vmcnt({NG})')
        mq += self.stage_list(LDS_PAIRS[0])
        if not (FR and self.dq is not None):
            pop(0, 2)
        mq += [ard(3, 0)] + kvx
        nan, back = g.newlabel('nan'), g.newlabel('back')

        def recover():
            g.label(nan)
            g.i(f'v_mov_b32 v{V_T0}, 0')
            for t in range(4, 9):
                for hf in range(2):
                    g.i(f'ds_read_b32 v{V_T1}, v{V_L16} offset:{L_M + 1024*t + 8*hf}')
                    g.i('s_waitcnt lgkmcnt(0)')
                    g.i(f'v_max_u32 v{V_T0}, v{V_T0}, v{V_T1}')
            g.i(f'v_cmp_eq_u32 s[{S_NAN}:{S_NAN+1}], -1, v{V_T0}')
            g.i(f's_cmp_eq_u64 s[{S_NAN}:{S_NAN+1}], 0')
            g.i(f's_cbranch_scc1 {back}')
            g.i(f's_add_u32 s{S_TRY2}, s{S_TRY2}, 1')
            if 'stat' in opt:
                g.i('s_add_u32 s93, s93, 1')
            g.i(f's_cmp_gt_u32 s{S_TRY2}, {SPIN_MAX}')
            g.i(f's_cbranch_scc1 {bail}')
            g.i(f's_mov_b64 s[{S_PM}:{S_PM+1}], 0')
            for k in range(0, 16, 2):
                g.i(f'v_mov_b64 {vr(V_ACC+k,2)}, 0')
            g.i('s_waitcnt vmcnt(0)')
            g.i('s_barrier')
            g.i(f's_branch {redo}')
            g.forget()
        cold.append(recover)
        if final:
            del mq[-4:]
            mq.append(pub)
            n = 0
            for t in list(range(9)) + [11]:
                ph, tt = (1, 2) if t == 11 else (0, t)
                for acc, mat, tl in [(Q0, 'v', 0), (Q1, 'v', 1), (K0, 'k', 0), (K1, 'k', 1)]:
                    if (mat == 'v' and t == 2) or (mat == 'k' and t == 11):
                        continue
                    if t == 3 and acc == Q0:
                        g.wait_vm('g2')
                        g.i('s_barrier')
                        self.aread(4, 0)
                        mq[0:0] = [ard(5, 0), ard(6, 0)]
                    smf(acc, self.areg(tt, ph), (mat, tt), tl, ('a', ph, tt))
                    pop(0, 3 if n == 0 else 2 if n == 1 else 1)
                    n += 1
                nxt = {3: (7, 0), 4: (8, 0), 7: (2, 1)}.get(t)
                if nxt:
                    mq[0:0] = [ard(*nxt)]
            assert not mq
            for f in half(K0, V_PUB + 1) + half(K1, V_PUB + 3) + half(Q0, V_PUB) + half(Q1, V_PUB + 2):
                g.i(f)
            g.i(f'v_cmp_u_f32 s[{S_NAN}:{S_NAN+1}], v{K1}, v{K1+1}')
            g.i(f'v_min_u32 v{V_PUB}, -2, v{V_PUB}')
            g.i(f's_cmp_lg_u64 s[{S_NAN}:{S_NAN+1}], 0')
            g.i(f's_cbranch_scc1 {nan}')
            g.label(back)
            g.i(f's_add_u32 s{S_KM}, s{S_KM}, {32*4096}')
            g.i(f'buffer_store_dwordx4 {vr(V_PUB,4)}, v{V_L16}, {WS}, s{S_KM} offen sc1')
            g.i(f's_branch {done}')
            g.forget()
            for f in cold:
                f()
            return
        for t in range(7):
            a = self.areg(t, 0)
            for x, (acc, mat, tl) in enumerate([(Q0, 'q', 0), (Q1, 'q', 1), (K0, 'k', 0), (K1, 'k', 1)]):
                n = 4 * t + x
                if n == self.io:
                    mq.append(pub)
                    if role == 3:
                        mq += self.slow_io()
                if n == 16 + self.bp:
                    g.wait_vm('g2')
                    g.i('s_barrier')
                    self.aread(5, 0)
                    mq[0:0] = [ard(6, 0), ard(7, 0)]
                smf(acc, a, (mat, t), tl, ('a', 0, t))
                self.stamp(f'p{n}', 9)
                if x == 3:
                    nxt = {0: (4, 0), 4: (8, 0), 5: (0, 1), 6: (1, 1)}.get(t)
                    if nxt:
                        k = 0
                        while k < len(mq) and getattr(mq[k], 'stg', False):
                            k += 1
                        mq.insert(k, ard(*nxt))
                pop(1, 3 if n == 0 else 2 if n == 1 else 1)
        g.i(f's_mov_b64 vcc, s[{S_M3}:{S_M3+1}]')
        a7, a8 = self.areg(7, 0), self.areg(8, 0)
        smf(Q0, a7, ('q', 7), 0, ('a', 0, 7))
        pop()
        smf(Q0, a8, ('q', 8), 0, ('a', 0, 8))
        pop()
        smf(K0, a8, ('k', 8), 0)
        pop()
        smf(K0, a7, ('k', 7), 0)
        assert pub not in mq
        fill += half(Q0, V_PUB) + half(K0, V_PUB + 1)
        pop(1)
        smf(Q1, a8, ('q', 8), 1)
        pop(2)
        smf(Q1, a7, ('q', 7), 1)
        pop(2)
        smf(K1, a8, ('k', 8), 1)
        pop(1)
        g.i(f'v_mov_b64 {vr(Q0,2)}, 0')
        smf(K1, a7, ('k', 7), 1)
        mq += [ard(2, 1), ard(3, 1)]
        pop(0)
        g.i(f'v_mov_b64 {vr(Q0+2,2)}, 0')
        self.stamp('qk done')
        vq = [(t, x) for t in range(9) for x in range(2)]

        def vs(n, f=1):
            for _ in range(n):
                t, x = vq.pop(0)
                smf(VA0 if x == 0 else VA1, self.areg(t, 1), ('v', t), x, ('a', 1, t))
                if x == 1 and t + 4 < 9:
                    mq.append(ard(t + 4, 1))
                pop(f)
        ID = vr(V_ID0, 2)
        QK, T0R = Q1, K1
        g.i(f'v_mfma_f32_16x16x16_bf16 {vr(K0,4)}, {vr(V_PUB,2)}, {ID}, 0')
        for f in half(Q1, V_PUB + 2):
            g.i(f)
        pop(0)
        for f in half(K1, V_PUB + 3):
            g.i(f)
        g.i(f'v_cmp_u_f32 s[{S_NAN}:{S_NAN+1}], v{Q1}, v{Q1+1}')
        g.i(f'v_cvt_pk_bf16_f32 v{QK}, v{K0}, v{K0+1}')
        g.i(f'v_mfma_f32_16x16x16_bf16 {vr(K1,4)}, {vr(V_PUB+2,2)}, {ID}, 0')
        g.i(f'v_cvt_pk_bf16_f32 v{QK+1}, v{K0+2}, v{K0+3}')
        g.i(f'v_mov_b64 {vr(K0,2)}, 0')
        fill.append(f'v_mov_b64 {vr(K0+2,2)}, 0')
        vq[1], vq[2] = vq[2], vq[1]
        vs(2)
        g.i(f'v_cvt_pk_bf16_f32 v{QK+2}, v{K1}, v{K1+1}')
        g.i(f'v_cvt_pk_bf16_f32 v{QK+3}, v{K1+2}, v{K1+3}')
        pop(0)
        self.stamp('pre qk wait', 1)
        g.wait_vm('kx')
        g.i(f'v_mfma_f32_16x16x32_bf16 {vr(V_KXD,4)}, {vr(V_KXD,4)}, {vr(QK,4)}, 0')
        pop(0)
        g.i(f'v_mfma_f32_16x16x32_bf16 {vr(V_KXD+4,4)}, {vr(V_KXD+4,4)}, {vr(QK,4)}, 0')
        pop(0)
        g.i(f's_cmp_lg_u64 s[{S_NAN}:{S_NAN+1}], 0')
        g.i(f'v_mfma_f32_16x16x32_bf16 {vr(T0R,4)}, {vr(QK,4)}, {vr(QK,4)}, 0')
        g.i(f's_cbranch_scc1 {nan}')
        g.label(back)
        vs(1)
        for r in range(4):
            g.i(f'v_cndmask_b32_dpp v{V_KXD+r}, v{V_KXD+4+r}, v{V_KXD+r}, vcc quad_perm:[0,1,0,1] row_mask:0xf bank_mask:0xf')
        g.i(f'ds_write_b128 v{V_SW}, {vr(V_KXD,4)} offset:{L_QK + 1024*role}')
        g.i(f'v_cndmask_b32_dpp v{T0R+2}, v{T0R+3}, v{T0R+2}, vcc quad_perm:[0,1,0,1] row_mask:0xf bank_mask:0xf')
        g.i(f'ds_write_b32 v{V_SW}, v{T0R+2} offset:{L_SM + 4*role}', tag='sw')
        self.stamp('S issued', 9)
        X = V_STG
        M = Q1
        SH = K1
        PB = V_KXD + 2
        WL_, WM, WR = V_X0 - 2, V_T0, V_KXD
        fill += [f'v_mov_b32 v{PB}, 0', f'v_mov_b32 v{PB+5}, 0', f'v_mov_b32 v{WL_}, 0', f'v_mov_b32 v{WR+1}, 0',
                 f'v_lshrrev_b32 v{SH}, 3, v{V_L16}', f'v_and_b32 v{SH}, 16, v{SH}']
        vs(self.nb)
        assert vq[0][0] > 2
        g.wait_lds('sw')
        self.stamp('S written', 1)
        g.i('s_barrier')
        self.stamp('B2')
        rd = [(lambda w=w: g.i(f'ds_read_b128 {vr(X+4*w,4)}, v{V_L16} offset:{L_QK + 1024*w}', tag=('sx', w))) for w in range(4)]
        rd.append(lambda: g.i(f'ds_read_b128 {vr(M,4)}, v{V_L16} offset:{L_SM}', tag='sm'))
        rd[0]()
        mq[0:0] = rd[1:]
        hook(0)
        vs(len(vq) - 5)
        g.wait_lds(('sx', 1))
        hook(1)
        fill += [f'v_add_f32 v{X+r}, v{X+r}, v{X+4+r}' for r in range(4)]
        pop(1)
        vs(3)
        g.wait_lds('sm')
        fill += [f'v_add_f32 v{M}, v{M}, v{M+1}', f'v_add_f32 v{M+2}, v{M+2}, v{M+3}', f'v_add_f32 v{M}, v{M}, v{M+2}',
                 f'v_add_f32 v{X+8}, v{X+8}, v{X+12}', f'v_add_f32 v{X+9}, v{X+9}, v{X+13}']
        vs(2)
        assert not vq
        pop(100, 100)
        self.stamp('v done', 9)
        hook(2)
        g.i(f'v_pk_add_f32 {vr(X+10,2)}, {vr(X+10,2)}, {vr(X+14,2)}')
        g.i(f'v_pk_add_f32 {vr(X,2)}, {vr(X,2)}, {vr(X+8,2)}')
        g.i(f'v_pk_add_f32 {vr(X+2,2)}, {vr(X+2,2)}, {vr(X+10,2)}')
        MX, MY = M + 2, M + 3
        ONE = V_AR
        g.i(f'v_max3_f32 v{MX}, v{X}, v{X+1}, v{M}')
        g.i(f'v_max3_f32 v{MX}, v{MX}, v{X+2}, v{X+3}')
        hook(3)
        g.i(f'v_pk_add_f32 {vr(VA0,2)}, {vr(VA0,2)}, {vr(VA0+2,2)}')
        g.i(f'v_pk_add_f32 {vr(VA1,2)}, {vr(VA1,2)}, {vr(VA1+2,2)}')
        g.i(f'v_max_f32_dpp v{MY}, v{MX}, v{MX} row_ror:8 row_mask:0xf bank_mask:0xf')
        g.i(f'v_max_f32_dpp v{MX}, v{MX}, v{MX} row_ror:8 row_mask:0xf bank_mask:0xf')
        g.i(f'v_cvt_pk_bf16_f32 v{WM}, v{VA0}, v{VA0+1}')
        g.i(f'v_cvt_pk_bf16_f32 v{WM+1}, v{VA1}, v{VA1+1}')
        g.i(f'v_permlane16_swap_b32 v{MX}, v{MY}')
        hook(4)
        g.i(f'v_max_f32 v{M+1}, v{MX}, v{MY}')
        g.i(f'v_max_f32 v{MX}, v{MX}, v{MY}')
        g.i(f'v_mov_b32 v{WL_+1}, v{WM}')
        g.i(f'v_mov_b32 v{WR}, v{WM+1}')
        g.i(f'v_permlane32_swap_b32 v{MX}, v{M+1}')
        g.i(f'v_max_f32 v{MX}, v{MX}, v{M+1}')
        g.i(f'v_mul_f32 v{MX}, s{S_C}, v{MX}')
        hook(5)
        g.i(f'v_fma_f32 v{M}, v{M}, s{S_C}, -v{MX}')
        for r in (0, 2):
            g.i(f'v_pk_fma_f32 {vr(X+r,2)}, {vr(X+r,2)}, s[{S_C2}:{S_C2+1}], {vr(MX,2)} op_sel_hi:[1,1,0] neg_lo:[0,0,1] neg_hi:[0,0,1]')
        g.i(f'v_exp_f32 v{M}, v{M}')
        for r in range(4):
            g.i(f'v_exp_f32 v{X+r}, v{X+r}')
        g.i(f'v_cvt_pk_bf16_f32 v{M}, v{M}, 0')
        hook(6)
        g.i(f'v_cvt_pk_bf16_f32 v{PB+2}, v{X}, v{X+1}')
        g.i(f'v_lshlrev_b32 v{PB+4}, v{SH}, v{M}')
        g.i(f'v_cvt_pk_bf16_f32 v{PB+3}, v{X+2}, v{X+3}')
        g.i(f'v_lshlrev_b32 v{PB+1}, v{SH}, v{M}')
        self.stamp('softmax done', 1)
        g.wait_vm('vx')
        DL = V_AR + 4
        D = V_STG
        g.i(f'v_mfma_f32_16x16x32_bf16 {vr(D+4,4)}, {vr(V_X0+2,4)}, {vr(PB+2,4)}, 0')
        hook(7)
        g.i(f'v_mov_b64 {vr(ONE,2)}, s[{S_ONE}:{S_ONE+1}]')
        g.i(f'v_mov_b64 {vr(ONE+2,2)}, s[{S_ONE}:{S_ONE+1}]')
        g.i(f'v_mfma_f32_16x16x32_bf16 {vr(D,4)}, {vr(WL_,4)}, {vr(PB,4)}, 0')
        g.i(f'v_min_u32 v{V_PUB}, -2, v{WM}')
        g.i(f'v_mov_b32 v{V_PUB+2}, v{WM+1}')
        g.i(f'v_mfma_f32_16x16x32_bf16 {vr(DL,4)}, {vr(ONE,4)}, {vr(PB,4)}, 0')
        g.i(f'v_mov_b64 {vr(V_ACC,2)}, 0')
        g.i(f'v_mov_b64 {vr(V_ACC+2,2)}, 0')
        g.i(f'v_mfma_f32_16x16x32_bf16 {vr(D+8,4)}, {vr(WM,4)}, {vr(PB,4)}, 0')
        hook(8)
        O = V_AR + 8
        RL = V_AR + 2
        g.i(f'v_add_f32_dpp v{O}, v{D+4}, v{D} row_ror:8 row_mask:0xf bank_mask:0x3')
        g.i(f'v_add_f32_dpp v{O+1}, v{D+5}, v{D+1} row_ror:8 row_mask:0xf bank_mask:0x3')
        g.i(f'v_mfma_f32_16x16x32_bf16 {vr(D+12,4)}, {vr(V_X1+2,4)}, {vr(PB+2,4)}, 0')
        self.stamp('pv issued', 9)
        g.i(f'v_add_f32_dpp v{RL}, v{DL}, v{DL} row_ror:8 row_mask:0xf bank_mask:0xf')
        g.i(f'v_add_f32_dpp v{O+2}, v{D+6}, v{D+2} row_ror:8 row_mask:0xf bank_mask:0x3')
        g.i(f'v_add_f32_dpp v{O+3}, v{D+7}, v{D+3} row_ror:8 row_mask:0xf bank_mask:0x3')
        g.i(f'v_rcp_f32 v{RL}, v{RL}')
        hook(9)
        TA, TB = V_AR + 10, V_AR + 11
        VAD = V_G2
        g.i(f'v_and_b32 v{VAD}, 0xffffffdf, v{V_L16}')
        g.i(f'v_lshrrev_b32 v{VAD+1}, 2, v{V_L16}')
        g.i(f'v_mov_b64 {vr(V_ACC+4,2)}, 0')
        g.i(f'v_mov_b64 {vr(V_ACC+6,2)}, 0')
        for r in range(4):
            g.i(f'v_add_f32_dpp v{O+r}, v{D+8+r}, v{D+12+r} row_ror:8 row_mask:0xf bank_mask:0xc')
        for r in (0, 2):
            g.i(f'v_pk_mul_f32 {vr(O+r,2)}, {vr(O+r,2)}, {vr(RL,2)} op_sel_hi:[1,0]')
        g.i(f'v_cvt_pk_bf16_f32 v{O}, v{O}, v{O+1}')
        g.i(f'v_cvt_pk_bf16_f32 v{O+1}, v{O+2}, v{O+3}')
        g.i(f'ds_write_b64 v{V_OW}, {vr(O,2)} offset:{L_M + 512*role}', tag='ow')
        self.stamp('o issued', 9)
        hook(10)
        Z = vr(V_ACC, 4)
        zm = lambda p: g.i(f'v_mfma_f32_16x16x32_bf16 {vr(V_ACC+4+4*p,4)}, {Z}, {Z}, 0')
        zm(1)
        st = self.stage_list(('o', 1, 0))
        for f in st[:self.pre]:
            f()
        zm(2)
        hold(lambda: zm(2))
        g.wait_lds('ow')
        self.stamp('o written', 1)
        g.i('s_barrier')
        self.stamp('B3', 1)
        AL, AP = V_ACC + 20, V_ACC + 28
        for k in range(4):
            g.i(f'ds_read_b128 {vr(AP+4*k,4)}, v{VAD} offset:{L_M + 1024*(k>>1) + 32*(k&1)}', tag=('ap', k))
            if k == 1:
                zm(3)
        for f in st[self.pre:]:
            f()
        R = V_ACC + 20

        def rload(S, tg):
            for n in range(4 if role < 2 else 1):
                g.i(f'buffer_load_dwordx4 {vr(S+4*n,4)}, v{V_RED}, {WS}, s{S_RED+n} offen sc1', tag=(tg, n))

        def post(p):
            pa, OUT = V_ACC + 4 + 4 * p, V_ACC + 4 + 8 * (p >> 1)
            L = [f'v_cvt_pk_bf16_f32 v{OUT + 2*(p&1)}, v{pa}, v{pa+1}', f'v_cvt_pk_bf16_f32 v{OUT + 2*(p&1) + 1}, v{pa+2}, v{pa+3}']
            if p & 1 == 0:
                L.append(f'v_and_or_b32 v{OUT}, v{OUT}, -2, s{S_TAG}')
            else:
                L.append(lambda: g.i(f'buffer_store_dwordx4 {vr(OUT,4)}, v{V_L16}, {WS}, s{S_PST + (p >> 1)} offen {XS}',
                                     tag=('st', p >> 1)))
            return L
        self.stamp('wo start')
        g.vm_q = []
        order = [(0, 0), (0, 1), (1, 0), (0, 2), (0, 3), (1, 1), ('l', 0), (1, 2), (1, 3), ('l', 1), (2, 0), (2, 1), (2, 2),
                 (2, 3), (3, 0), (3, 1), (3, 2), (3, 3)]
        for u in range(2):
            mq.append(lambda u=u: g.i(f'ds_read_b128 {vr(AL+4*u,4)}, v{V_L16} offset:{L_M + 1024*u}', tag=('al', u)))
        for j, (p, k) in enumerate(order):
            if p == 'l':
                smf(V_ACC, AL + 4 * k, ('l',), k, ('al', k))
            else:
                smf(V_ACC + 4 + 4 * p, AP + 4 * k, ('o', k >> 1, p), k & 1, ('ap', k))
            self.stamp(f'w{j}', 9)
            if j in (6, 10, 15):
                fill += post({6: 0, 10: 1, 15: 2}[j])
            if j == 11:
                fill += half(V_ACC, TA) + [f'v_and_or_b32 v{TA}, v{TA}, -2, s{S_TAG}',
                                           lambda: g.i(f'buffer_store_dword v{TA}, v{VAD+1}, {WS}, s{S_PST+2} offen {XS}', tag=('st', 2))]
            pop(3 if j == 10 else 2 if j in (11, 14) else 1, 1 if j < 2 else 2)
        pop(100)
        for f in post(3):
            run(f)
        self.stamp('wo done')
        self.advance()
        if role < 3:
            RD, SN, SEL = V_AR + 2, V_AR + 6, V_G2
            g.i(f'v_bfe_u32 v{TA}, v{V_L16}, 6, 1')
            g.i(f'v_lshlrev_b32 v{TA}, 4, v{TA}')
            g.i(f'v_mov_b32 v{TB}, 0x3f80')
            g.i(f'v_lshlrev_b32 v{TA}, v{TA}, v{TB}')
            g.i(f'v_cndmask_b32 v{SEL}, 0, v{TA}, s[{S_M1}:{S_M1+1}]')
            for d in range(1, 4):
                g.i(f's_lshl_b64 vcc, s[{S_M1}:{S_M1+1}], {d}')
                g.i(f'v_cndmask_b32 v{SEL+d}, 0, v{TA}, vcc')
            g.i(f'v_mov_b64 {vr(SN,2)}, -1')
            g.i(f's_mov_b32 s{S_TRY}, 0')
            if self.dr[role] is None:
                g.wait_vm(('st', role))
            else:
                g.pad(self.dr[role])
            rload(R, 'A')
            if role == 0 and self.dq2:
                g.pad(self.dq2)
                rload(V_STG, 'B')

            def rsum(S, tg):
                if role == 2:
                    g.wait_vm((tg, 0))
                    self.stamp('r0', 9)
                    self.stamp('r3', 9)
                    g.i(f'v_mfma_f32_16x16x32_bf16 {vr(RD,4)}, {vr(SEL,4)}, {vr(S,4)}, 0')
                    g.i(f'v_bitop3_b32 v{TA}, v{S}, v{S+1}, s{S_TAG} bitop3:0x7e')
                    g.i(f'v_bitop3_b32 v{TB}, v{S+2}, v{S+3}, s{S_TAG} bitop3:0x7e')
                else:
                    for n in range(4):
                        g.wait_vm((tg, n))
                        self.stamp(f'r{n}', 9)
                        g.i(f'v_mfma_f32_16x16x32_bf16 {vr(RD,4)}, {vr(SEL,4)}, {vr(S+4*n,4)}, {vr(RD,4) if n else 0}')
                        if n & 1:
                            g.i(f'v_bitop3_b32 v{TA + (n>>1)}, v{S+4*n-4}, v{S+4*n}, s{S_TAG} bitop3:0x7e')
                g.i(f'v_or_b32 v{TA}, v{TA}, v{TB}')
                g.i(f'v_and_b32 v{TA}, 1, v{TA}')
                g.i(f'v_cmp_ne_u32 vcc, 0, v{TA}')
            attempt(rload, rsum, [R, V_STG] if role == 0 and self.dq2 else [R], 98, 95)
            for rot in ((8,) if role < 2 else (8, 4, 2)):
                for r in range(4):
                    g.i(f'v_add_f32_dpp v{RD+r}, v{RD+r}, v{RD+r} row_ror:{rot} row_mask:0xf bank_mask:0xf')
            g.i(f's_mov_b64 exec, s[{S_MS}:{S_MS+1}]')
            g.i(f'v_cvt_pk_bf16_f32 v{TA}, v{RD}, v{RD+1}')
            g.i(f'v_cvt_pk_bf16_f32 v{TB}, v{RD+2}, v{RD+3}')
            g.i(f'v_min_u32 v{TA}, -2, v{TA}')
            g.i(f'buffer_store_dwordx2 {vr(TA,2)}, v{V_MST}, {WS}, s{S_MCUR} offen {XS}')
            g.i(f'buffer_store_dwordx2 {vr(SN,2)}, v{V_MST}, {WS}, s{S_MRST} offen {XS}')
            g.i('s_mov_b64 exec, -1')
            if role == 0 and self.wake:
                g.i('s_wakeup')
            self.stamp('m stored')
        else:
            g.wait_vm()
            self.stamp('r0', 9)
            self.stamp('r3', 9)
            if not self.standalone:
                nr, rk = g.newlabel('nr'), g.newlabel('rk')
                g.i(f'v_readfirstlane_b32 s{S_T0}, v{V_MST}')
                g.i(f's_cmp_ge_u32 s{S_STEP}, {NSEG - 3}')
                g.i(f's_cselect_b32 s{S_RNEED}, 0, s{S_RNEED}')
                g.i(f's_cmp_lt_u32 s{S_T0}, s{S_RNEED}')
                g.i(f's_cbranch_scc1 {nr}')
                g.label(rk)

                def notready():
                    g.label(nr)
                    self.spin_ready(S_RDY, f's{S_RNEED}', bail)
                    g.i(f's_branch {rk}')
                    g.forget()
                cold.append(notready)
                g.i(f's_add_u32 s{S_RDY}, s{S_RDY}, {P1_REP}')
                g.i(f's_add_u32 s{S_PF}, s{S_PF}, 1')
                g.i(f's_cmp_eq_u32 s{S_PF}, 3')
                g.i(f's_cselect_b32 s{S_T0}, {3 * P1_REP}, 0')
                g.i(f's_cselect_b32 s{S_T1}, 1, 0')
                g.i(f's_cselect_b32 s{S_PF}, 0, s{S_PF}')
                g.i(f's_sub_u32 s{S_RDY}, s{S_RDY}, s{S_T0}')
                g.i(f's_add_u32 s{S_RNEED}, s{S_RNEED}, s{S_T1}')
            if self.wake:
                g.i(f's_sleep {self.wake}')
            self.stamp('m stored')
        self.advance2(role)
        self.dump_stamps()
        if self.only is not None:
            g.i('s_waitcnt lgkmcnt(0)')
            g.i(f's_sub_u32 s{S_T0}, s{S_ST+2}, s{S_ST}')
            g.i(f's_add_u32 s80, s80, s{S_T0}')
        if 'stat' in opt:
            sk6 = g.newlabel('s6')
            g.i(f's_cmp_lg_u32 s{S_STEP}, 6')
            g.i(f's_cbranch_scc1 {sk6}')
            g.i('s_memtime s[90:91]')
            g.i('s_memrealtime s[88:89]')
            for k in (80, 93, 94, 95):
                g.i(f's_mov_b32 s{k}, 0')
            g.i('s_waitcnt lgkmcnt(0)')
            g.label(sk6)
        g.i(f's_cmp_lt_u32 s{S_STEP}, {NSEG-1}')
        g.settle()
        g.i(f's_cbranch_scc1 {top}')
        names = self.names
        self.at_final()
        self.loop(bail, done, role, slow, True)
        self.names = names
        for f in cold:
            f()
```

```python
OFF_XN   = 0x0000000
OFF_KX   = 0x0400000
OFF_VX   = 0x1400000
OFF_QX   = 0x2400000
OFF_H    = 0x3400000
OFF_O    = 0x4800000
OFF_G    = 0x5800000
OFF_KM   = 0x6000000
OFF_VM   = 0x6800000
OFF_PART = 0x6C00000
OFF_MB   = 0x6E00000
OFF_SYNC = 0x6E20000
OFF_FLAG = 0x6F00000
OFF_DIAG = 0x7000000
WS_BYTES = 268435456
NSEG = 64

def colmap(t, k):
    ga, hh, x1, sg, x0 = k >> 4, (k >> 3) & 1, (k >> 2) & 1, (k >> 1) & 1, k & 1
    if t == 4:
        return 512 + 16 * ga + 8 * sg + 4 * hh + 2 * x1 + x0
    q, w = (0, t) if t < 4 else (1, t - 5)
    return 256 * q + 128 * x1 + 32 * w + 16 * x0 + 4 * ga + 2 * sg + hh

assert sorted(colmap(t, k) for t in range(9) for k in range(64)) == list(range(576))
DBG_XCC = 0
DBG_PICK = 64
DBG_HEAVY = 0
DBG_LIGHT = 96
DBG_LN = 64
DBG_CHAIN = 128
DBG_GO = 228
DBG_LNOK = 224
DBG_INIT = 192
FL_O = 0
FL_KM = 28672
FL_P1 = 16384
P1_REP = 16384
FL_BYTES = 65536
N_LIGHT, N_HEAVY = 32, 192
N_LN = 64
N_REP = 10
Q2 = 42
LIGHT_XCC = 2
CHAIN_XCC = 3
SEG_DIRECT = 60
```

```python
import sys
from asmgen import *
from layout import *
import chain as C
import bulk as B

NAME = 'recurrent_scan__memory_aug_recurrent_mem_tr__dense_activation_silu__prompt'


def dispatch(g, l_chain, l_bulk, force_slow, LIGHT_XCC=LIGHT_XCC):
    S_W, S_H, T0, T1, DBG, XCC = C.S_W, C.S_H, C.S_T0, C.S_T1, C.S_DBG, C.S_XCC
    g.i('v_lshrrev_b32 v1, 6, v0')
    g.i('v_and_b32 v0, 63, v0')
    g.i(f'v_readfirstlane_b32 s{S_W}, v1')
    g.i(f's_getreg_b32 s{XCC}, hwreg(HW_REG_XCC_ID, 0, 4)')
    rd, tb, tc, wr = [g.newlabel('el') for _ in range(4)]
    g.i(f'v_mov_b32 v2, {C.L_EL}')
    g.i(f's_cmp_lg_u32 s{S_W}, 0')
    g.i(f's_cbranch_scc1 {rd}')
    g.i('s_mov_b64 exec, 1')
    g.i('v_mov_b32 v4, 1')

    CL = {'c': (DBG_CHAIN, 32, 0), 'l': (DBG_LIGHT, N_LIGHT, 32), 'h': (DBG_HEAVY, N_HEAVY, 64)}

    def tickets(order):
        for c in order:
            off, cap, base = CL[c]
            g.i(f'v_mov_b32 v3, {off}')
            g.i(f'global_atomic_add v5, v3, v4, s[{DBG}:{DBG+1}] sc0')
            g.wait_vm()
            g.i(f'v_readfirstlane_b32 s{T0}, v5')
            g.i(f's_add_u32 s{S_H}, s{T0}, {base}')
            g.i(f's_cmp_lt_u32 s{T0}, {cap}')
            g.i(f's_cbranch_scc1 {wr}')
        g.i(f's_mov_b32 s{S_H}, 256')
        g.i(f's_branch {wr}')
    if force_slow:
        g.i('s_cmp_lt_u32 s2, 16')
    else:
        g.i(f's_cmp_eq_u32 s{XCC}, {CHAIN_XCC}')
    g.i(f's_cbranch_scc1 {tc}')
    g.i(f's_cmp_eq_u32 s{XCC}, {LIGHT_XCC}')
    g.i(f's_cbranch_scc1 {tb}')
    tickets('hlc')
    g.label(tb)
    tickets('lhc')
    g.label(tc)
    tickets('clh')
    g.label(wr)
    g.i(f'v_mov_b32 v5, s{S_H}')
    g.i('ds_write_b32 v2, v5')
    g.i('s_mov_b64 exec, -1')
    g.wait_lds()
    g.label(rd)
    g.i('s_barrier')
    g.i('ds_read_b32 v5, v2')
    g.wait_lds()
    g.i(f'v_readfirstlane_b32 s{S_H}, v5')
    g.i('s_barrier')
    g.i(f's_cmp_lt_u32 s{S_H}, 32')
    g.i(f's_cbranch_scc1 {l_chain}')
    g.i(f's_cmp_ge_u32 s{S_H}, 256')
    g.i(f's_cbranch_scc1 fin0')
    g.i(f's_sub_u32 s{S_H}, s{S_H}, 32')


def build(out, diag=0, force_slow=False, prof=False, header='', bopt=(), ahead=9, **kw):
    g = Gen()
    name = NAME + '_kernel'
    g.raw(header + f'; @launch grid=(256,1,1) block=(256,1,1) lds={C.LDS_BYTES}')
    g.raw('.amdgcn_target "amdgcn-amd-amdhsa--gfx950"')
    g.raw('.text'); g.raw(f'.globl {name}'); g.raw('.p2align 8'); g.raw(f'.type {name},@function')
    g.label(name)
    g.i('s_cmp_ge_u32 s2, 256')
    g.i('s_cbranch_scc1 fin0')
    nprof = [0]

    def stamp():
        if prof:
            g.i('s_memrealtime s[100:101]')
            g.i('s_waitcnt lgkmcnt(0)')
            g.i(f's_mov_b32 s{88 + nprof[0]}, s100')
            nprof[0] += 1

    def dump(base):
        if prof:
            for k in range(8):
                g.i(f'v_writelane_b32 v14, s{88 + k}, {k}')
            g.i(f's_lshl_b32 s42, s{C.S_H}, 2')
            g.i(f's_add_u32 s42, s42, s{C.S_W}')
            g.i(f's_lshl_b32 s42, s42, 5')
            g.i(f's_add_u32 s42, s42, {OFF_DIAG + 0x200000 + base}')
            g.i('v_mbcnt_lo_u32_b32 v15, -1, 0')
            g.i('v_lshlrev_b32 v15, 2, v15')
            g.i('s_mov_b64 exec, 0xff')
            g.i(f'buffer_store_dword v14, v15, s[4:7], s42 offen')
            if prof == 2:
                g.i('s_not_b32 s88, s88')
                g.i('v_writelane_b32 v14, s88, 0')
                g.i(f'v_add_u32 v15, {4 if base == 0 else 28}, v15')
                g.i(f's_mov_b64 exec, {0x1f if base == 0 else 0xfe}')
                g.i(f'global_atomic_umax v15, v14, s[{C.S_DBG}:{C.S_DBG+1}]')
    g.i(f's_load_dwordx2 s[{B.P_X}:{B.P_X+1}], s[0:1], 0')
    g.i(f's_load_dwordx2 s[{C.S_PTR}:{C.S_PTR+1}], s[0:1], 8')
    g.i(f's_load_dwordx2 s[{C.S_PTR+2}:{C.S_PTR+3}], s[0:1], 16')
    g.i(f's_load_dwordx4 s[{C.S_PTR+4}:{C.S_PTR+7}], s[0:1], 24')
    g.i(f's_load_dwordx2 s[{C.S_PTR+8}:{C.S_PTR+9}], s[0:1], 40')
    g.i(f's_load_dwordx2 s[{B.P_W1}:{B.P_W1+1}], s[0:1], 64')
    g.i(f's_load_dwordx4 s[{B.P_W2}:{B.P_W2+3}], s[0:1], 72')
    g.i(f's_load_dwordx2 s[{C.S_DBG}:{C.S_DBG+1}], s[0:1], 88')
    g.i(f's_load_dwordx2 s[{C.S_WS}:{C.S_WS+1}], s[0:1], 96')
    if prof:
        for k in range(8):
            g.i(f's_mov_b32 s{88+k}, 0')
    stamp()
    g.i('s_waitcnt lgkmcnt(0)')
    g.i(f's_mov_b32 s{C.S_WS+2}, {WS_BYTES}')
    g.i(f's_mov_b32 s{C.S_WS+3}, 0x20000')
    dispatch(g, 'chain_far', 'bulk', force_slow, kw.pop('lx', LIGHT_XCC))
    g.i('s_branch bulk')
    g.label('chain_far')
    g.i('s_branch chain')
    g.label('fin0')
    g.i('s_endpgm')
    g.forget()
    g.label('chain')
    stamp()
    ch = C.Chain(g, diag=diag, standalone=False, opt=kw.pop('opt', ()))
    for k_, v_ in kw.items():
        setattr(ch, k_, v_)
    ch.prologue()
    stamp()
    ch.after_wait = stamp

    def at(k):
        def f():
            if prof:
                g.i('s_memrealtime s[100:101]')
                g.i('s_waitcnt lgkmcnt(0)')
                g.i(f's_mov_b32 s{88 + k}, s100')
        return f
    ch.at_final = at(5)
    ch.start('fin1', 'done')
    g.label('done')
    stamp()
    dump(0)
    g.label('fin1')
    g.i('s_endpgm')
    g.forget()
    g.label('bulk')
    nprof[0] = 1
    stamp()
    b = B.Bulk(g, 'fin2', bopt)
    b.ahead = ahead
    b.setup()
    g.i(f's_cmp_lt_u32 s{B.S_RANK}, {N_LN}')
    g.i('s_cbranch_scc1 lnorm')
    g.i('s_branch proj')
    g.label('lnorm')
    b.layernorm()
    stamp()
    g.i(f's_cmp_lt_u32 s{B.S_RANK}, {N_LIGHT}')
    g.i('s_cbranch_scc1 attn')
    g.label('proj')
    nprof[0] = 2
    b.stamp = stamp
    b.at = at
    b.project()
    stamp()
    g.i(f's_cmp_ge_u32 s{B.S_RANK}, {N_LIGHT + 18 * N_REP}')
    g.i('s_cbranch_scc1 bend')
    b.stream_gemm(True)
    stamp()
    b.stream_gemm(False)
    stamp()
    g.i('s_branch bend')
    g.label('fin2')
    g.i('s_endpgm')
    g.forget()
    g.label('attn')
    if 'noattn' in bopt:
        g.i('s_endpgm')
    b.attention()
    nprof[0] = 7
    stamp()
    g.label('bend')
    dump(4096)
    g.i('s_endpgm')
    g.raw(f'''.section .rodata,"a"
.p2align 6
.amdhsa_kernel {name}
  .amdhsa_next_free_vgpr 512
  .amdhsa_next_free_sgpr 102
  .amdhsa_accum_offset 256
  .amdhsa_group_segment_fixed_size 0
  .amdhsa_kernarg_size 104
  .amdhsa_user_sgpr_count 2
  .amdhsa_user_sgpr_kernarg_segment_ptr 1
  .amdhsa_system_sgpr_workgroup_id_x 1
.end_amdhsa_kernel''')
    open(out, 'w').write(g.text())
    if diag:
        open(out[:-2] + '_names.txt', 'w').write('\n'.join(ch.names))
    print(out, 'nops', g.nops, 'lines', len(g.lines), 'bytes', len(g.text()))


if __name__ == '__main__':
    ref = open(f'cdna_kernels/{NAME}.s.ref').read()
    header = ref[:ref.index('; @launch')]
    best = dict(dm=[10, 0, 10, 10], dq=28, wake=10, dr=[None, None, 40], pre=4, late=1, bp=1, io=18, wfl='nt')
    build(f'cdna_kernels/{NAME}.s', header=header, **best)
    build('full_prof.s', prof=True, **best)
    build('full_slow.s', prof=True, force_slow=True, **best)
    build('full_diag.s', prof=True, diag=4, **best)
    build('full_h.s', prof=2, header=header, **best)
    import json
    for i, kw in enumerate(json.load(open('fvariants.json'))):
        build(f'fv{i}.s', prof=True, **dict(best, **kw))
```

```python
import re

_REG = re.compile(r'(?<![\w.])([vas])(?:\[(\d+):(\d+)\]|(\d+))(?![\w\[])')


def regs_of(tok):
    out = set()
    for m in _REG.finditer(tok):
        k = m.group(1)
        if m.group(2) is not None:
            for r in range(int(m.group(2)), int(m.group(3)) + 1):
                out.add((k, r))
        else:
            out.add((k, int(m.group(4))))
    if re.search(r'\bvcc(_lo|_hi)?\b', tok):
        out.add(('s', 106)); out.add(('s', 107))
    if re.search(r'\bexec\b', tok):
        out.add(('s', 126)); out.add(('s', 127))
    if re.search(r'\bm0\b', tok):
        out.add(('s', 124))
    return out


def split_ops(s):
    ops, depth, cur = [], 0, ''
    for ch in s:
        if ch in '[(':
            depth += 1
        if ch in '])':
            depth -= 1
        if ch == ',' and depth == 0:
            ops.append(cur.strip()); cur = ''
        else:
            cur += ch
    if cur.strip():
        ops.append(cur.strip())
    return ops


TRANS = ('v_exp_f32', 'v_log_f32', 'v_rcp_f32', 'v_rsq_f32', 'v_sqrt_f32', 'v_sin_f32', 'v_cos_f32')


class Ins:
    __slots__ = ('text', 'mn', 'w', 'r', 'kind', 'passes', 'srcc', 'states', 'dpp', 'sdata', 'ab')

    def __init__(self, text):
        self.text = text
        t = text.split(';')[0].strip()
        parts = t.split(None, 1)
        mn = parts[0]
        self.mn = mn
        ops = split_ops(parts[1]) if len(parts) > 1 else []
        self.w, self.r = set(), set()
        self.srcc = set(); self.sdata = set(); self.ab = set()
        self.passes = 0
        self.states = 1
        self.dpp = ('_dpp' in mn) or ('quad_perm' in t) or ('row_' in t and 'row_mask' in t)
        R = [regs_of(o) for o in ops]
        if mn.startswith('v_mfma') or mn.startswith('v_smfmac'):
            self.kind = 'mfma'
            self.passes = 8 if '32x32' in mn else 4
            if '4x4x4' in mn: self.passes = 2
            if mn.endswith('x4_f32'): self.passes = 8
            if mn.endswith('x2_f32'): self.passes = 16
            self.w = R[0]
            self.ab = R[1] | R[2]
            if mn.startswith('v_smfmac'):
                self.srcc = R[0]
                self.ab |= R[3]
            else:
                self.srcc = R[3]
            self.r = self.ab | self.srcc
        elif mn.startswith('v_'):
            self.kind = 'valu'
            if mn.startswith('v_cmp'):
                self.w = R[0]; self.r = set().union(*R[1:])
                if mn.startswith('v_cmpx'):
                    self.w |= {('s', 126), ('s', 127)}
            elif mn.startswith('v_permlane') and 'swap' in mn:
                self.w = R[0] | R[1]; self.r = R[0] | R[1]
            elif mn.startswith(('v_add_co', 'v_sub_co', 'v_addc_co', 'v_subb_co', 'v_subrev_co', 'v_mad_u64')):
                self.w = R[0] | R[1]; self.r = set().union(*R[2:])
            elif mn == 'v_nop':
                pass
            else:
                self.w = R[0]; self.r = set().union(*R[1:]) if len(R) > 1 else set()
                if mn.startswith(('v_fmac', 'v_dot2c', 'v_writelane')) or self.dpp or 'UNUSED_PRESERVE' in t:
                    self.r |= R[0]
        elif mn.startswith('ds_'):
            self.kind = 'ds'
            if mn.startswith(('ds_read', 'ds_bpermute', 'ds_permute', 'ds_swizzle')) or '_rtn' in mn:
                self.w = R[0]; self.r = set().union(*R[1:])
            else:
                self.r = set().union(*R)
        elif mn.startswith(('buffer_', 'global_', 'flat_')):
            self.kind = 'vmem'
            islds = bool(re.search(r'\blds\b', t)) or '_lds_' in mn
            if mn.startswith(('buffer_wbl2', 'buffer_inv')):
                pass
            elif 'load' in mn and not islds:
                self.w = R[0]; self.r = set().union(*R[1:])
            elif 'atomic' in mn and re.search(r'\bsc0\b', t):
                if mn.startswith('buffer'):
                    self.w = R[0]; self.r = set().union(*R)
                else:
                    self.w = R[0]; self.r = set().union(*R[1:])
            else:
                self.r = set().union(*R)
                if islds:
                    self.r.add(('s', 124))
                if 'store' in mn and ('x3' in mn or 'x4' in mn):
                    self.sdata = R[0] if mn.startswith('buffer') else R[1]
        elif mn.startswith('s_'):
            self.kind = 'salu'
            if mn == 's_nop':
                self.states = int(ops[0], 0) + 1
            elif mn.startswith(('s_cmp', 's_cbranch', 's_branch', 's_waitcnt', 's_barrier', 's_endpgm', 's_sleep',
                                's_setprio', 's_bitcmp', 's_wakeup')):
                self.r = set().union(*R) if R else set()
            else:
                if R:
                    self.w = R[0]; self.r = set().union(*R[1:]) if len(R) > 1 else set()
                if 'saveexec' in mn:
                    self.w |= {('s', 126), ('s', 127)}
        else:
            raise ValueError('unknown instruction ' + text)


def vregs(s):
    return {x for x in s if x[0] in 'va'}


def sregs(s):
    return {x for x in s if x[0] == 's'}


def need_states(p, c):
    n = 0
    pv, ps = vregs(p.w), sregs(p.w)
    if p.kind == 'valu':
        if c.kind == 'mfma' and pv & c.r: n = max(n, 2)
        if c.kind == 'valu':
            if c.dpp and pv & c.r: n = max(n, 2)
            if c.mn.startswith('v_permlane') and pv & c.r: n = max(n, 2)
            if c.mn.startswith(('v_readlane', 'v_readfirstlane')) and pv & c.r: n = max(n, 1)
            if p.mn.startswith(TRANS) and pv & c.r: n = max(n, 1)
            if ps & c.r:
                n = max(n, 4 if c.mn.startswith(('v_readlane', 'v_writelane')) else 2)
            if ('s', 126) in ps:
                if c.dpp: n = max(n, 5)
                if c.mn.startswith(('v_readlane', 'v_readfirstlane', 'v_writelane', 'v_permlane')): n = max(n, 4)
            if ('sdwa' in p.mn or ('op_sel' in p.text and not p.mn.startswith('v_pk_'))) and pv & (c.r | c.w): n = max(n, 1)
        if c.kind == 'mfma' and ('s', 126) in ps: n = max(n, 4)
        if c.kind == 'vmem' and ps & c.r: n = max(n, 5)
        if c.kind == 'salu' and ps & c.r: n = max(n, 1)
    if p.kind == 'salu':
        if ('s', 124) in p.w and ('s', 124) in c.r and c.kind in ('vmem', 'ds'): n = max(n, 1)
    if p.kind == 'mfma':
        P = p.passes
        big = {2: 5, 4: 8, 8: 12, 16: 20}[P]
        if c.kind == 'mfma':
            if p.w & c.ab: n = max(n, big)
            if p.w & c.srcc:
                if p.w == c.srcc and c.mn == p.mn:
                    n = max(n, 2 if P == 2 else 0)
                else:
                    n = max(n, {2: 4, 4: 6, 8: 10, 16: 18}[P])
            elif p.w & c.w:
                n = max(n, big)
        elif c.kind in ('valu', 'ds', 'vmem'):
            if p.w & (c.r | c.w): n = max(n, big)
            if c.kind == 'valu' and p.srcc & c.w: n = max(n, {2: 1, 4: 3, 8: 7, 16: 15}[P])
    if p.kind == 'vmem' and p.sdata:
        if p.sdata & c.w: n = max(n, 2)
    return n


class Gen:
    def __init__(self):
        self.lines = []
        self.hist = []
        self.lds_q = []
        self.vm_q = []
        self.nlabel = 0
        self.nops = 0
        self.clock = 0
        self.lds_t = {}
        self.ahead = None

    def raw(self, s):
        self.lines.append(s)

    def c(self, s):
        self.lines.append('    ; ' + s)

    def newlabel(self, base='L'):
        self.nlabel += 1
        return f'{base}_{self.nlabel}'

    def label(self, name):
        self.lines.append(name + ':')

    def pad(self, n):
        while n > 0:
            k = min(n, 16)
            self._put(Ins(f's_nop {k-1}'))
            self.nops += k
            n -= k

    def _put(self, ins):
        self.lines.append('    ' + ins.text)
        self.hist.append(ins)
        if len(self.hist) > 26:
            self.hist.pop(0)

    def _dists(self, nxt_is_mfma):
        out = []
        H = self.hist
        for k in range(len(H)):
            t, free = 0, 0
            for q in H[k:]:
                if q.kind == 'mfma':
                    t = max(t, free)
                    free = t + q.passes
                t += q.states
            plain = t
            if nxt_is_mfma:
                t = max(t, free)
            out.append((H[k], t - 1, plain - 1))
        return out

    def i(self, text, tag=None):
        ins = Ins(text)
        need = 0
        for p, have, plain in self._dists(ins.kind == 'mfma'):
            n = need_states(p, ins)
            if n > have:
                need = max(need, n - plain)
        if need > 0:
            self.pad(need)
        self._put(ins)
        if ins.kind == 'mfma':
            self.clock += 1
        if ins.kind == 'ds':
            self.lds_q.append(tag)
            self.lds_when = getattr(self, 'lds_when', []) + [self.clock]
        elif ins.kind == 'vmem':
            self.vm_q.append(tag)
        return ins

    def settle(self):
        need = 0
        for p, have, plain in self._dists(False):
            if p.kind == 'mfma':
                n = {2: 5, 4: 8, 8: 12, 16: 20}[p.passes]
            elif p.kind == 'valu':
                n = 5 if sregs(p.w) else 2
            elif p.kind == 'vmem' and p.sdata:
                n = 2
            elif p.kind == 'salu' and ('s', 124) in p.w:
                n = 1
            else:
                n = 0
            need = max(need, n - have)
        if need > 0:
            self.pad(need)

    def forget(self):
        self.hist = []

    def _cnt(self, q, tag):
        idx = [k for k, t in enumerate(q) if t == tag]
        if not idx:
            return None
        return len(q) - 1 - idx[-1]

    def wait_lds(self, tag=None):
        if tag is None:
            n = 0
        else:
            n = self._cnt(self.lds_q, tag)
            if n is None:
                return
        assert n <= 15, n
        self.i(f's_waitcnt lgkmcnt({n})')
        self.lds_q = self.lds_q[len(self.lds_q) - n:] if n else []

    def wait_lds2(self, *tags):
        c = [n for n in (self._cnt(self.lds_q, t) for t in tags if t is not None) if n is not None]
        if c:
            n = min(c)
            if self.ahead is not None:
                while n > 0 and self.clock - self.lds_when[-n] >= self.ahead:
                    n -= 1
            assert n <= 15
            self.i(f's_waitcnt lgkmcnt({n})')
            self.lds_q = self.lds_q[len(self.lds_q) - n:] if n else []

    def wait_vm(self, tag=None):
        if tag is None:
            n = 0
        else:
            n = self._cnt(self.vm_q, tag)
            if n is None:
                return
        assert n <= 63, n
        self.i(f's_waitcnt vmcnt({n})')
        self.vm_q = self.vm_q[len(self.vm_q) - n:] if n else []

    def text(self):
        return '\n'.join(self.lines) + '\n'


def vr(b, n=1):
    return f'v{b}' if n == 1 else f'v[{b}:{b+n-1}]'


def ar(b, n=1):
    return f'a{b}' if n == 1 else f'a[{b}:{b+n-1}]'


def sr(b, n=1):
    return f's{b}' if n == 1 else f's[{b}:{b+n-1}]'
```

```python
import math
from asmgen import *
from layout import *
from chain import S_WS, S_W8, S_DBG, S_W, S_PTR, SPIN_MAX, f2u

S_RANK = 15
S_G, S_I, S_LN = 36, 37, 38
P_MEM0, P_WQ, P_WK, P_WV, P_WO = S_PTR, S_PTR + 2, S_PTR + 4, S_PTR + 6, S_PTR + 8
P_X, P_W1, P_W2, P_OUT = 60, 62, 64, 66
S_X4, S_O4 = 68, 72
T0, T1, T2, T3 = 42, 43, 44, 45
S_TRY = 41
WS = f's[{S_WS}:{S_WS+3}]'
W8 = f's[{S_W8}:{S_W8+3}]'
LOG2E = math.log2(math.e)
V_L, V_L16 = 0, 1


def wreg(n, cnt=4):
    return ar(n, cnt) if n < 256 else vr(224 + n - 256, cnt)


class Bulk:
    def __init__(self, g, bail, opt=()):
        self.opt = set(opt)
        self.ahead = 9
        self.asleep = 8
        self.early = 1
        self.g = g
        self.bail = bail

    def srd(self, dst, ptr, nbytes):
        g = self.g
        g.i(f's_mov_b32 s{dst}, s{ptr}')
        g.i(f's_mov_b32 s{dst+1}, s{ptr+1}')
        g.i(f's_mov_b32 s{dst+2}, {nbytes}')
        g.i(f's_mov_b32 s{dst+3}, 0x20000')

    def spin(self, load, test, sleep=4):
        g = self.g
        lp, ok = g.newlabel('sp'), g.newlabel('sp')
        g.i(f's_mov_b32 s{S_TRY}, 0')
        g.settle()
        g.label(lp)
        load()
        test()
        g.i(f's_cbranch_scc1 {ok}')
        g.i(f's_sleep {sleep}')
        g.i(f's_add_u32 s{S_TRY}, s{S_TRY}, 1')
        g.i(f's_cmp_lt_u32 s{S_TRY}, {SPIN_MAX}')
        g.i(f's_cbranch_scc1 {lp}')
        g.i(f's_branch {self.bail}')
        g.label(ok)

    def wait_word(self, soff, need, vt, sleep=4):
        g = self.g

        def load():
            g.i(f'buffer_load_dword v{vt}, off, {WS}, s{soff} sc1')
            g.wait_vm()

        def test():
            g.i(f'v_readfirstlane_b32 s{T3}, v{vt}')
            g.i(f's_cmp_ge_u32 s{T3}, {need}')
        self.spin(load, test, sleep)

    def wait_ln(self, vt, word=DBG_LNOK):
        g = self.g
        sk = g.newlabel('wl')
        g.i(f's_cmp_lg_u32 s{S_W}, 0')
        g.i(f's_cbranch_scc1 {sk}')
        g.i(f'v_mov_b32 v{vt+1}, {word}')

        def load():
            g.i(f'global_load_dword v{vt}, v{vt+1}, s[{S_DBG}:{S_DBG+1}] sc1')
            g.wait_vm()

        def test():
            g.i(f'v_readfirstlane_b32 s{T3}, v{vt}')
            g.i(f's_cmp_lg_u32 s{T3}, 0')
        self.spin(load, test, 8)
        g.label(sk)
        g.i('s_barrier')

    def setup(self):
        g = self.g
        g.i(f'v_lshlrev_b32 v{V_L16}, 4, v{V_L}')
        self.srd(S_X4, P_X, 2359296)
        self.srd(S_O4, P_OUT, 2359296)

    def warm_w2(self):
        g = self.g
        sk = g.newlabel('w2')
        g.i(f's_cmp_lt_u32 s{S_I}, 30')
        g.i(f's_cbranch_scc1 {sk}')
        g.i(f's_mov_b32 s{T2}, {OFF_FLAG + FL_KM}')
        self.wait_word(T2, 1, 2, 40)
        g.i(f'v_lshlrev_b32 v8, 7, v{V_L}')
        self.srd(S_W8, P_W2, 5308416)
        g.i(f's_lshl_b32 s{T0}, s{S_G}, 1')
        g.i(f's_add_u32 s{T0}, s{T0}, s{S_I}')
        g.i(f's_sub_u32 s{T0}, s{T0}, 30')
        g.i(f's_lshl_b32 s{T0}, s{T0}, 2')
        g.i(f's_add_u32 s{T0}, s{T0}, s{S_W}')
        g.i(f's_lshl_b32 s{T0}, s{T0}, 13')
        for n in range(14):
            g.i(f'buffer_load_dword v9, v8, {W8}, s{T0} offen')
            g.i(f's_add_u32 s{T0}, s{T0}, {48 * 8192}')
        g.wait_vm()
        g.label(sk)

    def decode(self):
        g = self.g
        g.i(f's_lshr_b32 s{S_G}, s{S_RANK}, 5')
        g.i(f's_sub_u32 s{S_G}, s{S_G}, 1')
        g.i(f's_and_b32 s{S_I}, s{S_RANK}, 31')
        g.i(f's_mul_i32 s{S_LN}, s{S_G}, 9')
        g.i(f's_add_u32 s{S_LN}, s{S_LN}, s{S_I}')
        g.i(f's_add_u32 s{S_LN}, s{S_LN}, 16')
        g.i(f's_sub_u32 s{T0}, s{S_I}, 16')
        g.i(f's_cmp_lt_u32 s{T0}, 9')
        g.i(f's_cselect_b32 s{S_LN}, s{S_LN}, 64')
        g.i(f's_cmp_lt_u32 s{S_RANK}, 32')
        g.i(f's_cselect_b32 s{S_LN}, s{S_RANK}, s{S_LN}')

    def layernorm(self):
        g = self.g
        VA, VO, VS, VQ, VM, VR, VT, VU = 2, 3, 4, 5, 6, 8, 10, 12
        D, F = 16, 64
        g.i(f'v_and_b32 v{VT}, 7, v{V_L}')
        g.i(f'v_lshrrev_b32 v{VU}, 3, v{V_L}')
        g.i(f'v_mul_u32_u24 v{VA}, 1152, v{VU}')
        g.i(f'v_lshl_add_u32 v{VA}, v{VT}, 4, v{VA}')
        g.i(f's_lshl_b32 s20, s{S_LN}, 2')
        g.i(f's_add_u32 s20, s20, s{S_W}')
        g.i(f's_mul_i32 s{T0}, s20, 9216')
        g.vm_q = []
        for i in range(9):
            g.i(f'buffer_load_dwordx4 {vr(D + 4*i, 4)}, v{VA}, s[{S_X4}:{S_X4+3}], s{T0} offen offset:{128*i}', tag=('x', i))
        g.i(f'v_lshlrev_b32 v{VO}, 9, v{VT}')
        g.i(f'v_lshl_add_u32 v{VO}, v{VU}, 4, v{VO}')
        g.i(f'v_mov_b32 v{VS}, 0')
        g.i(f'v_lshlrev_b32 v{VQ}, 2, v{V_L}')
        g.i(f's_lshl_b32 s{T0}, s20, 8')
        g.i(f's_add_u32 s{T0}, s{T0}, {OFF_FLAG}')
        g.i(f'buffer_store_dword v{VS}, v{VQ}, {WS}, s{T0} offen sc1')
        for k in range(4):
            g.i(f'v_mov_b32 v{F+k}, -1')
        g.i(f's_lshl_b32 s{T0}, s20, 11')
        g.i(f's_add_u32 s{T0}, s{T0}, {OFF_KM + SEG_DIRECT * 131072}')
        g.i(f'buffer_store_dwordx4 {vr(F,4)}, v{V_L16}, {WS}, s{T0} offen sc1')
        g.i(f'buffer_store_dwordx4 {vr(F,4)}, v{V_L16}, {WS}, s{T0} offen offset:1024 sc1')
        g.i(f's_add_u32 s{T0}, s{T0}, {(OFF_O + 62 * 262144 - OFF_KM - SEG_DIRECT * 131072) & 0xffffffff}')
        g.i(f'buffer_store_dwordx4 {vr(F,4)}, v{V_L16}, {WS}, s{T0} offen sc1')
        g.i(f'buffer_store_dwordx4 {vr(F,4)}, v{V_L16}, {WS}, s{T0} offen offset:1024 sc1')

        def allsum(r):
            g.i(f'v_add_f32_dpp v{r}, v{r}, v{r} quad_perm:[1,0,3,2] row_mask:0xf bank_mask:0xf')
            g.i(f'v_add_f32_dpp v{r}, v{r}, v{r} quad_perm:[2,3,0,1] row_mask:0xf bank_mask:0xf')
            g.i(f'v_add_f32_dpp v{r}, v{r}, v{r} row_half_mirror row_mask:0xf bank_mask:0xf')

        def rnd(r):
            g.i(f'v_cvt_pk_bf16_f32 v{r}, v{r}, v{r}')
            g.i(f'v_and_b32 v{r}, 0xffff0000, v{r}')
        for k in range(36):
            if k % 4 == 0:
                g.wait_vm(('x', k // 4))
            g.i(f'v_lshlrev_b32 v{F+2*k}, 16, v{D+k}')
            g.i(f'v_and_b32 v{F+2*k+1}, 0xffff0000, v{D+k}')
            if k == 1:
                g.i(f'v_pk_add_f32 {vr(VT,2)}, {vr(F,2)}, {vr(F+2,2)}')
            elif k > 1:
                g.i(f'v_pk_add_f32 {vr(VT,2)}, {vr(VT,2)}, {vr(F+2*k,2)}')
        g.i(f'v_add_f32 v{VS}, v{VT}, v{VT+1}')
        allsum(VS)
        g.i(f'v_mul_f32 v{VM}, {f2u(1/576):#x}, v{VS}')
        for k in range(36):
            g.i(f'v_pk_add_f32 {vr(VU,2)}, {vr(F+2*k,2)}, {vr(VM,2)} op_sel_hi:[1,0] neg_lo:[0,1] neg_hi:[0,1]')
            if k == 0:
                g.i(f'v_pk_mul_f32 {vr(VT,2)}, {vr(VU,2)}, {vr(VU,2)}')
            else:
                g.i(f'v_pk_fma_f32 {vr(VT,2)}, {vr(VU,2)}, {vr(VU,2)}, {vr(VT,2)}')
        g.i(f'v_add_f32 v{VQ}, v{VT}, v{VT+1}')
        allsum(VQ)
        g.i(f'v_mul_f32 v{VQ}, {f2u(1/576):#x}, v{VQ}')
        rnd(VQ)
        g.i(f'v_add_f32 v{VQ}, {f2u(1e-5):#x}, v{VQ}')
        rnd(VQ)
        g.i(f'v_sqrt_f32 v{VQ}, v{VQ}')
        rnd(VQ)
        g.i(f'v_rcp_f32 v{VR}, v{VQ}')
        rnd(VM)
        g.i(f's_mul_i32 s{T0}, s{S_LN}, 36864')
        g.i(f's_lshl_b32 s{T1}, s{S_W}, 7')
        g.i(f's_add_u32 s{T0}, s{T0}, s{T1}')
        for k in range(36):
            a, d = F + 2 * k, D + k
            g.i(f'v_pk_add_f32 {vr(a,2)}, {vr(a,2)}, {vr(VM,2)} op_sel_hi:[1,0] neg_lo:[0,1] neg_hi:[0,1]')
            g.i(f'v_cvt_pk_bf16_f32 v{d}, v{a}, v{a+1}')
            g.i(f'v_lshlrev_b32 v{a}, 16, v{d}')
            g.i(f'v_and_b32 v{a+1}, 0xffff0000, v{d}')
            g.i(f'v_pk_mul_f32 {vr(a,2)}, {vr(a,2)}, {vr(VR,2)} op_sel_hi:[1,0]')
            g.i(f'v_cvt_pk_bf16_f32 v{d}, v{a}, v{a+1}')
            if k % 4 == 3:
                g.i(f's_add_u32 s{T1}, s{T0}, {OFF_XN + 4096*(k//4)}')
                g.i(f'buffer_store_dwordx4 {vr(d-3, 4)}, v{VO}, {WS}, s{T1} offen sc1')
        g.wait_vm()
        g.i('s_barrier')
        sk = g.newlabel('lns')
        g.i(f's_cmp_lg_u32 s{S_W}, 0')
        g.i(f's_cbranch_scc1 {sk}')
        g.i('s_mov_b64 exec, 1')
        g.i(f'v_mov_b32 v2, {DBG_LN}')
        g.i('v_mov_b32 v3, 1')
        g.i(f'global_atomic_add v4, v2, v3, s[{S_DBG}:{S_DBG+1}] sc0')
        g.i(f'v_mov_b32 v2, {DBG_LNOK}')
        g.wait_vm()
        g.i(f'v_readfirstlane_b32 s{T0}, v4')
        nl = g.newlabel('lns')
        g.i(f's_cmp_lg_u32 s{T0}, {N_LN - 1}')
        g.i(f's_cbranch_scc1 {nl}')
        g.i(f'global_store_dword v2, v3, s[{S_DBG}:{S_DBG+1}] sc1')
        g.label(nl)
        g.i('s_mov_b64 exec, -1')
        g.label(sk)

    def load_weights(self, ntile, nstep, s_off, s_pitch, NB=9):
        g = self.g
        VA, VT, VX, VY = 2, 3, 4, 5
        seg = 64 * ntile
        lpr = seg // 16
        rpi = 1024 // seg
        spb = 4 * rpi // 16
        nblk = nstep // spb
        sh = lpr.bit_length() - 1
        g.i(f'v_lshrrev_b32 v{VX}, {sh}, v{V_L}')
        g.i(f'v_mul_lo_u32 v{VA}, v{VX}, s{s_pitch}')
        g.i(f'v_and_b32 v{VX}, {lpr-1}, v{V_L}')
        g.i(f'v_lshl_add_u32 v{VA}, v{VX}, 4, v{VA}')
        g.i(f'v_lshrrev_b32 v{VX}, 5, v{V_L}')
        g.i(f'v_bfe_u32 v{VY}, v{V_L}, 2, 2')
        g.i(f'v_lshl_add_u32 v{VX}, v{VX}, 3, v{VY}')
        g.i(f'v_mul_u32_u24 v{VT}, {seg}, v{VX}')
        g.i(f'v_bfe_u32 v{VX}, v{V_L}, 4, 1')
        g.i(f'v_lshl_add_u32 v{VT}, v{VX}, 5, v{VT}')
        g.i(f'v_and_b32 v{VX}, 3, v{V_L}')
        g.i(f'v_lshl_add_u32 v{VT}, v{VX}, 3, v{VT}')
        g.i(f's_mul_i32 s{T2}, s{S_W}, {NB * 4096}')
        g.i(f'v_add_u32 v{VT}, s{T2}, v{VT}')
        g.i(f's_mul_i32 s{T1}, s{s_pitch}, {rpi}')
        g.i(f's_mov_b32 s{T0}, s{s_off}')
        g.vm_q = []

        def issue(n):
            for q in range(4):
                g.i(f's_add_u32 m0, s{T2}, {(n % NB) * 4096 + q * 1024}')
                g.i(f'buffer_load_dwordx4 v{VA}, {W8}, s{T0} offen {"nt" if "wnt" in self.opt else ""} lds', tag=('w', n))
                g.i(f's_add_u32 s{T0}, s{T0}, s{T1}')
        for n in range(min(NB, nblk)):
            issue(n)
        for n in range(nblk):
            g.wait_vm(('w', n))
            for st in range(spb):
                for x in range(ntile):
                    r = 4 * ((n * spb + st) * ntile + x)
                    for hf in range(2):
                        off = (n % NB) * 4096 + (16 * st + 4 * hf) * seg + 64 * x
                        g.i(f'ds_read_b64_tr_b16 {wreg(r + 2*hf, 2)}, v{VT} offset:{off}')
            g.wait_lds()
            if n + NB < nblk:
                issue(n + NB)

    def silu_ops(self, src, a, b, t):
        return [f'v_lshlrev_b32 v{a}, 16, v{src}', f'v_and_b32 v{b}, 0xffff0000, v{src}',
                f'v_mul_f32 v{t}, {f2u(-LOG2E):#x}, v{a}', f'v_mul_f32 v{t+1}, {f2u(-LOG2E):#x}, v{b}',
                f'v_exp_f32 v{t}, v{t}', f'v_exp_f32 v{t+1}, v{t+1}',
                f'v_add_f32 v{t}, 1.0, v{t}', f'v_add_f32 v{t+1}, 1.0, v{t+1}',
                f'v_rcp_f32 v{t}, v{t}', f'v_rcp_f32 v{t+1}, v{t+1}',
                f'v_mul_f32 v{a}, v{a}, v{t}', f'v_mul_f32 v{b}, v{b}, v{t+1}',
                f'v_cvt_pk_bf16_f32 v{src}, v{a}, v{b}']

    def project(self):
        g = self.g
        S_B, S_REP, S_OFF, S_PITCH, S_OUT, S_OSTR, S_A, S_N, S_IT, S_FL, S_ST, S_LW, S_SW = range(16, 29)
        dec, q2 = g.newlabel('pj'), g.newlabel('pj')
        S_NR = 29
        g.i(f's_mov_b32 s{S_NR}, 3')
        g.i(f's_cmp_lt_u32 s{S_I}, 25')
        g.i(f's_cselect_b32 s{T0}, 9, 5')
        g.i(f's_cselect_b32 s{T1}, 16, 25')
        g.i(f's_cselect_b32 s{T2}, 48, 32')
        g.i(f's_cmp_lt_u32 s{S_I}, 16')
        g.i(f's_cselect_b32 s{T0}, 16, s{T0}')
        g.i(f's_cselect_b32 s{T1}, 0, s{T1}')
        g.i(f's_cselect_b32 s{T2}, 0, s{T2}')
        g.i(f's_mul_i32 s{T0}, s{T0}, s{S_G}')
        g.i(f's_add_u32 s{T0}, s{T0}, s{S_I}')
        g.i(f's_sub_u32 s{T0}, s{T0}, s{T1}')
        g.i(f's_mul_hi_u32 s{S_B}, s{T0}, {(1 << 32) // 3 + 1}')
        g.i(f's_mul_i32 s{T1}, s{S_B}, 3')
        g.i(f's_sub_u32 s{S_REP}, s{T0}, s{T1}')
        g.i(f's_add_u32 s{S_B}, s{S_B}, s{T2}')
        g.i(f's_cmp_lt_u32 s{S_I}, 30')
        g.i(f's_cbranch_scc1 {q2}')
        g.i(f's_and_b32 s{S_REP}, s{S_I}, 1')
        g.i(f's_add_u32 s{S_B}, s{S_G}, {Q2}')
        g.i(f's_mov_b32 s{S_NR}, 2')
        g.label(q2)
        if 'eager' not in self.opt:
            g.i(f's_cmp_lt_u32 s{S_I}, 16')
            g.i(f's_cbranch_scc1 {dec}')
            self.wait_ln(2)
            g.label(dec)
        lq, lh, lv, go = [g.newlabel('pj') for _ in range(4)]
        VST = 6
        g.i(f'v_mov_b32 v{VST}, v{V_L16}')
        g.i(f's_mov_b32 s{S_PITCH}, 8192')
        g.i(f's_mov_b32 s{S_OSTR}, {32 * 8192}')
        g.i(f's_and_b32 s{T2}, s{S_W}, 1')
        g.i(f's_cmp_ge_u32 s{S_B}, 48')
        g.i(f's_cbranch_scc1 {lh}')
        g.i(f's_cmp_ge_u32 s{S_B}, 32')
        g.i(f's_cbranch_scc1 {lq}')
        g.i(f's_lshl_b32 s{S_OFF}, s{S_B}, 8')
        g.i(f's_lshl_b32 s{T0}, s{T2}, 7')
        g.i(f's_add_u32 s{S_OFF}, s{S_OFF}, s{T0}')
        g.i(f's_lshl_b32 s{S_OUT}, s{S_B}, 13')
        g.i(f's_lshl_b32 s{T0}, s{T2}, 12')
        g.i(f's_add_u32 s{S_OUT}, s{S_OUT}, s{T0}')
        g.i(f's_cmp_ge_u32 s{S_W}, 2')
        g.i(f's_cbranch_scc1 {lv}')
        self.srd(S_W8, P_WK, 4718592)
        g.i(f's_add_u32 s{S_OUT}, s{S_OUT}, {OFF_KX}')
        g.i(f'v_and_b32 v{VST}, 35, v{V_L}')
        g.i(f'v_bfe_u32 v2, v{V_L}, 3, 2')
        g.i(f'v_lshl_add_u32 v{VST}, v2, 2, v{VST}')
        g.i(f'v_bfe_u32 v2, v{V_L}, 2, 1')
        g.i(f'v_lshl_add_u32 v{VST}, v2, 4, v{VST}')
        g.i(f'v_lshlrev_b32 v{VST}, 4, v{VST}')
        g.i(f's_mov_b32 s{S_SW}, 0')
        g.i(f's_branch {go}')
        g.label(lv)
        self.srd(S_W8, P_WV, 4718592)
        g.i(f's_add_u32 s{S_OUT}, s{S_OUT}, {OFF_VX}')
        g.i(f's_mov_b32 s{S_SW}, 1')
        g.i(f's_branch {go}')
        g.label(lq)
        g.i(f's_sub_u32 s{T0}, s{S_B}, 32')
        g.i(f's_lshl_b32 s{T0}, s{T0}, 2')
        g.i(f's_add_u32 s{T0}, s{T0}, s{S_W}')
        g.i(f's_lshl_b32 s{S_OFF}, s{T0}, 7')
        g.i(f's_lshl_b32 s{S_OUT}, s{T0}, 12')
        g.i(f's_add_u32 s{S_OUT}, s{S_OUT}, {OFF_QX}')
        self.srd(S_W8, P_WQ, 4718592)
        g.i(f's_mov_b32 s{S_SW}, 0')
        g.i(f's_branch {go}')
        g.label(lh)
        g.i(f's_sub_u32 s{T0}, s{S_B}, 48')
        g.i(f's_lshl_b32 s{T0}, s{T0}, 2')
        g.i(f's_add_u32 s{T0}, s{T0}, s{S_W}')
        g.i(f's_lshl_b32 s{S_OFF}, s{T0}, 7')
        g.i(f's_lshl_b32 s{S_OUT}, s{T0}, 12')
        g.i(f's_add_u32 s{S_OUT}, s{S_OUT}, {OFF_H}')
        g.i(f's_mov_b32 s{S_PITCH}, 9216')
        g.i(f's_mov_b32 s{S_OSTR}, 294912')
        self.srd(S_W8, P_W1, 5308416)
        g.i(f's_mov_b32 s{S_SW}, 2')
        g.label(go)
        self.load_weights(2, 36, S_OFF, S_PITCH)
        g.i(f's_mul_i32 s{T0}, s{S_OSTR}, s{S_REP}')
        g.i(f's_add_u32 s{S_OUT}, s{S_OUT}, s{T0}')
        g.i(f's_mul_i32 s{S_OSTR}, s{S_OSTR}, s{S_NR}')
        g.i(f's_sub_u32 s{S_OUT}, s{S_OUT}, s{S_OSTR}')
        g.i(f's_mul_i32 s{S_A}, s{S_REP}, 36864')
        g.i(f's_mul_i32 s{S_LW}, s{S_W}, 9216')
        g.i(f's_add_u32 s{S_A}, s{S_A}, s{S_LW}')
        g.i(f's_cmp_eq_u32 s{S_REP}, 0')
        g.i(f's_cselect_b32 s{S_N}, 22, 21')
        g.i(f's_cmp_eq_u32 s{S_NR}, 2')
        g.i(f's_cselect_b32 s{S_N}, 32, s{S_N}')
        g.i(f's_mul_i32 s{S_NR}, s{S_NR}, 36864')
        g.i(f's_lshl_b32 s{S_FL}, s{S_REP}, 7')
        g.i(f's_add_u32 s{S_FL}, s{S_FL}, s{S_B}')
        g.i(f's_lshl_b32 s{S_FL}, s{S_FL}, 7')
        g.i(f's_add_u32 s{S_FL}, s{S_FL}, {OFF_FLAG + FL_P1}')
        self.stamp()
        self.wait_ln(2)
        if 'now2' not in self.opt:
            self.warm_w2()
        VA, VP = 2, 3
        ACC, PK, RING, TMP = 16, 48, 64, 96

        def dma(stage_sgpr):
            L = []
            for q in range(3):
                for z in range(3):
                    def f(q=q, z=z):
                        if z == 0:
                            g.i(f's_add_u32 m0, s{stage_sgpr}, {q * 3072}')
                            g.i(f's_add_u32 s{T0}, s{S_A}, {OFF_XN + q * 3072}')
                        g.i(f'buffer_load_dwordx4 v{V_L16}, {WS}, s{T0} offen offset:{1024*z} sc1 lds')
                    L.append(f)
            L.append(lambda: g.i(f's_add_u32 s{S_A}, s{S_A}, s{S_NR}'))
            return L
        for st in range(2):
            g.i(f's_add_u32 s{T1}, s{S_LW}, {st * 36864}')
            for f in dma(T1):
                f()
        if 'cyc' in self.opt:
            g.i('s_memtime s[96:97]')
            g.i('s_memrealtime s[98:99]')
            g.i('s_waitcnt lgkmcnt(0)')
        g.i(f's_mov_b32 s{S_IT}, 0')
        g.i(f's_mov_b32 s{S_ST}, 0')
        labs = [g.newlabel('pv') for _ in range(3)]
        end = g.newlabel('pe')
        g.i(f's_cmp_eq_u32 s{S_SW}, 1')
        g.i(f's_cbranch_scc1 {labs[1]}')
        g.i(f's_cmp_eq_u32 s{S_SW}, 2')
        g.i(f's_cbranch_scc1 {labs[2]}')

        def epilogue_ops(silu):
            L = []
            if silu:
                for k in range(0, 16, 2):
                    A = self.silu_ops(PK + k, TMP, TMP + 1, TMP + 2)
                    B = self.silu_ops(PK + k + 1, TMP + 4, TMP + 5, TMP + 6)
                    for p, q in zip(A, B):
                        L += [p, q]
            for n in range(4):
                p = PK + 4 * n
                L += [f'v_permlane32_swap_b32 v{p}, v{p+2}', f'v_permlane32_swap_b32 v{p+1}, v{p+3}',
                      f'buffer_store_dwordx4 {vr(p,4)}, v{VST}, {WS}, s{S_OUT} offen offset:{1024*n} {"" if "plainst" in self.opt else "sc1"}']
            return L

        def publish(sval):
            sk = g.newlabel('pp')
            g.i(f's_cmp_lg_u32 s{S_W}, 0')
            g.i(f's_cbranch_scc1 {sk}')
            g.i(f'v_mov_b32 v{VP}, s{sval}')
            g.i('s_mov_b64 exec, 1')
            g.i(f'buffer_store_dword v{VP}, off, {WS}, s{S_FL} sc1')
            g.i('s_mov_b64 exec, -1')
            g.label(sk)

        for var in range(3):
            g.label(labs[var])
            g.forget()
            silu = var == 2
            first, top = g.newlabel('pf'), g.newlabel('pt')

            def head(cnt):
                g.lds_q = []
                g.i(f's_waitcnt vmcnt({cnt})')
                g.i('s_barrier')
                g.i(f'v_add_u32 v{VA}, s{S_ST}, v{V_L16}')
                for u in range(5):
                    g.i(f'ds_read_b128 {vr(RING + 4*u, 4)}, v{VA} offset:{1024*u}', tag=('a', u))

            def body(with_epi):
                g.lds_q = [('a', u) for u in range(5)]

                def pubs():
                    g.i(f's_sub_u32 s{T2}, s{S_IT}, 2')
                    g.i(f's_max_i32 s{T2}, s{T2}, 0')
                    publish(T2)

                def stage():
                    g.i(f's_sub_u32 s{T1}, s{S_ST}, 36864')
                    g.i(f's_cmp_eq_u32 s{S_ST}, 0')
                    g.i(f's_cselect_b32 s{T1}, {2 * 36864}, s{T1}')
                    g.i(f's_add_u32 s{T1}, s{T1}, s{S_LW}')

                def nxt():
                    g.i(f's_add_u32 s{S_ST}, s{S_ST}, 36864')
                    g.i(f's_cmp_eq_u32 s{S_ST}, {3 * 36864}')
                    g.i(f's_cselect_b32 s{S_ST}, 0, s{S_ST}')
                    g.i(f's_add_u32 s{S_IT}, s{S_IT}, 1')
                dq = [pubs, stage] + dma(T1) + [nxt]
                fill = epilogue_ops(silu) if with_epi else []
                per = 4 if silu else 1
                order = [(u, x) for u in range(33) for x in range(2)] + [(33, 0), (34, 0), (35, 0), (33, 1), (34, 1), (35, 1)]
                for u, x in order:
                    g.wait_lds(('a', u))
                    a = vr(RING + 4 * (u % 6), 4)
                    w = wreg(4 * (2 * u + x))
                    c = vr(ACC + 16 * x, 16) if u else '0'
                    ops = f'{a}, {w}' if var == 1 else f'{w}, {a}'
                    g.i(f'v_mfma_f32_32x32x16_bf16 {vr(ACC + 16*x, 16)}, {ops}, {c}')
                    if x == 0 and u + 5 < 36:
                        g.i(f'ds_read_b128 {vr(RING + 4*((u+5) % 6), 4)}, v{VA} offset:{1024*(u+5)}', tag=('a', u + 5))
                    if x == 1 and dq:
                        dq.pop(0)()
                    for _ in range(per):
                        if fill and not (dq and fill[0].startswith('buffer')):
                            g.i(fill.pop(0))
                    if (u, x) in ((34, 1), (35, 1)):
                        assert not fill
                        for k in range(4 * (u - 34), 4 * (u - 33)):
                            g.i(f'v_cvt_pk_bf16_f32 v{PK+k}, v{ACC+2*k}, v{ACC+2*k+1}')
                g.i(f's_add_u32 s{S_OUT}, s{S_OUT}, s{S_OSTR}')
                head(13 if with_epi else 9)
                for k in range(8, 16):
                    g.i(f'v_cvt_pk_bf16_f32 v{PK+k}, v{ACC+2*k}, v{ACC+2*k+1}')
            head(9)
            body(False)
            g.settle()
            g.label(top)
            body(True)
            g.i(f's_cmp_lt_u32 s{S_IT}, s{S_N}')
            g.settle()
            g.i(f's_cbranch_scc1 {top}')
            for f in epilogue_ops(silu):
                g.i(f)
            g.i(f's_branch {end}')
        g.label(end)
        g.forget()
        if 'cyc' in self.opt:
            g.i('s_memtime s[76:77]')
            g.i('s_memrealtime s[78:79]')
            g.i('s_waitcnt lgkmcnt(0)')
            g.i('s_sub_u32 s88, s76, s96')
            g.i('s_sub_u32 s89, s78, s98')
        g.i('s_waitcnt vmcnt(0) lgkmcnt(0)')
        g.i('s_barrier')
        publish(S_N)

    def stream_gemm(self, gate):
        g = self.g
        S_SL, S_RP, S_OFF, S_PITCH, S_RT, S_A, S_AN, S_FLG, S_NEED, S_NX, S_XO, S_PRE = range(16, 28)
        S_MK, S_HF = 34, 28
        S_EX = 30
        NS = 72 if gate else 64
        RN = NS // 2
        TILE = NS * 4 * 1024
        BASE = OFF_H if gate else OFF_O
        VF, VFA, VRW, VRR, VG, VXO, VT = 2, 3, 4, 5, 6, 7, 8
        ACC, RING = 16, 64
        L_RED, L_G = 0, 131072
        if gate:
            g.i(f's_cmp_ge_u32 s{S_G}, 3')
            g.i(f's_cselect_b32 s{T0}, 7, 6')
            g.i(f's_cselect_b32 s{T1}, 42, 24')
            g.i(f's_mul_i32 s{T2}, s{S_G}, 6')
            g.i(f's_sub_u32 s{T1}, s{T1}, s{T2}')
            g.i(f's_cmp_lt_u32 s{S_I}, 24')
            g.i(f's_cselect_b32 s{S_RP}, s{S_G}, s{T0}')
            g.i(f's_cselect_b32 s{T1}, 6, s{T1}')
            g.i(f's_sub_u32 s{S_SL}, s{S_I}, s{T1}')
        self.srd(S_W8, P_W2 if gate else P_WO, 5308416 if gate else 4718592)
        g.i(f's_mov_b32 s{S_PITCH}, 1152')
        g.i(f's_mul_i32 s{S_OFF}, s{S_W}, {NS * 16 * 1152}')
        g.i(f's_lshl_b32 s{T0}, s{S_SL}, 6')
        g.i(f's_add_u32 s{S_OFF}, s{S_OFF}, s{T0}')
        g.i('s_barrier')
        self.load_weights(1, NS, S_OFF, S_PITCH, 8)
        self.stamp()
        g.i('s_barrier')
        g.i(f's_lshl_b32 s{T0}, s{S_W}, 12')
        g.i(f'v_add_u32 v{VRW}, s{T0}, v{V_L16}')
        g.i(f's_lshl_b32 s{T0}, s{S_W}, 10')
        g.i(f'v_add_u32 v{VRR}, s{T0}, v{V_L16}')
        g.i(f'v_lshrrev_b32 v{VG}, 1, v{VRR}')
        g.i(f'v_add_u32 v{VG}, {L_G}, v{VG}')
        g.i(f'v_and_b32 v{VT}, 31, v{V_L}')
        g.i(f'v_mul_u32_u24 v{VXO}, 1152, v{VT}')
        g.i(f'v_lshrrev_b32 v{VT}, 5, v{V_L}')
        g.i(f'v_lshl_add_u32 v{VXO}, v{VT}, 3, v{VXO}')
        g.i(f's_lshl_b32 s{T0}, s{S_SL}, 6')
        g.i(f's_lshl_b32 s{T1}, s{S_W}, 4')
        g.i(f's_add_u32 s{T0}, s{T0}, s{T1}')
        g.i(f'v_add_u32 v{VXO}, s{T0}, v{VXO}')
        if gate:
            g.i(f'v_min_u32 v{VFA}, 17, v{V_L}')
        else:
            g.i(f'v_and_b32 v{VFA}, 7, v{V_L}')
            g.i(f's_lshl_b32 s{T0}, s{S_W}, 3')
            g.i(f'v_add_u32 v{VFA}, s{T0}, v{VFA}')
        g.i(f'v_lshlrev_b32 v{VFA}, 7, v{VFA}')
        g.i(f's_mov_b64 s[{S_EX}:{S_EX+1}], -1')
        g.i(f's_mov_b32 s{S_HF}, 0')
        for r in range(8):
            m = REP_MASK[r] | ((1 << REP_HALF[r][0]) if gate and r in REP_HALF else 0)
            if r:
                g.i(f's_cmp_eq_u32 s{S_RP}, {r}')
            op = 's_cmov_b32' if r else 's_mov_b32'
            g.i(f'{op} s{S_MK}, {m & 0xffffffff:#x}')
            g.i(f'{op} s{S_MK+1}, {m >> 32:#x}')
            g.i(f'{op} s{S_HF}, {(REP_HALF[r][0] + 64 * REP_HALF[r][1]) if r in REP_HALF else 0}')

        def take(dst):
            g.i(f's_ff1_i32_b64 s{dst}, s[{S_MK}:{S_MK+1}]')
            g.i(f's_bitset0_b64 s[{S_MK}:{S_MK+1}], s{dst}')
        take(S_RT)

        def flag_addr(rt):
            if gate:
                g.i(f's_mul_hi_u32 s{S_NEED}, s{rt}, {(1 << 32) // 3 + 1}')
                g.i(f's_mul_i32 s{T0}, s{S_NEED}, 3')
                g.i(f's_sub_u32 s{T0}, s{rt}, s{T0}')
                g.i(f's_lshl_b32 s{T0}, s{T0}, 14')
                g.i(f's_add_u32 s{S_FLG}, s{T0}, {OFF_FLAG + FL_P1 + 48 * 128}')
                g.i(f's_add_u32 s{S_NEED}, s{S_NEED}, 1')
            else:
                g.i(f's_and_b32 s{T0}, s{rt}, 3')
                g.i(f's_lshl_b32 s{T0}, s{T0}, 12')
                g.i(f's_add_u32 s{S_FLG}, s{T0}, {OFF_FLAG + FL_O}')
                g.i(f's_lshr_b32 s{S_NEED}, s{rt}, 2')
                g.i(f's_add_u32 s{S_NEED}, s{S_NEED}, 1')

        def flag_load(tag=None):
            g.i(f'buffer_load_dword v{VF}, v{VFA}, {WS}, s{S_FLG} offen sc1', tag=tag)

        def flag_test():
            g.i(f'v_cmp_gt_u32 vcc, s{S_NEED}, v{VF}')
            g.i(f's_cmp_eq_u64 vcc, 0')

        def aaddr(dst, rt):
            g.i(f's_mul_i32 s{dst}, s{rt}, {TILE}')
            g.i(f's_mul_i32 s{T0}, s{S_W}, {NS * 1024}')
            g.i(f's_add_u32 s{dst}, s{dst}, s{T0}')
            g.i(f's_add_u32 s{dst}, s{dst}, {BASE}')

        def aload(sreg, n):
            g.i(f'buffer_load_dwordx4 {vr(RING + 4*(n % RN), 4)}, v{V_L16}, {WS}, s{sreg} offen offset:{1024*(n%4)} sc1')
            if n % 4 == 3:
                g.i(f's_add_u32 s{sreg}, s{sreg}, 4096')

        def mm(n):
            g.i(f'v_mfma_f32_32x32x16_bf16 {vr(ACC + 16*(n&1), 16)}, {wreg(4*n)}, {vr(RING + 4*(n % RN), 4)}, '
                f'{vr(ACC + 16*(n&1), 16) if n > 1 else 0}')
        cold, warm, nopre, epi, end = [g.newlabel('sg') for _ in range(5)]
        g.label(cold)
        flag_addr(S_RT)

        def ld():
            flag_load(); g.wait_vm()
        self.spin(ld, flag_test, 40 if gate else 4)
        aaddr(S_A, S_RT)
        for n in range(RN):
            aload(S_A, n)
        g.settle()
        g.label(warm)
        g.forget()
        take(S_NX)
        g.i(f's_and_b32 s{T2}, s{S_NX}, 63')
        flag_addr(T2)
        aaddr(S_AN, T2)
        g.i(f's_mul_i32 s{S_XO}, s{S_RT}, {32 * 1152}')
        for n in range(RN):
            g.i(f's_waitcnt vmcnt({RN - 1})')
            mm(n)
            aload(S_A, n + RN)
            if n == 0:
                flag_load()
                if not gate:
                    g.i(f'buffer_load_dwordx2 {vr(VT+6,2)}, v{VXO}, s[{S_X4}:{S_X4+3}], s{S_XO} offen')
        g.i(f's_waitcnt vmcnt({RN - 1})')
        flag_test()
        g.i(f's_cselect_b32 s{S_PRE}, 1, 0')
        g.i(f's_cmp_lt_u32 s{S_NX}, 64')
        g.i(f's_cselect_b32 s{S_PRE}, s{S_PRE}, 0')
        g.i(f's_cmp_eq_u32 s{S_PRE}, 0')
        g.i(f's_cbranch_scc1 {nopre}')
        hist = list(g.hist)
        for n in range(RN, NS):
            g.i(f's_waitcnt vmcnt({RN - 1})')
            mm(n)
            aload(S_AN, n - RN)
        g.i(f's_mov_b32 s{S_A}, s{S_AN}')
        g.settle()
        g.i(f's_branch {epi}')
        g.label(nopre)
        g.hist = hist
        for n in range(RN, NS):
            g.i(f's_waitcnt vmcnt({NS - 1 - n})')
            mm(n)
        g.settle()
        g.label(epi)
        g.lds_q = []
        for r in range(0, 16, 2):
            g.i(f'v_pk_add_f32 {vr(ACC+r,2)}, {vr(ACC+r,2)}, {vr(ACC+16+r,2)}')
        for q in range(4):
            g.i(f'ds_write_b128 v{VRW}, {vr(ACC+4*q,4)} offset:{L_RED + 1024*q}')
        g.wait_lds()
        g.i('s_barrier')
        for w in range(4):
            g.i(f'ds_read_b128 {vr(ACC+4*w,4)}, v{VRR} offset:{L_RED + 4096*w}')
        if not gate:
            g.i(f'ds_read_b64 {vr(VT+4,2)}, v{VG}')
        g.i(f'v_xor_b32 v{VRW}, 0x4000, v{VRW}')
        g.i(f'v_xor_b32 v{VRR}, 0x4000, v{VRR}')
        g.wait_lds()
        fin = g.newlabel('sf')
        g.label(fin)
        for k in (0, 2):
            g.i(f'v_pk_add_f32 {vr(ACC+k,2)}, {vr(ACC+k,2)}, {vr(ACC+4+k,2)}')
            g.i(f'v_pk_add_f32 {vr(ACC+8+k,2)}, {vr(ACC+8+k,2)}, {vr(ACC+12+k,2)}')
        for k in (0, 2):
            g.i(f'v_pk_add_f32 {vr(ACC+k,2)}, {vr(ACC+k,2)}, {vr(ACC+8+k,2)}')
        g.i(f'v_cvt_pk_bf16_f32 v{ACC+4}, v{ACC}, v{ACC+1}')
        g.i(f'v_cvt_pk_bf16_f32 v{ACC+5}, v{ACC+2}, v{ACC+3}')
        if gate:
            A = self.silu_ops(ACC + 4, VT, VT + 1, VT + 2)
            B = self.silu_ops(ACC + 5, VT + 4, VT + 5, VT + 6)
            for p, q in zip(A, B):
                g.i(p); g.i(q)
            g.i(f'ds_write_b64 v{VG}, {vr(ACC+4,2)}')
        else:
            for k in range(2):
                s_, g_, x_ = ACC + 4 + k, VT + 4 + k, VT + 6 + k
                a, b, c, d = ACC + 8, ACC + 9, ACC + 10, ACC + 11
                g.i(f'v_lshlrev_b32 v{a}, 16, v{s_}')
                g.i(f'v_and_b32 v{b}, 0xffff0000, v{s_}')
                g.i(f'v_lshlrev_b32 v{c}, 16, v{g_}')
                g.i(f'v_and_b32 v{d}, 0xffff0000, v{g_}')
                g.i(f'v_mul_f32 v{a}, v{a}, v{c}')
                g.i(f'v_mul_f32 v{b}, v{b}, v{d}')
                g.i(f'v_cvt_pk_bf16_f32 v{s_}, v{a}, v{b}')
                g.i(f'v_lshlrev_b32 v{a}, 16, v{s_}')
                g.i(f'v_and_b32 v{b}, 0xffff0000, v{s_}')
                g.i(f'v_lshlrev_b32 v{c}, 16, v{x_}')
                g.i(f'v_and_b32 v{d}, 0xffff0000, v{x_}')
                g.i(f'v_add_f32 v{a}, v{a}, v{c}')
                g.i(f'v_add_f32 v{b}, v{b}, v{d}')
                g.i(f'v_cvt_pk_bf16_f32 v{s_}, v{a}, v{b}')
            g.i(f's_mov_b64 exec, s[{S_EX}:{S_EX+1}]')
            g.i(f'buffer_store_dwordx2 {vr(ACC+4,2)}, v{VXO}, s[{S_O4}:{S_O4+3}], s{S_XO} offen {"sc1" if "outsc1" in self.opt else ""}')
            g.i('s_mov_b64 exec, -1')
        g.i(f'v_add_u32 v{VG}, 2048, v{VG}')
        g.i(f's_mov_b32 s{S_RT}, s{S_NX}')
        g.i(f's_cmp_eq_u32 s{S_PRE}, 1')
        g.settle()
        g.i(f's_cbranch_scc1 {warm}')
        g.i(f's_cmp_lt_u32 s{S_RT}, 64')
        g.i(f's_cbranch_scc1 {cold}')
        g.wait_lds()
        if gate:
            return
        g.i(f's_cmp_eq_u32 s{S_HF}, 0')
        g.i(f's_cbranch_scc1 {end}')
        VH = VT
        g.i(f's_and_b32 s{S_RT}, s{S_HF}, 63')
        g.i(f's_cmp_ge_u32 s{S_HF}, 64')
        g.i(f's_mov_b32 s{S_HF}, 0')
        g.i(f's_cselect_b32 s{T1}, 256, 0')
        g.i(f's_cselect_b32 s{S_EX}, 16, 0')
        g.i(f's_lshl_b32 s{S_EX}, 0xffff, s{S_EX}')
        g.i(f's_mov_b32 s{S_EX+1}, s{S_EX}')
        g.i(f'v_xor_b32 v{VH+1}, s{T1}, v{V_L16}')
        g.i(f'v_and_b32 v{VH+1}, 256, v{VH+1}')
        g.i(f'v_xor_b32 v{VH}, v{VH+1}, v{V_L16}')
        g.i(f'v_lshl_add_u32 v{VH}, v{VH+1}, 2, v{VH}')
        g.i(f's_mul_i32 s{S_XO}, s{S_RT}, {32 * 1152}')
        g.i(f'buffer_load_dwordx2 {vr(VT+6,2)}, v{VXO}, s[{S_X4}:{S_X4+3}], s{S_XO} offen')
        g.i(f'ds_read_b64 {vr(VT+4,2)}, v{VG}')
        g.i(f'v_and_b32 v{VRW}, 0x3fff, v{VRW}')
        g.i(f'v_and_b32 v{VRR}, 0x3fff, v{VRR}')
        g.i(f'v_xor_b32 v{VH+2}, 256, v{VRR}')
        flag_addr(S_RT)
        aaddr(S_A, S_RT)
        g.wait_lds()
        g.i('s_barrier')
        if 'nocp' not in self.opt:
            g.i('s_getpc_b64 s[32:33]')
            g.i(f'v_lshlrev_b32 v{VH+3}, 6, v{V_L}')
            g.i(f'global_load_dword v{VH+3}, v{VH+3}, s[32:33]')
        self.spin(ld, flag_test, 1)
        self.at(1)()
        again = g.newlabel('sa')
        g.i(f's_mov_b32 s{S_TRY}, 0')
        g.label(again)
        g.i(f's_mov_b32 s{S_AN}, s{S_A}')
        for m in range(RN):
            g.i(f'buffer_load_dwordx4 {vr(RING + 4*m, 4)}, v{VH}, {WS}, s{S_AN} offen offset:{2048*(m%2)} sc1')
            if m % 2:
                g.i(f's_add_u32 s{S_AN}, s{S_AN}, 4096')
        g.i(f's_add_u32 s{S_TRY}, s{S_TRY}, 1')
        g.i(f's_cmp_gt_u32 s{S_TRY}, {SPIN_MAX}')
        g.i(f's_cbranch_scc1 {self.bail}')
        g.i(f'v_mov_b32 v{VF}, 0')
        for n in range(NS):
            if n % 2 == 0:
                g.i(f's_waitcnt vmcnt({RN - 1 - n//2})')
            g.i(f'v_mfma_f32_32x32x16_bf16 {vr(ACC + 16*(n&1), 16)}, {wreg(4*n)}, {vr(RING + 4*(n//2), 4)}, '
                f'{vr(ACC + 16*(n&1), 16) if n > 1 else 0}')
            if n % 2 == 0:
                g.i(f'v_max_u32 v{VF}, v{VF}, v{RING + 4*(n//2)}')
            if n in (7, NS - 2):
                g.i(f'v_cmp_eq_u32 vcc, -1, v{VF}')
                g.i(f's_cbranch_vccnz {again}')
        for q in range(8):
            g.i(f'ds_write_b128 v{VRW}, {vr(ACC+4*q,4)} offset:{L_RED + 16384*(q>>2) + 1024*(q&3)}')
        g.wait_lds()
        g.i('s_barrier')
        for w in range(4):
            g.i(f'ds_read_b128 {vr(ACC+4*w,4)}, v{VRR} offset:{L_RED + 4096*w}')
            g.i(f'ds_read_b128 {vr(ACC+16+4*w,4)}, v{VH+2} offset:{L_RED + 16384 + 4096*w}')
        g.wait_lds()
        for r in range(0, 16, 2):
            g.i(f'v_pk_add_f32 {vr(ACC+r,2)}, {vr(ACC+r,2)}, {vr(ACC+16+r,2)}')
        g.i(f's_mov_b32 s{S_PRE}, 0')
        g.settle()
        g.i(f's_branch {fin}')
        g.label(end)
        g.forget()

    def attention(self, leave):
        g = self.g
        S_U, S_S, S_HD, S_BLK, S_F1, S_NEED, S_LB = range(16, 23)
        S_C, S_SC = 24, 26
        VK, VF, VFA, VKW, VKR, VVR, VMX, VL, VT, VKK = 2, 3, 4, 5, 6, 7, 8, 9, 10, 15
        MASK, Q, K, V, SX, SM, KM, VM, REC, PB, O = 16, 32, 64, 96, 128, 144, 160, 192, 200, 216, 32
        g.i(f's_mul_i32 s{S_U}, s{S_G}, 6')
        g.i(f's_add_u32 s{S_U}, s{S_U}, s{S_I}')
        g.i(f's_cmp_ge_u32 s{S_U}, 32')
        g.i(f's_cbranch_scc1 {leave}')
        g.i(f's_lshl_b32 s{S_U}, s{S_U}, 2')
        g.i(f's_add_u32 s{S_U}, s{S_U}, s{S_W}')
        g.i(f's_mov_b32 s{S_C}, {f2u(LOG2E):#x}')
        g.i(f's_mov_b32 s{S_C+1}, s{S_C}')
        g.i(f's_mov_b32 s{S_SC}, {f2u(128 ** -0.5):#x}')
        g.i(f's_mov_b32 s{S_SC+1}, s{S_SC}')
        g.i(f's_lshl_b32 s{S_LB}, s{S_W}, 12')
        J, HF = VT, VT + 1
        g.i(f'v_and_b32 v{J}, 31, v{V_L}')
        g.i(f'v_lshrrev_b32 v{HF}, 5, v{V_L}')
        g.i(f'v_and_b32 v{VK}, 7, v{J}')
        g.i(f'v_bfe_u32 v{VT+2}, v{J}, 3, 1')
        g.i(f'v_lshl_add_u32 v{VK}, v{VT+2}, 4, v{VK}')
        g.i(f'v_bfe_u32 v{VT+2}, v{J}, 4, 1')
        g.i(f'v_lshl_add_u32 v{VK}, v{VT+2}, 3, v{VK}')
        g.i(f'v_lshlrev_b32 v{VK}, 4, v{VK}')
        g.i(f'v_lshl_add_u32 v{VK}, v{HF}, 9, v{VK}')
        g.i(f'v_lshlrev_b32 v{VT+2}, 3, v{HF}')
        g.i(f'v_sub_u32 v{VT+2}, v{J}, v{VT+2}')
        g.i(f'v_mov_b32 v{VT+3}, 0xff800000')
        for r in range(16):
            g.i(f'v_cmp_le_i32 vcc, {16*(r>>3) + (r&7)}, v{VT+2}')
            g.i(f'v_cndmask_b32 v{MASK+r}, v{VT+3}, 0, vcc')
        g.i(f'v_and_b32 v{VT+2}, 15, v{V_L}')
        g.i(f'v_lshrrev_b32 v{VT+3}, 4, v{V_L}')
        g.i(f'v_lshlrev_b32 v{VKW}, 4, v{VT+2}')
        g.i(f'v_lshl_add_u32 v{VKW}, v{VT+3}, 2, v{VKW}')
        g.i(f'v_add_u32 v{VKW}, s{S_LB}, v{VKW}')
        g.i(f'v_and_b32 v{VT+2}, 12, v{V_L}')
        g.i(f'v_lshl_add_u32 v{VKK}, v{VT+2}, 4, v{VKW}')
        g.i(f'v_bfe_u32 v{VT+2}, v{V_L}, 2, 2')
        g.i(f'v_lshl_add_u32 v{VT+2}, v{HF}, 3, v{VT+2}')
        g.i(f'v_lshlrev_b32 v{VKR}, 4, v{VT+2}')
        g.i(f'v_and_b32 v{VT+2}, 1, v{V_L}')
        g.i(f'v_lshl_add_u32 v{VKR}, v{VT+2}, 3, v{VKR}')
        g.i(f'v_add_u32 v{VKR}, s{S_LB}, v{VKR}')
        g.i(f'v_lshlrev_b32 v{VVR}, 4, v{J}')
        g.i(f'v_lshl_add_u32 v{VVR}, v{HF}, 3, v{VVR}')
        g.i(f'v_add_u32 v{VVR}, s{S_LB}, v{VVR}')
        top, end = g.newlabel('at'), g.newlabel('ae')
        g.label(top)
        g.forget()
        g.i(f's_lshr_b32 s{S_S}, s{S_U}, 5')
        g.i(f's_and_b32 s{S_HD}, s{S_U}, 31')
        g.i(f's_lshl_b32 s{S_BLK}, s{S_U}, 13')
        VN = VT + 4
        g.i(f's_mul_hi_u32 s{S_NEED}, s{S_S}, {(1 << 32) // 3 + 1}')
        g.i(f's_mul_i32 s{T0}, s{S_NEED}, 3')
        g.i(f's_sub_u32 s{T0}, s{S_S}, s{T0}')
        g.i(f's_lshr_b32 s{T2}, s{S_S}, 1')
        g.i(f's_and_b32 s{T1}, s{S_S}, 1')
        g.i(f's_cmp_ge_u32 s{S_HD}, {2 * (Q2 - 32)}')
        g.i(f's_cselect_b32 s{T1}, s{T1}, s{T0}')
        g.i(f's_cselect_b32 s{T2}, s{T2}, s{S_NEED}')
        g.i(f'v_mov_b32 v{VN}, s{T2}')
        g.i(f'v_writelane_b32 v{VN}, s{S_NEED}, 0')
        g.i(f's_lshl_b32 s{T0}, s{T0}, 7')
        g.i(f's_add_u32 s{T0}, s{T0}, s{S_HD}')
        g.i(f's_lshl_b32 s{T0}, s{T0}, 7')
        g.i(f's_lshl_b32 s{T1}, s{T1}, 7')
        g.i(f's_lshr_b32 s{T2}, s{S_HD}, 1')
        g.i(f's_add_u32 s{T1}, s{T1}, s{T2}')
        g.i(f's_add_u32 s{T1}, s{T1}, 32')
        g.i(f's_lshl_b32 s{T1}, s{T1}, 7')
        g.i(f'v_mov_b32 v{VFA}, s{T1}')
        g.i(f'v_writelane_b32 v{VFA}, s{T0}, 0')
        g.i(f's_mov_b32 s{S_F1}, {OFF_FLAG + FL_P1}')

        def ld():
            g.i(f'buffer_load_dword v{VF}, v{VFA}, {WS}, s{S_F1} offen sc1')
            g.wait_vm()

        def tst():
            g.i(f'v_cmp_ge_u32 vcc, v{VN}, v{VF}')
            g.i(f's_cmp_eq_u64 vcc, 0')
        self.spin(ld, tst, 40)
        g.vm_q = []
        for base, dst, va, tg in ((OFF_QX, Q, V_L16, 'q'), (OFF_KX, K, VK, 'k'), (OFF_VX, V, V_L16, 'v')):
            for hb in range(2):
                g.i(f's_add_u32 s{T0}, s{S_BLK}, {base + 4096*hb}')
                for n in range(4):
                    g.i(f'buffer_load_dwordx4 {vr(dst + 16*hb + 4*n, 4)}, v{va}, {WS}, s{T0} offen offset:{1024*n} sc1', tag=tg)
        g.wait_vm('k')
        for u in range(8):
            g.i(f'v_mfma_f32_32x32x16_bf16 {vr(SX,16)}, {vr(K+4*u,4)}, {vr(Q+4*u,4)}, {vr(SX if u else MASK,16)}')

        def round_scores(regs):
            for st in range(2):
                for r in regs:
                    g.i(f'v_cvt_pk_bf16_f32 v{r+1}, v{r}, v{r+1}')
                for r in regs:
                    g.i(f'v_lshlrev_b32 v{r}, 16, v{r+1}')
                    g.i(f'v_and_b32 v{r+1}, 0xffff0000, v{r+1}')
                if st == 0:
                    for r in regs:
                        g.i(f'v_pk_mul_f32 {vr(r,2)}, {vr(r,2)}, s[{S_SC}:{S_SC+1}]')
        round_scores(range(SX, SX + 16, 2))
        g.i(f'v_max3_f32 v{VMX}, v{SX}, v{SX+1}, v{SX+2}')
        for r in range(3, 15, 2):
            g.i(f'v_max3_f32 v{VMX}, v{VMX}, v{SX+r}, v{SX+r+1}')
        g.i(f'v_max_f32 v{VMX}, v{VMX}, v{SX+15}')
        g.i(f's_lshl_b32 s{T2}, s{S_HD}, 7')
        g.i(f's_add_u32 s{T2}, s{T2}, {OFF_FLAG + FL_KM}')
        g.i(f's_add_u32 s{S_NEED}, s{S_S}, 1')
        g.i(f's_lshl_b32 s{T0}, s{S_U}, 12')
        g.i(f's_add_u32 s{T0}, s{T0}, {OFF_KM}')
        direct, have = g.newlabel('ad'), g.newlabel('ah')

        def rec():
            for w in range(4):
                g.i(f'buffer_load_dwordx4 {vr(REC+4*w,4)}, v{V_L16}, {WS}, s{T0} offen offset:{1024*w} sc1')
            g.wait_vm()
        g.i(f's_cmp_ge_u32 s{S_S}, {SEG_DIRECT}')
        g.i(f's_cbranch_scc1 {direct}')
        self.wait_word(T2, f's{S_NEED}', VF, self.asleep)
        rec()
        g.i(f's_branch {have}')
        g.label(direct)

        def rtst():
            g.i(f'v_max3_u32 v{VF}, v{REC}, v{REC+4}, v{REC+8}')
            g.i(f'v_max_u32 v{VF}, v{VF}, v{REC+12}')
            g.i(f'v_cmp_eq_u32 vcc, -1, v{VF}')
            g.i('s_cmp_eq_u64 vcc, 0')
        self.spin(rec, rtst, 1)
        g.label(have)
        self.at(6)()
        g.vm_q = []; g.lds_q = []
        for w in range(4):
            g.wait_vm(('r', w))
            g.i(f'ds_write_b32 v{VKK}, v{REC+4*w+1} offset:{512*w}')
            g.i(f'ds_write_b32 v{VKK}, v{REC+4*w+3} offset:{512*w + 64}')
            g.i(f'ds_write2st64_b32 v{VKW}, v{REC+4*w}, v{REC+4*w+2} offset0:{8+2*w} offset1:{8+2*w+1}')
        g.wait_lds()
        for u in range(8):
            g.i(f'ds_read_b64_tr_b16 {vr(KM+4*u,2)}, v{VKR} offset:{256*u}', tag=('km', u))
            g.i(f'ds_read_b64_tr_b16 {vr(KM+4*u+2,2)}, v{VKR} offset:{256*u + 64}', tag=('km', u))
            if u >= 4:
                g.wait_lds(('km', u - 4))
                g.i(f'v_mfma_f32_32x32x16_bf16 {vr(SM,16)}, {vr(KM+4*(u-4),4)}, {vr(Q+4*(u-4),4)}, {vr(SM,16) if u > 4 else 0}')
        for nb in range(4):
            g.i(f'ds_read_b64 {vr(VM+2*nb,2)}, v{VVR} offset:{2048 + 512*nb}', tag='vm')
        for u in range(4, 8):
            g.wait_lds(('km', u))
            g.i(f'v_mfma_f32_32x32x16_bf16 {vr(SM,16)}, {vr(KM+4*u,4)}, {vr(Q+4*u,4)}, {vr(SM,16)}')
        round_scores((SM, SM + 2))
        g.i(f'v_max3_f32 v{VMX}, v{VMX}, v{SM}, v{SM+1}')
        g.i(f'v_max3_f32 v{VMX}, v{VMX}, v{SM+2}, v{SM+3}')
        g.i(f'v_mov_b32 v{VT}, v{VMX}')
        g.i(f'v_permlane32_swap_b32 v{VMX}, v{VT}')
        g.i(f'v_max_f32 v{VMX}, v{VMX}, v{VT}')
        vals = list(range(SX, SX + 20))
        for r in vals[::2]:
            g.i(f'v_pk_add_f32 {vr(r,2)}, {vr(r,2)}, {vr(VMX,2)} op_sel_hi:[1,0] neg_lo:[0,1] neg_hi:[0,1]')
        for r in vals[::2]:
            g.i(f'v_pk_mul_f32 {vr(r,2)}, {vr(r,2)}, s[{S_C}:{S_C+1}]')
        for r in vals:
            g.i(f'v_exp_f32 v{r}, v{r}')
        g.i(f'v_pk_add_f32 {vr(VT,2)}, {vr(SX,2)}, {vr(SX+2,2)}')
        for r in vals[4::2]:
            g.i(f'v_pk_add_f32 {vr(VT,2)}, {vr(VT,2)}, {vr(r,2)}')
        g.i(f'v_add_f32 v{VMX}, v{VT}, v{VT+1}')
        g.i(f'v_mov_b32 v{VT}, v{VMX}')
        g.i(f'v_permlane32_swap_b32 v{VMX}, v{VT}')
        g.i(f'v_add_f32 v{VMX}, v{VMX}, v{VT}')
        g.i(f'v_rcp_f32 v{VMX}, v{VMX}')
        for r in vals[::2]:
            g.i(f'v_pk_mul_f32 {vr(r,2)}, {vr(r,2)}, {vr(VMX,2)} op_sel_hi:[1,0]')
        for k in range(10):
            g.i(f'v_cvt_pk_bf16_f32 v{PB+k}, v{SX+2*k}, v{SX+2*k+1}')
        g.i(f's_and_b32 s{S_F1}, s{S_U}, 127')
        g.i(f's_lshl_b32 s{S_F1}, s{S_F1}, 7')
        g.i(f's_add_u32 s{S_F1}, s{S_F1}, {OFF_FLAG + FL_O}')
        g.i(f's_lshr_b32 s{T1}, s{S_U}, 7')
        g.i(f's_add_u32 s{T1}, s{T1}, 1')
        g.i(f'v_mov_b32 v{VF}, s{T1}')

        def oflag():
            g.i('s_mov_b64 exec, 1')
            g.i(f'buffer_store_dword v{VF}, off, {WS}, s{S_F1} sc1')
            g.i('s_mov_b64 exec, -1')

        def notice(pos):
            if pos != self.early:
                return
            ne = g.newlabel('ne')
            g.i(f's_cmp_lt_u32 s{S_S}, 62')
            g.i(f's_cbranch_scc1 {ne}')
            oflag()
            g.label(ne)
        notice(0)
        g.wait_lds()
        for nb2 in range(2):
            for st in range(3):
                for nb in (2 * nb2, 2 * nb2 + 1):
                    o = vr(O + 16 * nb, 16)
                    g.i([f'v_mfma_f32_32x32x16_bf16 {o}, {vr(V+8*nb,4)}, {vr(PB,4)}, 0',
                         f'v_mfma_f32_32x32x16_bf16 {o}, {vr(V+8*nb+4,4)}, {vr(PB+4,4)}, {o}',
                         f'v_mfma_f32_32x32x8_bf16 {o}, {vr(VM+2*nb,2)}, {vr(PB+8,2)}, {o}'][st])
        notice(1)
        g.i(f's_add_u32 s{T0}, s{S_BLK}, {OFF_O}')
        g.i(f's_add_u32 s{T1}, s{T0}, 4096')
        for n in range(8):
            o, p = O + 8 * n, KM + 4 * n
            for k in range(4):
                g.i(f'v_cvt_pk_bf16_f32 v{p+k}, v{o+2*k}, v{o+2*k+1}')
            g.i(f'v_permlane32_swap_b32 v{p}, v{p+2}')
            g.i(f'v_permlane32_swap_b32 v{p+1}, v{p+3}')
            g.i(f'v_min_u32 v{p}, -2, v{p}')
            g.i(f'buffer_store_dwordx4 {vr(p,4)}, v{V_L16}, {WS}, s{T0 if n < 4 else T1} offen offset:{1024*(n%4)} sc1')
            notice(2 + n)
        g.wait_vm()
        oflag()
        g.i(f's_add_u32 s{S_U}, s{S_U}, 128')
        g.i(f's_cmp_lt_u32 s{S_U}, 2048')
        g.settle()
        g.i(f's_cbranch_scc1 {top}')
```

```python
import math, struct
from asmgen import *
from layout import *

S_C2 = 2
S_WS = 4
S_W8 = 8
S_DBG = 12
S_W, S_H, S_STEP = 14, 15, 16
S_MCUR = 17
S_PST = 18
S_KX, S_VX, S_KM = 21, 22, 23
S_RED = 24
S_MS, S_M1 = 28, 30
S_RDY, S_PF = 32, 33
S_M3, S_ONE = 34, 36
S_MP, S_RNEED = 38, 39
S_C = 40
S_TRY = 41
S_T0, S_T1, S_T2, S_T3 = 42, 43, 44, 45
S_TAG, S_MRST = 46, 47
S_PTR = 48
S_FLG, S_XCC = 58, 59
S_ST = 60
S_SYN, S_SYO = 84, 85
S_MG = 86
S_PM = 72
S_NAN = 74
S_TRY2 = 76
V_L16, V_IDX, V_ID0, V_ID1, V_WL, V_SW, V_OW, V_RED, V_MST, V_KV = range(10)
V_G2 = 10
V_ACC = 14
V_X0 = 30
V_T0, V_T1 = 34, 35
V_X1 = 36
V_KXD = 40
V_AR = 48
V_STG = 60
V_PUB = 76
L_M = 0
L_QK = 9216
L_SM = 13312
L_EL = 15360
L_W = 16384
LDS_BYTES = 163840
SPIN_MAX = 300000
HS = 9216
WS = f's[{S_WS}:{S_WS+3}]'


def f2u(x):
    return struct.unpack('<I', struct.pack('<f', x))[0]


CHUNKS = [('q', t) for t in range(9)] + [('k', t) for t in range(9)] + [('v', t) for t in range(9)] + \
         [('o', u, p) for p in range(4) for u in range(2)] + [('l',)]
LDS_PAIRS = [('k', 1), ('k', 3), ('k', 5), ('k', 7), ('v', 2), ('o', 1, 0), ('o', 1, 1), ('o', 1, 2), ('o', 1, 3)]
STG_NEXT = {LDS_PAIRS[i]: LDS_PAIRS[i + 1] for i in (0, 1, 2, 3)}
REG_PAIRS = [p for p in CHUNKS if p not in LDS_PAIRS]
SEQ = REG_PAIRS + LDS_PAIRS
LDS_BLOCK = {p: SEQ.index(p) % 9 for p in LDS_PAIRS}
REGBASE = {}
for _n, _p in enumerate(REG_PAIRS):
    for _x in range(2):
        _s = 2 * _n + _x
        REGBASE[(_p, _x)] = ('a', 8 * _s) if _s < 32 else ('v', 80 + 8 * (_s - 32))
assert len(REG_PAIRS) == 27 and len(SEQ) == 36


def wfrag(p, x, off=0, n=8):
    k, b = REGBASE[(p, x)]
    return (ar if k == 'a' else vr)(b + off, n)


class Chain:
    def __init__(self, g, diag=0, standalone=True, opt=()):
        self.g = g
        self.diag = diag
        self.standalone = standalone
        self.opt = set(opt)
        self.nst = 0
        self.names = []
        self.staged = [None] * 4
        self.ring = {}
        self.mp, self.nb, self.io, self.bp = 13, 5, 9, 0
        self.dr, self.dm, self.dq = [None, None, None], [0, 0, 0, 0], None
        self.sync = None
        self.wake = 0
        self.only = None
        self.ahead = 4
        self.stag = 0
        self.b4 = 0
        self.align = None
        self.prio = 0
        self.pffl = self.pubfl = 'sc1'
        self.kvfl, self.wfl, self.ofl = 'sc1 nt', '', ''
        self.pre, self.dq2, self.late = 0, 0, 0
        self.after_wait = lambda: None
        self.at_final = lambda: None

    def stamp(self, name='', lvl=0):
        if self.only is not None:
            if name in self.only:
                k = self.only.index(name)
                self.g.i(f's_memtime s[{S_ST + 2*k}:{S_ST + 2*k + 1}]')
            return
        if not self.diag or (lvl and lvl != self.diag):
            return
        op = 's_memrealtime' if self.diag == 3 else 's_memtime'
        self.g.i(f'{op} s[{S_ST + 2*self.nst}:{S_ST + 2*self.nst + 1}]')
        self.names.append(name)
        self.nst += 1
        assert self.nst <= 6

    def dump_stamps(self):
        if not self.diag:
            return
        g = self.g
        g.wait_lds()
        for k in range(self.nst):
            g.i(f'v_writelane_b32 v{V_T0}, s{S_ST + 2*k}, {k}')
        g.i(f'v_writelane_b32 v{V_T0}, s100, 29')
        g.i(f'v_writelane_b32 v{V_T0}, s98, 30')
        g.i(f'v_writelane_b32 v{V_T0}, s99, 31')
        g.i(f's_lshl_b32 s{S_T0}, s{S_STEP}, 5')
        g.i(f's_add_u32 s{S_T0}, s{S_T0}, s{S_H}')
        g.i(f's_lshl_b32 s{S_T0}, s{S_T0}, 2')
        g.i(f's_add_u32 s{S_T0}, s{S_T0}, s{S_W}')
        g.i(f's_lshl_b32 s{S_T0}, s{S_T0}, 7')
        g.i(f's_add_u32 s{S_T0}, s{S_T0}, {OFF_DIAG - 32*4*128}')
        g.i(f'v_lshrrev_b32 v{V_T1}, 2, v{V_L16}')
        g.i(f's_mov_b64 exec, 0xffffffff')
        g.i(f'buffer_store_dword v{V_T0}, v{V_T1}, {WS}, s{S_T0} offen')
        g.i(f's_mov_b64 exec, -1')

    def set_srd(self, ptr, nbytes):
        g = self.g
        g.i(f's_mov_b32 s{S_W8}, s{ptr}')
        g.i(f's_mov_b32 s{S_W8+1}, s{ptr+1}')
        g.i(f's_mov_b32 s{S_W8+2}, {nbytes}')
        g.i(f's_mov_b32 s{S_W8+3}, 0x20000')

    def prologue(self):
        g = self.g
        L, I_, G_, A, B, C, D, E = range(14, 22)
        LA, LB, LO, LL, TR0, TR1, TQ0, TQ1, TL0, TL1, D0, TMP = range(22, 34)
        TO = [V_X1, V_X1 + 2]
        g.i(f'v_mov_b32 v{L}, v0')
        g.i(f'v_and_b32 v{I_}, 15, v{L}')
        g.i(f'v_lshrrev_b32 v{G_}, 4, v{L}')
        g.i(f'v_lshrrev_b32 v{A}, 1, v{G_}')
        g.i(f'v_and_b32 v{B}, 1, v{G_}')
        g.i(f'v_lshlrev_b32 v{C}, 2, v{G_}')
        g.i(f'v_xor_b32 v{C}, v{C}, v{I_}')
        g.i(f'v_lshlrev_b32 v{C}, 4, v{C}')
        g.i(f'v_lshlrev_b32 v{LA}, 1, v{A}')
        g.i(f'v_lshl_add_u32 v{LA}, v{B}, 4, v{LA}')
        g.i(f'v_lshl_add_u32 v{LA}, v{LA}, 13, v{C}')
        g.i(f'v_lshl_add_u32 v{D}, v{A}, 3, v{B}')
        g.i(f'v_lshl_add_u32 v{LB}, v{D}, 13, v{C}')
        g.i(f'v_mul_u32_u24 v{LO}, 1152, v{D}')
        g.i(f'v_add_u32 v{LO}, v{LO}, v{C}')
        g.i(f'v_bfe_u32 v{A}, v{L}, 4, 1')
        g.i(f'v_bfe_u32 v{B}, v{L}, 3, 1')
        g.i(f'v_lshl_add_u32 v{A}, v{A}, 3, v{B}')
        g.i(f'v_lshrrev_b32 v{B}, 5, v{L}')
        g.i(f'v_lshl_add_u32 v{A}, v{B}, 1, v{A}')
        g.i(f'v_mul_u32_u24 v{LL}, 1152, v{A}')
        g.i(f'v_and_b32 v{B}, 7, v{L}')
        g.i(f'v_lshl_add_u32 v{LL}, v{B}, 4, v{LL}')
        g.i(f's_lshl_b32 s{S_T2}, s{S_H}, 8')
        g.i(f's_lshl_b32 s{S_T0}, s{S_W}, 15')
        g.i(f's_add_u32 s{S_MG}, s{S_T2}, s{S_T0}')
        g.i(f's_lshl_b32 s{S_T0}, s{S_W}, 17')
        g.i(f's_add_u32 s{S_T2}, s{S_T2}, s{S_T0}')
        g.i(f's_lshl_b32 s{S_T3}, s{S_H}, 3')
        g.i(f's_add_u32 s{S_T3}, s{S_T3}, s{S_W}')
        g.i(f's_mul_i32 s{S_T3}, s{S_T3}, {16*1152}')
        g.i(f's_mul_i32 s{S_PF}, s{S_W}, 36864')
        g.i(f's_add_u32 s{S_PF}, s{S_PF}, {L_W}')
        ptr = {'q': S_PTR + 2, 'k': S_PTR + 4, 'v': S_PTR + 6, 'o': S_PTR + 8, 'l': S_PTR + 8}
        cur = [None]

        def issue(n):
            p = SEQ[n]
            if cur[0] != ptr[p[0]]:
                self.set_srd(ptr[p[0]], 4718592)
                cur[0] = ptr[p[0]]
            for q in range(4):
                hh, x1 = q >> 1, q & 1
                if p[0] == 'o':
                    uni, base, va = (64 * p[1] + 2 * q) * 1152 + 256 * p[2], S_T3, LO
                elif p[0] == 'l':
                    uni, base, va = (64 * hh + 4 * x1) * 1152 + 1024, S_T3, LL
                elif p[1] == 4:
                    uni, base, va = (512 + 2 * q) * 8192, S_T2, LB
                else:
                    qd, w = (0, p[1]) if p[1] < 4 else (1, p[1] - 5)
                    uni, base, va = (256 * qd + 32 * w + 128 * x1 + hh) * 8192, S_MG, LA
                g.i(f's_add_u32 m0, s{S_PF}, {(n % 9) * 4096 + q * 1024}')
                g.i(f's_add_u32 s{S_T0}, s{base}, {uni}')
                g.i(f'buffer_load_dwordx4 v{va}, s[{S_W8}:{S_W8+3}], s{S_T0} offen {self.wfl if p[0] in "qkv" else self.ofl} lds', tag=('w', n))
        if 'nocode' not in self.opt:
            g.i('s_getpc_b64 s[70:71]')
            g.i(f'v_lshlrev_b32 v{E}, 7, v{L}')
            g.i(f's_lshl_b32 s{S_T0}, s{S_W}, 13')
            g.i(f'v_add_u32 v{E}, s{S_T0}, v{E}')
            g.i(f'global_load_dword v{V_AR+4}, v{E}, s[70:71]')
        g.vm_q = []
        for n in range(8):
            issue(n)
        g.i(f'v_lshlrev_b32 v{V_L16}, 4, v{L}')
        g.i(f'v_lshrrev_b32 v{A}, 1, v{G_}')
        g.i(f'v_mul_u32_u24 v{E}, 36864, v{A}')
        g.i(f'v_add_u32 v{E}, {L_W}, v{E}')
        g.i(f'v_and_b32 v{A}, 1, v{G_}')
        g.i(f'v_lshrrev_b32 v{B}, 2, v{I_}')
        g.i(f'v_lshl_add_u32 v{A}, v{A}, 3, v{B}')
        g.i(f'v_and_b32 v{C}, 3, v{I_}')
        g.i(f'v_lshl_add_u32 v{TL0}, v{A}, 7, v{E}')
        g.i(f'v_lshl_add_u32 v{TL0}, v{C}, 3, v{TL0}')
        g.i(f's_lshl_b32 s{S_T0}, s{S_W}, 5')
        g.i(f'v_add_u32 v{TL0}, s{S_T0}, v{TL0}')
        g.i(f'v_lshl_add_u32 v{TR0}, v{A}, 8, v{E}')
        g.i(f'v_xor_b32 v{D}, s{S_W}, v{B}')
        g.i(f'v_lshl_add_u32 v{TR0}, v{D}, 6, v{TR0}')
        g.i(f'v_lshl_add_u32 v{TQ0}, v{C}, 4, v{TR0}')
        g.i(f'v_lshl_add_u32 v{TR0}, v{C}, 3, v{TR0}')
        g.i(f'v_and_b32 v{A}, 1, v{G_}')
        g.i(f'v_lshl_add_u32 v{TMP}, v{A}, 11, v{E}')
        g.i(f'v_lshl_add_u32 v{TMP}, v{C}, 3, v{TMP}')
        g.i(f'v_lshrrev_b32 v{A}, 1, v{B}')
        g.i(f'v_lshl_add_u32 v{TMP}, v{A}, 5, v{TMP}')
        for x in range(2):
            g.i(f'v_and_b32 v{A}, 1, v{B}')
            g.i(f'v_or_b32 v{A}, {2*x}, v{A}')
            g.i(f'v_lshl_add_u32 v{TO[x]}, v{A}, 8, v{TMP}')
            g.i(f'v_xor_b32 v{A}, s{S_W}, v{A}')
            g.i(f'v_lshl_add_u32 v{TO[x]}, v{A}, 6, v{TO[x]}')
        for r in (TR0, TQ0, TL0, TO[0], TO[1]):
            g.i(f'v_add_u32 v{r+1}, {2*36864}, v{r}')
        g.i(f'v_add_u32 v{V_WL}, s{S_PF}, v{V_L16}')
        g.i(f'v_bfe_u32 v{A}, v{I_}, 1, 1')
        g.i(f'v_mul_u32_u24 v{D}, 0xaaaa, v{A}')
        g.i(f'v_add_u32 v{V_IDX}, 0x4444, v{D}')
        g.i(f'v_and_b32 v{C}, 1, v{I_}')
        g.i(f'v_lshlrev_b32 v{D}, 4, v{C}')
        g.i(f'v_mov_b32 v{E}, 0x3f80')
        g.i(f'v_lshlrev_b32 v{D}, v{D}, v{E}')
        g.i(f'v_cmp_eq_u32 vcc, v{B}, v{G_}')
        g.i(f'v_cndmask_b32 v{D}, 0, v{D}, vcc')
        g.i(f'v_cmp_eq_u32 vcc, 0, v{A}')
        g.i(f'v_cndmask_b32 v{V_ID0}, 0, v{D}, vcc')
        g.i(f'v_cndmask_b32 v{V_ID1}, v{D}, 0, vcc')
        g.i(f'v_lshl_add_u32 v{D}, v{B}, 1, v{C}')
        g.i(f'v_lshlrev_b32 v{V_SW}, 8, v{G_}')
        g.i(f'v_lshl_add_u32 v{V_SW}, v{D}, 4, v{V_SW}')
        g.i(f'v_lshl_add_u32 v{V_SW}, v{A}, 7, v{V_SW}')
        g.i(f'v_lshrrev_b32 v{D}, 1, v{I_}')
        g.i(f'v_lshlrev_b32 v{V_OW}, 6, v{D}')
        g.i(f'v_lshl_add_u32 v{V_OW}, v{C}, 4, v{V_OW}')
        g.i(f'v_lshrrev_b32 v{D}, 1, v{G_}')
        g.i(f'v_lshl_add_u32 v{V_OW}, v{D}, 5, v{V_OW}')
        g.i(f'v_and_b32 v{D}, 1, v{G_}')
        g.i(f'v_lshl_add_u32 v{V_OW}, v{D}, 3, v{V_OW}')
        g.i(f'v_lshlrev_b32 v{V_KV}, 9, v{G_}')
        g.i(f'v_lshl_add_u32 v{V_KV}, v{I_}, 4, v{V_KV}')
        self.scalar_consts()
        lq, lx, l3 = g.newlabel('rq'), g.newlabel('rx'), g.newlabel('r3')
        g.i(f's_lshr_b32 s{S_T0}, s{S_H}, 3')
        g.i(f's_bfe_u32 s{S_T1}, s{S_H}, 0x20001')
        g.i(f'v_mul_u32_u24 v{D0}, 576, v{D}')
        g.i(f's_mul_i32 s{S_TRY}, s{S_T1}, 1152')
        g.i(f'v_add_u32 v{D0}, s{S_TRY}, v{D0}')
        g.i(f's_cmp_lt_u32 s{S_W}, 2')
        g.i(f's_cbranch_scc1 {lq}')
        g.i(f's_cmp_eq_u32 s{S_W}, 3')
        g.i(f's_cbranch_scc1 {l3}')
        g.i(f'v_lshrrev_b32 v{B}, 1, v{L}')
        g.i(f'v_mul_u32_u24 v{V_RED}, {HS}, v{B}')
        g.i(f'v_lshl_add_u32 v{V_RED}, v{C}, 4, v{V_RED}')
        g.i(f's_lshl_b32 s{S_TRY}, s{S_H}, 5')
        g.i(f'v_add_u32 v{V_RED}, s{S_TRY}, v{V_RED}')
        g.i(f'v_add_u32 v{V_RED}, 8192, v{V_RED}')
        g.i(f'v_lshlrev_b32 v{V_MST}, 4, v{D}')
        g.i(f'v_lshl_add_u32 v{V_MST}, v{C}, 3, v{V_MST}')
        g.i(f'v_add_u32 v{V_MST}, s{S_TRY}, v{V_MST}')
        g.i(f'v_add_u32 v{V_MST}, 4096, v{V_MST}')
        g.i(f's_lshl_b32 s{S_T0}, s{S_T0}, 4')
        g.i(f's_and_b32 s{S_T1}, s{S_H}, 1')
        g.i(f's_lshl_b32 s{S_T1}, s{S_T1}, 3')
        g.i(f's_add_u32 s{S_T0}, s{S_T0}, s{S_T1}')
        g.i(f's_add_u32 s{S_T0}, s{S_T0}, 512')
        g.i(f'v_lshl_add_u32 v{D0}, v{C}, 2, v{D0}')
        g.i(f'v_add_lshl_u32 v{D0}, v{D0}, s{S_T0}, 1')
        g.i(f's_mov_b32 s{S_MS}, 0x00030003')
        g.i(f's_mov_b32 s{S_T0}, 2')
        g.i(f's_mov_b32 s{S_T1}, 4')
        g.i(f's_branch {lx}')
        g.label(l3)
        g.i(f'v_mov_b32 v{V_RED}, 0')
        g.i(f'v_mov_b32 v{V_MST}, 0')
        g.i(f's_branch {lx}')
        g.label(lq)
        g.i(f'v_lshrrev_b32 v{B}, 3, v{L}')
        g.i(f'v_mul_u32_u24 v{V_RED}, {HS}, v{B}')
        g.i(f'v_and_b32 v{B}, 7, v{L}')
        g.i(f'v_lshl_add_u32 v{V_RED}, v{B}, 4, v{V_RED}')
        g.i(f's_lshl_b32 s{S_TRY}, s{S_W}, 5')
        g.i(f's_add_u32 s{S_TRY}, s{S_TRY}, s{S_H}')
        g.i(f's_lshl_b32 s{S_TRY}, s{S_TRY}, 7')
        g.i(f'v_add_u32 v{V_RED}, s{S_TRY}, v{V_RED}')
        g.i(f'v_bfe_u32 v{E}, v{L}, 2, 1')
        g.i(f'v_lshlrev_b32 v{V_MST}, 8, v{E}')
        g.i(f'v_lshl_add_u32 v{V_MST}, v{A}, 5, v{V_MST}')
        g.i(f'v_lshl_add_u32 v{V_MST}, v{D}, 4, v{V_MST}')
        g.i(f'v_lshl_add_u32 v{V_MST}, v{C}, 3, v{V_MST}')
        g.i(f's_mul_i32 s{S_TRY}, s{S_W}, 5')
        g.i(f's_add_u32 s{S_TRY}, s{S_TRY}, s{S_T0}')
        g.i(f's_lshl_b32 s{S_TRY}, s{S_TRY}, 10')
        g.i(f's_lshl_b32 s{S_T1}, s{S_T1}, 6')
        g.i(f's_add_u32 s{S_TRY}, s{S_TRY}, s{S_T1}')
        g.i(f's_and_b32 s{S_T1}, s{S_H}, 1')
        g.i(f's_lshl_b32 s{S_RNEED}, s{S_T1}, 9')
        g.i(f's_add_u32 s{S_TRY}, s{S_TRY}, s{S_RNEED}')
        g.i(f'v_add_u32 v{V_MST}, s{S_TRY}, v{V_MST}')
        g.i(f's_lshl_b32 s{S_T0}, s{S_T0}, 5')
        g.i(f's_lshl_b32 s{S_T1}, s{S_T1}, 3')
        g.i(f's_add_u32 s{S_T0}, s{S_T0}, s{S_T1}')
        g.i(f's_lshl_b32 s{S_T1}, s{S_W}, 8')
        g.i(f's_add_u32 s{S_T0}, s{S_T0}, s{S_T1}')
        g.i(f'v_add_u32 v{D0}, v{D0}, v{B}')
        g.i(f'v_add_lshl_u32 v{D0}, v{D0}, s{S_T0}, 1')
        g.i(f's_mov_b32 s{S_T0}, 32')
        g.i(f's_mov_b32 s{S_T1}, 256')
        g.label(lx)
        P0 = 68
        g.i(f's_mov_b32 s{P0}, s{S_PTR}')
        g.i(f's_mov_b32 s{P0+1}, s{S_PTR+1}')
        g.i(f's_mov_b32 s{P0+2}, 9216')
        g.i(f's_mov_b32 s{P0+3}, 0x20000')
        for k in range(4):
            g.i(f'v_mov_b32 v{V_KXD+k}, 0')
        g.i(f'v_mov_b64 {vr(V_PUB,2)}, -1')
        g.i(f'v_mov_b64 {vr(V_PUB+2,2)}, 0')
        g.i(f's_add_u32 s{S_TRY}, s{S_T0}, s{S_T1}')
        sk = g.newlabel('ix')
        g.i(f's_cmp_eq_u32 s{S_W}, 3')
        g.i(f's_cbranch_scc1 {sk}')
        g.i(f'buffer_load_ushort v{V_AR}, v{D0}, s[{P0}:{P0+3}], 0 offen')
        g.i(f'buffer_load_ushort v{V_AR+1}, v{D0}, s[{P0}:{P0+3}], s{S_T0} offen')
        g.i(f'buffer_load_ushort v{V_AR+2}, v{D0}, s[{P0}:{P0+3}], s{S_T1} offen')
        g.i(f'buffer_load_ushort v{V_AR+3}, v{D0}, s[{P0}:{P0+3}], s{S_TRY} offen')
        g.i(f's_mov_b64 exec, s[{S_MS}:{S_MS+1}]')
        for k in range(1, 4):
            g.i(f's_mov_b32 s{S_T0}, {OFF_MB + 16384 * k}')
            g.i(f'buffer_store_dwordx2 {vr(V_PUB,2)}, v{V_MST}, {WS}, s{S_T0} offen sc1')
        g.i('s_mov_b64 exec, -1')
        g.label(sk)
        for j in range(3):
            if j == 2:
                g.i(f's_mov_b64 exec, 0xffff')
            g.i(f'buffer_store_dwordx4 {vr(V_KXD,4)}, v{V_L16}, {WS}, s{S_PST+j} offen sc1')
            g.i(f's_xor_b32 s{S_T0}, s{S_PST+j}, 0x100000')
            g.i(f'buffer_store_dwordx4 {vr(V_KXD,4)}, v{V_L16}, {WS}, s{S_T0} offen sc1')
        g.i('s_mov_b64 exec, -1')
        g.vm_q = [t for t in g.vm_q if t]
        for n, p in enumerate(SEQ):
            g.wait_vm(('w', n))
            g.i('s_barrier')
            if n + 8 < len(SEQ):
                issue(n + 8)
            if n == 9:
                s2 = g.newlabel('m0')
                g.i(f's_cmp_eq_u32 s{S_W}, 3')
                g.i(f's_cbranch_scc1 {s2}')
                g.i(f'v_lshl_or_b32 v{V_T0}, v{V_AR+1}, 16, v{V_AR}')
                g.i(f'v_lshl_or_b32 v{V_T1}, v{V_AR+3}, 16, v{V_AR+2}')
                g.i(f'v_min_u32 v{V_T0}, -2, v{V_T0}')
                g.i(f's_mov_b64 exec, s[{S_MS}:{S_MS+1}]')
                g.i(f'buffer_store_dwordx2 {vr(V_T0,2)}, v{V_MST}, {WS}, s{S_MCUR} offen sc1')
                g.i('s_mov_b64 exec, -1')
                g.label(s2)
                g.vm_q = [t for t in g.vm_q if t]
            if n == 19:
                s2 = g.newlabel('si')
                g.i(f's_cmp_lg_u32 s{S_W}, 0')
                g.i(f's_cbranch_scc1 {s2}')
                if self.standalone:
                    g.i(f's_mov_b32 s{S_T0}, 1')
                else:
                    g.i(f's_cmp_eq_u32 s{S_XCC}, {CHAIN_XCC}')
                    g.i(f's_cselect_b32 s{S_T0}, 1, 0x10001')
                g.i('s_mov_b64 exec, 1')
                g.i(f'v_mov_b32 v{V_T0}, {DBG_INIT}')
                g.i(f'v_mov_b32 v{V_T1}, s{S_T0}')
                g.i(f'global_atomic_add v{V_T0}, v{V_T1}, s[{S_DBG}:{S_DBG+1}]')
                g.i('s_mov_b64 exec, -1')
                g.label(s2)
                g.vm_q = [t for t in g.vm_q if t]
            blk = (n % 9) * 4096
            inlds = p in LDS_PAIRS
            for x in range(2):
                for q in range(4):
                    dst = vr(V_STG + 8 * x + 2 * q, 2) if inlds else wfrag(p, x, 2 * q, 2)
                    if p[0] in 'qk':
                        va, off = TQ0, 1024 * (q & 1) + 8 * x
                    elif p[0] == 'l':
                        va, off = TL0, 512 * (q & 1) + 2048 * x
                    elif p[0] == 'o':
                        va, off = TO[x], 1024 * (q & 1)
                    else:
                        va, off = TR0, 1024 * (q & 1) + 32 * x
                    g.i(f'ds_read_b64_tr_b16 {dst}, v{va + (q >> 1)} offset:{blk + off}')
            g.wait_lds()
            if inlds:
                g.i('s_barrier')
                for y in range(4):
                    g.i(f'ds_write_b128 v{V_WL}, {vr(V_STG + 4 * y, 4)} offset:{blk + y * 1024}')
                g.wait_lds()

    def scalar_consts(self):
        g = self.g
        g.i(f's_mov_b32 s{S_STEP}, 0')
        g.i(f's_mov_b32 s{S_MCUR}, {OFF_MB}')
        g.i(f's_mov_b32 s{S_MRST}, {OFF_MB + 3 * 16384}')
        g.i(f's_mov_b32 s{S_TAG}, 1')
        g.i(f's_lshl_b32 s{S_FLG}, s{S_H}, 7')
        g.i(f's_add_u32 s{S_RDY}, s{S_FLG}, {OFF_FLAG + FL_P1}')
        g.i(f's_add_u32 s{S_FLG}, s{S_FLG}, {OFF_FLAG + FL_KM}')
        g.i(f's_mul_i32 s{S_T0}, s{S_H}, {HS}')
        g.i(f's_lshl_b32 s{S_T1}, s{S_W}, 8')
        g.i(f's_add_u32 s{S_PST+2}, s{S_T0}, s{S_T1}')
        g.i(f's_add_u32 s{S_PST+2}, s{S_PST+2}, {OFF_PART + 8192}')
        g.i(f's_lshl_b32 s{S_T1}, s{S_W}, 10')
        g.i(f's_add_u32 s{S_T0}, s{S_T0}, s{S_T1}')
        g.i(f's_add_u32 s{S_PST}, s{S_T0}, {OFF_PART}')
        g.i(f's_add_u32 s{S_PST+1}, s{S_T0}, {OFF_PART + 4096}')
        for n in range(4):
            g.i(f's_mov_b32 s{S_RED + n}, {OFF_PART + n * 8 * HS}')
        g.i(f's_mov_b32 s{S_MS}, 0x00ff00ff')
        g.i(f's_mov_b32 s{S_MS+1}, 0')
        g.i(f's_mov_b32 s{S_M1}, 0x11111111')
        g.i(f's_mov_b32 s{S_M1+1}, 0x11111111')
        g.i(f's_lshl_b32 s{S_T0}, s{S_H}, 12')
        g.i(f's_add_u32 s{S_T0}, s{S_T0}, s{S_T1}')
        g.i(f's_add_u32 s{S_KM}, s{S_T0}, {OFF_KM - 32 * 4096}')
        g.i(f's_lshl_b32 s{S_T0}, s{S_T0}, 1')
        g.i(f's_add_u32 s{S_KX}, s{S_T0}, {OFF_KX}')
        g.i(f's_add_u32 s{S_VX}, s{S_T0}, {OFF_VX}')
        g.i(f's_mov_b32 s{S_M3}, 0x33333333')
        g.i(f's_mov_b32 s{S_M3+1}, 0x33333333')
        g.i(f's_mov_b32 s{S_ONE}, 0x3f803f80')
        g.i(f's_mov_b32 s{S_ONE+1}, 0x3f803f80')
        g.i(f's_mov_b32 s{S_C}, {f2u(128 ** -0.5 * math.log2(math.e)):#x}')
        g.i(f's_mov_b32 s{S_C2}, s{S_C}')
        g.i(f's_mov_b32 s{S_C2+1}, s{S_C}')

    def wait_word(self, off, val, bail, mask=None):
        g = self.g
        lp, ok = g.newlabel('ww'), g.newlabel('ww')
        g.i(f's_mov_b32 s{S_TRY}, 0')
        g.i(f'v_mov_b32 v{V_T0}, {off}')
        g.label(lp)
        g.i(f'global_load_dword v{V_T1}, v{V_T0}, s[{S_DBG}:{S_DBG+1}] sc1')
        g.wait_vm()
        g.i(f'v_readfirstlane_b32 s{S_T1}, v{V_T1}')
        g.i(f's_and_b32 s{S_T0}, s{S_T1}, {mask if mask else -1}')
        g.i(f's_cmp_ge_u32 s{S_T0}, {val}')
        g.i(f's_cbranch_scc1 {ok}')
        g.i('s_sleep 2')
        g.i(f's_add_u32 s{S_TRY}, s{S_TRY}, 1')
        g.i(f's_cmp_lt_u32 s{S_TRY}, {SPIN_MAX}')
        g.i(f's_cbranch_scc1 {lp}')
        g.i(f's_branch {bail}')
        g.label(ok)

    def spin_ready(self, soff, sneed, bail):
        g = self.g
        lp, ok = g.newlabel('rd'), g.newlabel('rd')
        g.i(f's_mov_b32 s{S_TRY}, 0')
        g.label(lp)
        g.i(f'buffer_load_dword v{V_MST}, off, {WS}, s{soff} sc1')
        g.wait_vm()
        g.i(f'v_readfirstlane_b32 s{S_T0}, v{V_MST}')
        g.i(f's_cmp_ge_u32 s{S_T0}, {sneed}')
        g.i(f's_cbranch_scc1 {ok}')
        g.i('s_sleep 4')
        g.i(f's_add_u32 s{S_TRY}, s{S_TRY}, 1')
        g.i(f's_cmp_lt_u32 s{S_TRY}, {SPIN_MAX}')
        g.i(f's_cbranch_scc1 {lp}')
        g.i(f's_branch {bail}')
        g.label(ok)

    def start(self, bail, done):
        g = self.g
        self.wait_word(DBG_INIT, 32, bail, 0xffff)
        g.i(f's_lshr_b32 s{S_XCC}, s{S_T1}, 16')
        g.i(f's_mov_b32 s{S_RNEED}, 2')
        g.i(f's_mov_b32 s{S_PF}, 0')
        if not self.standalone:
            sk = g.newlabel('st')
            g.i(f's_cmp_lg_u32 s{S_W}, 3')
            g.i(f's_cbranch_scc1 {sk}')
            self.wait_word(DBG_LNOK, 1, bail)
            lp, ok = g.newlabel('rd'), g.newlabel('rd')
            g.i(f'v_min_u32 v{V_T0}, 32, v{V_L16}')
            g.i(f'v_lshlrev_b32 v{V_T0}, 10, v{V_T0}')
            g.i(f's_mov_b32 s{S_TRY}, 0')
            g.label(lp)
            g.i(f'buffer_load_dword v{V_T1}, v{V_T0}, {WS}, s{S_RDY} offen sc1')
            g.wait_vm()
            g.i(f'v_cmp_eq_u32 vcc, 0, v{V_T1}')
            g.i(f's_cbranch_vccz {ok}')
            g.i('s_sleep 4')
            g.i(f's_add_u32 s{S_TRY}, s{S_TRY}, 1')
            g.i(f's_cmp_lt_u32 s{S_TRY}, {SPIN_MAX}')
            g.i(f's_cbranch_scc1 {lp}')
            g.i(f's_branch {bail}')
            g.label(ok)
            g.label(sk)
        self.after_wait()
        if self.prio:
            g.i(f's_setprio {self.prio}')
        if self.standalone:
            self.loops(bail, done, False)
            return
        slow = g.newlabel('slow')
        g.i(f's_cmp_lg_u32 s{S_XCC}, 0')
        g.i(f's_cbranch_scc1 {slow}')
        self.loops(bail, done, False)
        g.label(slow)
        self.loops(bail, done, True)

    def loops(self, bail, done, slow):
        g = self.g
        lab = [g.newlabel('role') for _ in range(4)]
        for w in range(1, 4):
            g.i(f's_cmp_eq_u32 s{S_W}, {w}')
            g.i(f's_cbranch_scc1 {lab[w]}')
        for w in range(4):
            g.label(lab[w])
            self.loop(bail, done, w, slow)

    def stage_list(self, p):
        def mk(y):
            def f():
                self.g.i(f'ds_read_b128 {vr(V_STG + 4 * y, 4)}, v{V_WL} offset:{LDS_BLOCK[p] * 4096 + y * 1024}',
                         tag=('stg', p, y >> 1))
                self.staged[y] = p
            f.stg = True
            return f
        return [mk(y) for y in range(4)]

    @staticmethod
    def areg(t, ph):
        return [V_AR, V_AR + 4, V_AR + 8, V_G2][(9 * ph + t) % 4]

    def aread(self, t, ph):
        self.ring[self.areg(t, ph)] = t
        self.g.i(f'ds_read_b128 {vr(self.areg(t, ph), 4)}, v{V_L16} offset:{L_M + t * 1024}', tag=('a', ph, t))

    def flag_store(self, final=False):
        g = self.g
        if final:
            g.i(f'v_mov_b32 v{V_T0}, {NSEG}')
        else:
            g.i(f's_sub_u32 s{S_T0}, s{S_STEP}, 1')
            g.i(f's_max_i32 s{S_T0}, s{S_T0}, 0')
            g.i(f'v_mov_b32 v{V_T0}, s{S_T0}')
        g.i('s_mov_b64 exec, 1')
        g.i(f'buffer_store_dword v{V_T0}, off, {WS}, s{S_FLG} sc1')
        g.i('s_mov_b64 exec, -1')

    def slow_io(self, role):
        g = self.g
        L = []
        if role in (1, 2) and 'nopf' not in self.opt:
            def pf():
                g.i(f's_add_u32 s{S_T0}, s{S_KX if role == 1 else S_VX}, {2*32*8192 - role*2048}')
                g.i(f'buffer_load_dword v{V_T1}, {WS}, s{S_T0} offen {self.pffl} lds')
            L.append(pf)
        if role == 3:
            if not self.standalone:
                L.append(f'buffer_load_dword v{V_MST}, off, {WS}, s{S_RDY} sc1')
            if 'plainpub' not in self.opt:
                L.append(self.flag_store)
        return L

    def advance(self):
        g = self.g
        for j in range(3):
            g.i(f's_xor_b32 s{S_PST+j}, s{S_PST+j}, 0x100000')
        g.i(f's_add_u32 s{S_MCUR}, s{S_MCUR}, 0x4000')
        g.i(f's_and_b32 s{S_MCUR}, s{S_MCUR}, 0xfffeffff')
        if 'fixkv' not in self.opt:
            g.i(f's_add_u32 s{S_KX}, s{S_KX}, {32*8192}')
            g.i(f's_add_u32 s{S_VX}, s{S_VX}, {32*8192}')
        if 'plainpub' not in self.opt:
            g.i(f's_add_u32 s{S_KM}, s{S_KM}, {32*4096}')

    def advance2(self, role):
        g = self.g
        if role < 3:
            for n in range(4 if role < 2 else 1):
                g.i(f's_xor_b32 s{S_RED+n}, s{S_RED+n}, 0x100000')
            g.i(f's_add_u32 s{S_MRST}, s{S_MRST}, 0x4000')
            g.i(f's_and_b32 s{S_MRST}, s{S_MRST}, 0xfffeffff')
        g.i(f's_and_b32 s{S_T0}, s{S_STEP}, 1')
        g.i(f's_xor_b32 s{S_TAG}, s{S_TAG}, s{S_T0}')
        g.i(f's_add_u32 s{S_STEP}, s{S_STEP}, 1')

    def loop(self, bail, done, role, slow, final=False):
        g = self.g
        opt = self.opt
        XS = 'sc1' if slow else ''
        top = g.newlabel('step')
        Q0, K0, Q1, K1 = [V_ACC + 4 * k for k in range(4)]
        VA0, VA1 = Q0, K0
        fill, mq, cold = [], [], []

        def run(f):
            g.i(f) if isinstance(f, str) else f()

        def pop(n=1, m=1):
            for _ in range(m):
                if mq:
                    run(mq.pop(0))
            for _ in range(n):
                if fill:
                    run(fill.pop(0))

        def smf(acc, a, p, x, atag=None):
            if p[0] in 'qkv':
                assert self.ring[a] == p[1], (p, self.ring)
            if p in LDS_PAIRS:
                assert self.staged[2 * x] == p and self.staged[2 * x + 1] == p, (p, x, self.staged)
                g.wait_lds2(atag, ('stg', p, x))
                b = vr(V_STG + 8 * x, 8)
            else:
                g.wait_lds2(atag)
                b = wfrag(p, x)
            g.i(f'v_smfmac_f32_16x16x64_bf16 {vr(acc,4)}, {vr(a,4)}, {b}, v{V_IDX}')
            if p in STG_NEXT:
                k = 0
                while k < len(mq) and getattr(mq[k], 'stg', False):
                    k += 1
                mq[k:k] = self.stage_list(STG_NEXT[p])[2 * x:2 * x + 2]

        def ard(t, ph):
            f = lambda: self.aread(t, ph)
            f.stg = True
            return f

        def count_try():
            g.i(f's_add_u32 s{S_TRY}, s{S_TRY}, 1')
            g.i(f's_cmp_gt_u32 s{S_TRY}, {SPIN_MAX}')
            g.i(f's_cbranch_scc1 {bail}')

        def note(sdiag, sstat):
            if self.diag:
                g.i(f's_mov_b32 s{sdiag}, s{S_TRY}')
            if 'stat' in opt:
                g.i(f's_add_u32 s{sstat}, s{sstat}, s{S_TRY}')

        def attempt(load, check, sets, sdiag, sstat, drain=False):
            again, ok = g.newlabel('pp'), g.newlabel('ok')
            check(sets[0], 'A')
            g.i(f's_cbranch_vccnz {again}')
            g.label(ok)
            note(sdiag, sstat)
            nb = len([t for t in g.vm_q if t and t[0] == 'B'])

            def retry():
                g.label(again)
                g.vm_q = [('B', k) for k in range(nb)]
                load(sets[0], 'A')
                count_try()
                if len(sets) > 1:
                    check(sets[1], 'B')
                    g.i(f's_cbranch_vccz {ok}')
                    load(sets[1], 'B')
                    g.i(f's_add_u32 s{S_TRY}, s{S_TRY}, 1')
                check(sets[0], 'A')
                g.i(f's_cbranch_vccnz {again}')
                if drain:
                    g.wait_lds()
                g.i(f's_branch {ok}')
                g.forget()
            cold.append(retry)

        FR = {0: (0, 1), 3: (2, 3), 2: (4,), 1: ()}[role]

        def mload(S, tg):
            for k, t in enumerate(FR):
                g.i(f'buffer_load_dwordx4 {vr(S+4*k,4)}, v{V_L16}, {WS}, s{S_MP if t == 4 else S_MCUR} offen '
                    f'offset:{1024*(t % 4)} sc1', tag=(tg, k))

        def mcheck(S, tg):
            for k, t in enumerate(FR):
                g.wait_vm((tg, k))
                g.i(f'ds_write_b128 v{V_L16}, {vr(S+4*k,4)} offset:{L_M + 1024*t}')
                if k == 0:
                    g.i(f'v_max_u32 v{V_T0}, v{S}, v{S+2}')
                else:
                    g.i(f'v_max3_u32 v{V_T0}, v{V_T0}, v{S+4}, v{S+6}')
            g.i(f'v_cmp_eq_u32 vcc, -1, v{V_T0}')

        kvx = [lambda: g.i(f'buffer_load_dwordx4 {vr(V_KXD,4)}, v{V_KV}, {WS}, s{S_KX} offen {self.kvfl}', tag='kx'),
               lambda: g.i(f'buffer_load_dwordx4 {vr(V_KXD+4,4)}, v{V_KV}, {WS}, s{S_KX} offen offset:256 {self.kvfl}', tag='kx'),
               lambda: g.i(f'buffer_load_dwordx4 {vr(V_X0,4)}, v{V_KV}, {WS}, s{S_VX} offen {self.kvfl}', tag='vx'),
               lambda: g.i(f'buffer_load_dwordx4 {vr(V_X1,4)}, v{V_KV}, {WS}, s{S_VX} offen offset:256 {self.kvfl}', tag='vx')]

        def pub():
            g.i(f's_mov_b64 exec, s[{S_PM}:{S_PM+1}]')
            g.i(f'buffer_store_dwordx4 {vr(V_PUB,4)}, v{V_L16}, {WS}, s{S_KM} offen {"" if "plainpub" in opt else self.pubfl}')
            g.i('s_mov_b64 exec, -1')

        def half(x, dst):
            return [f'v_add_f32 v{x}, v{x}, v{x+2}', f'v_add_f32 v{x+1}, v{x+1}, v{x+3}',
                    f'v_cvt_pk_bf16_f32 v{dst}, v{x}, v{x+1}']

        if not final and self.align is not None:
            g.raw('.p2align 6')
            for _ in range(self.align):
                g.i('s_nop 0')
        g.c(f'==== chain wave {role}: ' + ('last segment' if final else 'one segment') + (', write-through exchange' if slow else ', exchange through the shared L2'))
        g.label(top)
        g.ahead = self.ahead
        g.lds_q = []; g.vm_q = []
        self.nst = 0; self.names = []
        g.i(f's_mov_b32 s{S_TRY}, 0')
        G2, NG = {0: (5, 2), 3: (7, 2)}.get(role, (None, 0))
        if role == 2:
            g.i(f's_add_u32 s{S_MP}, s{S_MCUR}, 4096')
        if G2:
            g.i(f's_add_u32 s{S_MG}, s{S_MCUR}, {1024*G2}')
            g.i(f's_mov_b32 m0, {L_M + 1024*G2}')
        if role in (1, 2):
            g.i(f's_mov_b32 m0, {L_EL + 256*role}')
        g.i(f's_mov_b64 s[{S_PM}:{S_PM+1}], -1')
        g.i(f's_mov_b32 s{S_TRY2}, 0')
        for k in range(0, 16, 2):
            g.i(f'v_mov_b64 {vr(V_ACC+k,2)}, 0')
        MA = V_KXD
        if FR:
            if self.dm[role] is None:
                g.i('s_waitcnt vmcnt(0)')
            else:
                g.c('back-off: the peers\' m words are still on their way to L2')
                g.pad(self.dm[role])
            self.stamp('m iss', 9)
            mload(MA, 'A')
            if self.dq is not None:
                g.c('second attempt in flight half a round trip behind the first')
                g.pad(self.dq)
                mload(V_STG, 'B')
                attempt(mload, mcheck, [MA, V_STG], 99, 94)
            else:
                attempt(mload, mcheck, [MA], 99, 94)
        redo = g.newlabel('redo')
        g.label(redo)
        g.vm_q = []

        def g2dma():
            for k in range(NG):
                g.i(f'buffer_load_dwordx4 v{V_L16}, {WS}, s{S_MG} offen offset:{1024*k} sc1 lds', tag='g2')
        if not self.late:
            g2dma()
        g.wait_lds()
        self.stamp('m in lds', 9)
        g.i('s_barrier')
        if self.late == 1 or (self.late and final):
            g2dma()
        self.stamp('B1')
        if self.diag:
            g.i('s_memrealtime s[100:101]')
        g.c('---- q,k projection')
        for t in range(3):
            self.aread(t, 0)
        if FR and self.dq is not None:
            mq.append(f's_waitcnt vmcnt({NG if self.late <= 1 or final else 0})')
        mq += self.stage_list(LDS_PAIRS[0])
        if not (FR and self.dq is not None):
            pop(0, 2)
        mq += [ard(3, 0)] + kvx
        nan, back = g.newlabel('nan'), g.newlabel('back')

        def recover():
            g.label(nan)
            g.i(f'v_mov_b32 v{V_T0}, 0')
            for t in range(4, 9):
                for hf in range(2):
                    g.i(f'ds_read_b32 v{V_T1}, v{V_L16} offset:{L_M + 1024*t + 8*hf}')
                    g.i('s_waitcnt lgkmcnt(0)')
                    g.i(f'v_max_u32 v{V_T0}, v{V_T0}, v{V_T1}')
            g.i(f'v_cmp_eq_u32 s[{S_NAN}:{S_NAN+1}], -1, v{V_T0}')
            g.i(f's_cmp_eq_u64 s[{S_NAN}:{S_NAN+1}], 0')
            g.i(f's_cbranch_scc1 {back}')
            g.i(f's_add_u32 s{S_TRY2}, s{S_TRY2}, 1')
            if 'stat' in opt:
                g.i('s_add_u32 s93, s93, 1')
            g.i(f's_cmp_gt_u32 s{S_TRY2}, {SPIN_MAX}')
            g.i(f's_cbranch_scc1 {bail}')
            g.i(f's_mov_b64 s[{S_PM}:{S_PM+1}], 0')
            for k in range(0, 16, 2):
                g.i(f'v_mov_b64 {vr(V_ACC+k,2)}, 0')
            g.i('s_waitcnt vmcnt(0)')
            g.i('s_barrier')
            g.i(f's_branch {redo}')
            g.forget()
        cold.append(recover)
        if final:
            del mq[-4:]
            mq.append(pub)
            n = 0
            for t in list(range(9)) + [11]:
                ph, tt = (1, 2) if t == 11 else (0, t)
                for acc, mat, tl in [(Q0, 'v', 0), (Q1, 'v', 1), (K0, 'k', 0), (K1, 'k', 1)]:
                    if (mat == 'v' and t == 2) or (mat == 'k' and t == 11):
                        continue
                    if t == 3 and acc == Q0:
                        g.wait_vm('g2')
                        g.i('s_barrier')
                        self.aread(4, 0)
                        mq[0:0] = [ard(5, 0), ard(6, 0)]
                    smf(acc, self.areg(tt, ph), (mat, tt), tl, ('a', ph, tt))
                    pop(0, 3 if n == 0 else 2 if n == 1 else 1)
                    n += 1
                nxt = {3: (7, 0), 4: (8, 0), 7: (2, 1)}.get(t)
                if nxt:
                    mq[0:0] = [ard(*nxt)]
            assert not mq
            for f in half(K0, V_PUB + 1) + half(K1, V_PUB + 3) + half(Q0, V_PUB) + half(Q1, V_PUB + 2):
                g.i(f)
            g.i(f'v_cmp_u_f32 s[{S_NAN}:{S_NAN+1}], v{K1}, v{K1+1}')
            g.i(f'v_min_u32 v{V_PUB}, -2, v{V_PUB}')
            g.i(f's_cmp_lg_u64 s[{S_NAN}:{S_NAN+1}], 0')
            g.i(f's_cbranch_scc1 {nan}')
            g.label(back)
            g.i(f's_add_u32 s{S_KM}, s{S_KM}, {32*4096}')
            g.i(f'buffer_store_dwordx4 {vr(V_PUB,4)}, v{V_L16}, {WS}, s{S_KM} offen sc1')
            g.i(f's_branch {done}')
            g.forget()
            for f in cold:
                f()
            return
        for t in range(7):
            a = self.areg(t, 0)
            for x, (acc, mat, tl) in enumerate([(Q0, 'q', 0), (Q1, 'q', 1), (K0, 'k', 0), (K1, 'k', 1)]):
                n = 4 * t + x
                if self.late > 1 and n == self.late:
                    g2dma()
                if n == self.io:
                    mq.append(pub)
                    mq += self.slow_io(role)
                    if role in (1, 2):
                        g.i(f'v_lshlrev_b32 v{V_T1}, 3, v{V_L16}')
                if n == 16 + self.bp:
                    g.wait_vm('g2')
                    g.i('s_barrier')
                    self.aread(5, 0)
                    mq[0:0] = [ard(6, 0), ard(7, 0)]
                smf(acc, a, (mat, t), tl, ('a', 0, t))
                self.stamp(f'p{n}', 9)
                if x == 3:
                    nxt = {0: (4, 0), 4: (8, 0), 5: (0, 1), 6: (1, 1)}.get(t)
                    if nxt:
                        k = 0
                        while k < len(mq) and getattr(mq[k], 'stg', False):
                            k += 1
                        mq.insert(k, ard(*nxt))
                pop(1, 3 if n == 0 else 2 if n == 1 else 1)
        g.i(f's_mov_b64 vcc, s[{S_M3}:{S_M3+1}]')
        a7, a8 = self.areg(7, 0), self.areg(8, 0)
        smf(Q0, a7, ('q', 7), 0, ('a', 0, 7))
        pop()
        smf(Q0, a8, ('q', 8), 0, ('a', 0, 8))
        pop()
        smf(K0, a8, ('k', 8), 0)
        pop()
        smf(K0, a7, ('k', 7), 0)
        assert pub not in mq
        fill += half(Q0, V_PUB) + half(K0, V_PUB + 1)
        pop(1)
        smf(Q1, a8, ('q', 8), 1)
        pop(2)
        smf(Q1, a7, ('q', 7), 1)
        pop(2)
        smf(K1, a8, ('k', 8), 1)
        pop(1)
        g.i(f'v_mov_b64 {vr(Q0,2)}, 0')
        smf(K1, a7, ('k', 7), 1)
        mq += [ard(2, 1), ard(3, 1)]
        pop(0)
        g.i(f'v_mov_b64 {vr(Q0+2,2)}, 0')
        self.stamp('qk done')
        g.c('---- v projection interleaved with the score path')
        vq = [(t, x) for t in range(9) for x in range(2)]

        def vs(n, f=1):
            for _ in range(n):
                t, x = vq.pop(0)
                smf(VA0 if x == 0 else VA1, self.areg(t, 1), ('v', t), x, ('a', 1, t))
                if x == 1 and t + 4 < 9:
                    mq.append(ard(t + 4, 1))
                pop(f)
        ID = vr(V_ID0, 2)
        QK, T0R = Q1, K1
        g.i(f'v_mfma_f32_16x16x16_bf16 {vr(K0,4)}, {vr(V_PUB,2)}, {ID}, 0')
        for f in half(Q1, V_PUB + 2):
            g.i(f)
        pop(0)
        for f in half(K1, V_PUB + 3):
            g.i(f)
        g.i(f'v_cmp_u_f32 s[{S_NAN}:{S_NAN+1}], v{Q1}, v{Q1+1}')
        g.i(f'v_cvt_pk_bf16_f32 v{QK}, v{K0}, v{K0+1}')
        g.i(f'v_mfma_f32_16x16x16_bf16 {vr(K1,4)}, {vr(V_PUB+2,2)}, {ID}, 0')
        g.i(f'v_cvt_pk_bf16_f32 v{QK+1}, v{K0+2}, v{K0+3}')
        g.i(f'v_mov_b64 {vr(K0,2)}, 0')
        fill.append(f'v_mov_b64 {vr(K0+2,2)}, 0')
        vq[1], vq[2] = vq[2], vq[1]
        vs(2)
        g.i(f'v_cvt_pk_bf16_f32 v{QK+2}, v{K1}, v{K1+1}')
        g.i(f'v_cvt_pk_bf16_f32 v{QK+3}, v{K1+2}, v{K1+3}')
        pop(0)
        self.stamp('pre qk wait', 1)
        g.wait_vm('kx')
        g.i(f'v_mfma_f32_16x16x32_bf16 {vr(V_KXD,4)}, {vr(V_KXD,4)}, {vr(QK,4)}, 0')
        pop(0)
        g.i(f'v_mfma_f32_16x16x32_bf16 {vr(V_KXD+4,4)}, {vr(V_KXD+4,4)}, {vr(QK,4)}, 0')
        pop(0)
        g.i(f's_cmp_lg_u64 s[{S_NAN}:{S_NAN+1}], 0')
        g.i(f'v_mfma_f32_16x16x32_bf16 {vr(T0R,4)}, {vr(QK,4)}, {vr(QK,4)}, 0')
        g.i(f's_cbranch_scc1 {nan}')
        g.label(back)
        vs(1)
        for r in range(4):
            g.i(f'v_cndmask_b32_dpp v{V_KXD+r}, v{V_KXD+4+r}, v{V_KXD+r}, vcc quad_perm:[0,1,0,1] row_mask:0xf bank_mask:0xf')
        g.i(f'ds_write_b128 v{V_SW}, {vr(V_KXD,4)} offset:{L_QK + 1024*role}')
        g.i(f'v_cndmask_b32_dpp v{T0R+2}, v{T0R+3}, v{T0R+2}, vcc quad_perm:[0,1,0,1] row_mask:0xf bank_mask:0xf')
        g.i(f'ds_write_b32 v{V_SW}, v{T0R+2} offset:{L_SM + 4*role}', tag='sw')
        self.stamp('S issued', 9)
        X = V_STG
        M = Q1
        PB = V_KXD + 2
        WL_, WM, WR = V_X0 - 2, V_T0, V_KXD
        fill += [f'v_mov_b32 v{PB}, 0', f'v_mov_b32 v{PB+5}, 0', f'v_mov_b32 v{WL_}, 0', f'v_mov_b32 v{WR+1}, 0']
        vs(self.nb)
        assert vq[0][0] > 2
        g.wait_lds('sw')
        self.stamp('S written', 1)
        g.i('s_barrier')
        self.stamp('B2')
        rd = [(lambda w=w: g.i(f'ds_read_b128 {vr(X+4*w,4)}, v{V_L16} offset:{L_QK + 1024*w}', tag=('sx', w))) for w in range(4)]
        rd.append(lambda: g.i(f'ds_read_b128 {vr(M,4)}, v{V_L16} offset:{L_SM}', tag='sm'))
        rd[0]()
        mq[0:0] = rd[1:]
        vs(len(vq) - 5)
        g.wait_lds(('sx', 1))
        fill += [f'v_add_f32 v{X+r}, v{X+r}, v{X+4+r}' for r in range(4)]
        pop(1)
        vs(3)
        g.wait_lds2('sm', ('a', 1, 8))
        fill += [f'v_add_f32 v{M}, v{M}, v{M+1}', f'v_add_f32 v{M+2}, v{M+2}, v{M+3}', f'v_add_f32 v{M}, v{M}, v{M+2}',
                 f'v_add_f32 v{X+8}, v{X+8}, v{X+12}', f'v_add_f32 v{X+9}, v{X+9}, v{X+13}']
        vs(2)
        assert not vq
        pop(100, 100)
        self.stamp('v done', 9)
        g.i(f'v_pk_add_f32 {vr(X+10,2)}, {vr(X+10,2)}, {vr(X+14,2)}')
        g.i(f'v_pk_add_f32 {vr(X,2)}, {vr(X,2)}, {vr(X+8,2)}')
        g.i(f'v_pk_add_f32 {vr(X+2,2)}, {vr(X+2,2)}, {vr(X+10,2)}')
        g.c('---- softmax (row max over all 40 keys), P.V')
        MX, MY = M + 2, M + 3
        ONE = V_AR
        g.i(f'v_max3_f32 v{MX}, v{X}, v{X+1}, v{M}')
        g.i(f'v_max3_f32 v{MX}, v{MX}, v{X+2}, v{X+3}')
        g.i(f'v_pk_add_f32 {vr(VA0,2)}, {vr(VA0,2)}, {vr(VA0+2,2)}')
        g.i(f'v_pk_add_f32 {vr(VA1,2)}, {vr(VA1,2)}, {vr(VA1+2,2)}')
        g.i(f'v_max_f32_dpp v{MY}, v{MX}, v{MX} row_ror:8 row_mask:0xf bank_mask:0xf')
        g.i(f'v_max_f32_dpp v{MX}, v{MX}, v{MX} row_ror:8 row_mask:0xf bank_mask:0xf')
        g.i(f'v_cvt_pk_bf16_f32 v{WL_+1}, v{VA0}, v{VA0+1}')
        g.i(f'v_cvt_pk_bf16_f32 v{WM+1}, v{VA1}, v{VA1+1}')
        g.i(f'v_permlane16_swap_b32 v{MX}, v{MY}')
        g.i(f'v_max_f32 v{M+1}, v{MX}, v{MY}')
        g.i(f'v_max_f32 v{MX}, v{MX}, v{MY}')
        g.i(f'v_lshrrev_b32 v{WM}, 16, v{WL_+1}')
        g.i(f'v_lshrrev_b32 v{WR}, 16, v{WM+1}')
        g.i(f'v_permlane32_swap_b32 v{MX}, v{M+1}')
        g.i(f'v_max_f32 v{MX}, v{MX}, v{M+1}')
        g.i(f'v_sub_f32 v{M}, v{M}, v{MX}')
        for r in (0, 2):
            g.i(f'v_pk_add_f32 {vr(X+r,2)}, {vr(X+r,2)}, {vr(MX,2)} op_sel_hi:[1,0] neg_lo:[0,1] neg_hi:[0,1]')
        g.i(f'v_mul_f32 v{M}, s{S_C}, v{M}')
        for r in (0, 2):
            g.i(f'v_pk_mul_f32 {vr(X+r,2)}, {vr(X+r,2)}, s[{S_C2}:{S_C2+1}]')
        g.i(f'v_exp_f32 v{M}, v{M}')
        for r in range(4):
            g.i(f'v_exp_f32 v{X+r}, v{X+r}')
        g.i(f'v_cvt_pk_bf16_f32 v{PB+4}, v{M}, 0')
        g.i(f'v_cvt_pk_bf16_f32 v{PB+2}, v{X}, v{X+1}')
        g.i(f'v_cvt_pk_bf16_f32 v{PB+3}, v{X+2}, v{X+3}')
        g.i(f'v_cvt_pk_bf16_f32 v{PB+1}, v{M}, 0')
        self.stamp('softmax done', 1)
        g.wait_vm('vx')
        DL = V_AR + 4
        D = V_STG
        g.i(f'v_mfma_f32_16x16x32_bf16 {vr(D+4,4)}, {vr(V_X0+2,4)}, {vr(PB+2,4)}, 0')
        g.i(f'v_mov_b64 {vr(ONE,2)}, s[{S_ONE}:{S_ONE+1}]')
        g.i(f'v_mov_b64 {vr(ONE+2,2)}, s[{S_ONE}:{S_ONE+1}]')
        g.i(f'v_mfma_f32_16x16x32_bf16 {vr(D,4)}, {vr(WL_,4)}, {vr(PB,4)}, 0')
        g.i(f'v_min_u32 v{V_PUB}, -2, v{WL_+1}')
        g.i(f'v_mov_b32 v{V_PUB+2}, v{WM+1}')
        g.i(f'v_mfma_f32_16x16x32_bf16 {vr(DL,4)}, {vr(ONE,4)}, {vr(PB,4)}, 0')
        g.i(f'v_mov_b64 {vr(V_ACC,2)}, 0')
        g.i(f'v_mov_b64 {vr(V_ACC+2,2)}, 0')
        g.i(f'v_mfma_f32_16x16x32_bf16 {vr(D+8,4)}, {vr(WM,4)}, {vr(PB,4)}, 0')
        O = V_AR + 8
        RL = V_AR + 2
        g.i(f'v_add_f32_dpp v{O}, v{D+4}, v{D} row_ror:8 row_mask:0xf bank_mask:0x3')
        g.i(f'v_add_f32_dpp v{O+1}, v{D+5}, v{D+1} row_ror:8 row_mask:0xf bank_mask:0x3')
        g.i(f'v_mfma_f32_16x16x32_bf16 {vr(D+12,4)}, {vr(V_X1+2,4)}, {vr(PB+2,4)}, 0')
        self.stamp('pv issued', 9)
        g.i(f'v_add_f32_dpp v{RL}, v{DL}, v{DL} row_ror:8 row_mask:0xf bank_mask:0xf')
        g.i(f'v_add_f32_dpp v{O+2}, v{D+6}, v{D+2} row_ror:8 row_mask:0xf bank_mask:0x3')
        g.i(f'v_add_f32_dpp v{O+3}, v{D+7}, v{D+3} row_ror:8 row_mask:0xf bank_mask:0x3')
        g.i(f'v_rcp_f32 v{RL}, v{RL}')
        TA, TB = V_AR + 10, V_AR + 11
        VAD = V_G2
        g.i(f'v_and_b32 v{VAD}, 0xffffffdf, v{V_L16}')
        g.i(f'v_lshrrev_b32 v{VAD+1}, 2, v{V_L16}')
        g.i(f'v_mov_b64 {vr(V_ACC+4,2)}, 0')
        g.i(f'v_mov_b64 {vr(V_ACC+6,2)}, 0')
        for r in range(4):
            g.i(f'v_add_f32_dpp v{O+r}, v{D+8+r}, v{D+12+r} row_ror:8 row_mask:0xf bank_mask:0xc')
        for r in (0, 2):
            g.i(f'v_pk_mul_f32 {vr(O+r,2)}, {vr(O+r,2)}, {vr(RL,2)} op_sel_hi:[1,0]')
        g.i(f'v_cvt_pk_bf16_f32 v{O}, v{O}, v{O+1}')
        g.i(f'v_cvt_pk_bf16_f32 v{O+1}, v{O+2}, v{O+3}')
        g.i(f'ds_write_b64 v{V_OW}, {vr(O,2)} offset:{L_M + 512*role}', tag='ow')
        self.stamp('o issued', 9)
        Z = vr(V_ACC, 4)
        zm = lambda p: g.i(f'v_mfma_f32_16x16x32_bf16 {vr(V_ACC+4+4*p,4)}, {Z}, {Z}, 0')
        zm(1)
        AL, AP = V_ACC + 20, V_ACC + 28
        SLOT = [V_STG, V_STG + 8, AL]

        order = [(0, 0), (1, 0), (0, 2), (1, 2), ('l', 0), (0, 1), ('l', 1), (1, 1), (0, 3), (1, 3),
                 (2, 0), (2, 1), (2, 2), (3, 0), (2, 3), (3, 2), (3, 1), (3, 3)]
        posts = {8: 'l', 10: 0, 11: 1, 16: 2}
        slot_of = [0, 1, 0, 1, 2, 0, 1, 2]
        after = {2: 2, 3: 3, 6: 4, 8: 5, 9: 6, 12: 7}
        npop = {8: 2, 9: 3, 10: 3, 11: 3, 16: 2}
        if self.b4:
            order = [(0, 2), (1, 2), (0, 0), (1, 0), (0, 1), (1, 1), (0, 3), (1, 3), ('l', 0), ('l', 1),
                     (2, 0), (2, 1), (2, 2), (2, 3), (3, 0), (3, 2), (3, 1), (3, 3)]
            posts = {8: 0, 9: 1, 11: 'l', 15: 2}
            slot_of = [0, 1, 0, 1, 0, 1, 2, 0]
            after = {0: 2, 1: 3, 6: 4, 7: 5, 9: 6, 12: 7}
            npop = {8: 3, 9: 3, 11: 2, 12: 2}
        suse = [(p, k) for p, k in order if p != 'l' and k >= 2]

        def ostage(f):
            p, k = suse[f]
            for y in range(2):
                def rd(y=y):
                    g.i(f'ds_read_b128 {vr(SLOT[slot_of[f]] + 4*y, 4)}, v{V_WL} '
                        f'offset:{LDS_BLOCK[("o", 1, p)] * 4096 + (2*(k & 1) + y) * 1024}', tag=('os', f))
                    issued.add((f, y))
                mq.append(rd)
        issued = set()
        ostage(0)
        ostage(1)
        pop(0, 4)
        zm(2)
        g.wait_lds('ow')
        self.stamp('o written', 1)
        g.i('s_barrier')
        self.stamp('B3', 1)
        apr = lambda k: g.i(f'ds_read_b128 {vr(AP+4*k,4)}, v{VAD} offset:{L_M + 1024*(k>>1) + 32*(k&1)}', tag=('ap', k))
        alr = lambda u: g.i(f'ds_read_b128 {vr(AL+4*u,4)}, v{V_L16} offset:{L_M + 1024*u}', tag=('al', u))
        if self.b4:
            apr(2); apr(0)
            zm(3)
            apr(1); apr(3)
        else:
            apr(0); apr(2)
            zm(3)
            alr(0); apr(1)
            mq += [lambda: alr(1), lambda: apr(3)]
        R = V_ACC + 20

        def rload(S, tg):
            for n in range(4 if role < 2 else 1):
                g.i(f'buffer_load_dwordx4 {vr(S+4*n,4)}, v{V_RED}, {WS}, s{S_RED+n} offen sc1', tag=(tg, n))

        def post(p):
            pa, OUT = V_ACC + 4 + 4 * p, V_ACC + 4 + 8 * (p >> 1)
            L = [f'v_cvt_pk_bf16_f32 v{OUT + 2*(p&1)}, v{pa}, v{pa+1}', f'v_cvt_pk_bf16_f32 v{OUT + 2*(p&1) + 1}, v{pa+2}, v{pa+3}']
            if p & 1 == 0:
                L.append(f'v_and_or_b32 v{OUT}, v{OUT}, -2, s{S_TAG}')
            else:
                L.append(lambda: g.i(f'buffer_store_dwordx4 {vr(OUT,4)}, v{V_L16}, {WS}, s{S_PST + (p >> 1)} offen {XS}',
                                     tag=('st', p >> 1)))
            return L
        self.stamp('wo start')
        g.c('---- output projection, partial sums per head')
        g.vm_q = []
        later = {}
        for j, (p, k) in enumerate(order):
            if p == 'l':
                smf(V_ACC, AL + 4 * k, ('l',), k, ('al', k))
            elif k < 2:
                smf(V_ACC + 4 + 4 * p, AP + 4 * k, ('o', 0, p), k, ('ap', k))
            else:
                f = suse.index((p, k))
                assert (f, 0) in issued and (f, 1) in issued
                g.wait_lds2(('ap', k), ('os', f))
                g.i(f'v_smfmac_f32_16x16x64_bf16 {vr(V_ACC + 4 + 4*p, 4)}, {vr(AP + 4*k, 4)}, {vr(SLOT[slot_of[f]], 8)}, v{V_IDX}')
            if j in after:
                ostage(after[j])
            self.stamp(f'w{j}', 9)
            if posts.get(j) == 'l':
                fill += half(V_ACC, TA) + [f'v_and_or_b32 v{TA}, v{TA}, -2, s{S_TAG}',
                                           lambda: g.i(f'buffer_store_dword v{TA}, v{VAD+1}, {WS}, s{S_PST+2} offen {XS}', tag=('st', 2))]
            elif j in posts:
                L = post(posts[j])
                if posts[j] == 1 and self.stag:
                    later[j + 1 + role] = L.pop()
                fill += L
            if self.b4 and j == 2:
                mq += [lambda: alr(0), lambda: alr(1)]
            pop(npop.get(j, 1), 2 if self.b4 and j < 2 else 1)
            if j in later:
                assert not fill
                later[j]()
        pop(100)
        last = post(3)
        for f in last[:2 if self.b4 else 3]:
            run(f)
        self.stamp('wo done')
        RD, SN, SEL = V_AR + 2, V_AR + 6, V_G2
        if role < 3:
            g.i(f'v_bfe_u32 v{TA}, v{V_L16}, 6, 1')
            g.i(f'v_lshlrev_b32 v{TA}, 4, v{TA}')
            g.i(f'v_mov_b32 v{TB}, 0x3f80')
            g.i(f'v_lshlrev_b32 v{TA}, v{TA}, v{TB}')
            g.i(f'v_cndmask_b32 v{SEL}, 0, v{TA}, s[{S_M1}:{S_M1+1}]')
            for d in range(1, 4):
                g.i(f's_lshl_b64 vcc, s[{S_M1}:{S_M1+1}], {d}')
                g.i(f'v_cndmask_b32 v{SEL+d}, 0, v{TA}, vcc')
            g.i(f'v_mov_b64 {vr(SN,2)}, -1')
            g.i(f's_mov_b32 s{S_TRY}, 0')

        def rstart():
            if self.dr[role] is None:
                g.wait_vm(('st', role))
            else:
                g.c('back-off: the peers\' partial sums are still on their way to L2')
                g.pad(self.dr[role])
            rload(R, 'A')
        early = self.b4 and (role == 0 or (role == 2 and self.b4 == 2))
        if self.b4:
            if early:
                rstart()
            g.i('s_barrier')
            run(last[2])
        self.advance()
        if role < 3:
            if not early:
                rstart()

            def rsum(S, tg):
                if role == 2:
                    g.wait_vm((tg, 0))
                    self.stamp('r0', 9)
                    self.stamp('r3', 9)
                    g.i(f'v_mfma_f32_16x16x32_bf16 {vr(RD,4)}, {vr(SEL,4)}, {vr(S,4)}, 0')
                    g.i(f'v_bitop3_b32 v{TA}, v{S}, v{S+1}, s{S_TAG} bitop3:0x7e')
                    g.i(f'v_bitop3_b32 v{TB}, v{S+2}, v{S+3}, s{S_TAG} bitop3:0x7e')
                else:
                    for n in range(4):
                        g.wait_vm((tg, n))
                        self.stamp(f'r{n}', 9)
                        g.i(f'v_mfma_f32_16x16x32_bf16 {vr(RD,4)}, {vr(SEL,4)}, {vr(S+4*n,4)}, {vr(RD,4) if n else 0}')
                        if n & 1:
                            g.i(f'v_bitop3_b32 v{TA + (n>>1)}, v{S+4*n-4}, v{S+4*n}, s{S_TAG} bitop3:0x7e')
                g.i(f'v_or_b32 v{TA}, v{TA}, v{TB}')
                g.i(f'v_and_b32 v{TA}, 1, v{TA}')
                g.i(f'v_cmp_ne_u32 vcc, 0, v{TA}')
            attempt(rload, rsum, [R], 98, 95)
            for rot in ((8,) if role < 2 else (8, 4, 2)):
                for r in range(4):
                    g.i(f'v_add_f32_dpp v{RD+r}, v{RD+r}, v{RD+r} row_ror:{rot} row_mask:0xf bank_mask:0xf')
            g.i(f's_mov_b64 exec, s[{S_MS}:{S_MS+1}]')
            g.i(f'v_cvt_pk_bf16_f32 v{TA}, v{RD}, v{RD+1}')
            g.i(f'v_cvt_pk_bf16_f32 v{TB}, v{RD+2}, v{RD+3}')
            g.i(f'v_min_u32 v{TA}, -2, v{TA}')
            g.i(f'buffer_store_dwordx2 {vr(TA,2)}, v{V_MST}, {WS}, s{S_MCUR} offen {XS}')
            self.stamp('m st1', 9)
            g.i(f'buffer_store_dwordx2 {vr(SN,2)}, v{V_MST}, {WS}, s{S_MRST} offen {XS}')
            g.i('s_mov_b64 exec, -1')
            if role == 0 and self.wake:
                g.i('s_wakeup')
            self.stamp('m stored')
        else:
            g.wait_vm()
            self.stamp('r0', 9)
            self.stamp('r3', 9)
            if not self.standalone:
                nr, rk = g.newlabel('nr'), g.newlabel('rk')
                g.i(f'v_readfirstlane_b32 s{S_T0}, v{V_MST}')
                g.i(f's_cmp_ge_u32 s{S_STEP}, {NSEG - 3}')
                g.i(f's_cselect_b32 s{S_RNEED}, 0, s{S_RNEED}')
                g.i(f's_cmp_lt_u32 s{S_T0}, s{S_RNEED}')
                g.i(f's_cbranch_scc1 {nr}')
                g.label(rk)

                def notready():
                    g.label(nr)
                    self.spin_ready(S_RDY, f's{S_RNEED}', bail)
                    g.i(f's_branch {rk}')
                    g.forget()
                cold.append(notready)
                g.i(f's_add_u32 s{S_RDY}, s{S_RDY}, {P1_REP}')
                g.i(f's_add_u32 s{S_PF}, s{S_PF}, 1')
                g.i(f's_cmp_eq_u32 s{S_PF}, 3')
                g.i(f's_cselect_b32 s{S_T0}, {3 * P1_REP}, 0')
                g.i(f's_cselect_b32 s{S_T1}, 1, 0')
                g.i(f's_cselect_b32 s{S_PF}, 0, s{S_PF}')
                g.i(f's_sub_u32 s{S_RDY}, s{S_RDY}, s{S_T0}')
                g.i(f's_add_u32 s{S_RNEED}, s{S_RNEED}, s{S_T1}')
            if self.wake:
                g.i(f's_sleep {self.wake}')
            self.stamp('m stored')
        self.advance2(role)
        self.dump_stamps()
        if self.only is not None:
            g.i('s_waitcnt lgkmcnt(0)')
            g.i(f's_sub_u32 s{S_T0}, s{S_ST+2}, s{S_ST}')
            g.i(f's_add_u32 s80, s80, s{S_T0}')
        if 'stat' in opt:
            sk6 = g.newlabel('s6')
            g.i(f's_cmp_lg_u32 s{S_STEP}, 6')
            g.i(f's_cbranch_scc1 {sk6}')
            g.i('s_memtime s[90:91]')
            g.i('s_memrealtime s[88:89]')
            for k in (80, 93, 94, 95):
                g.i(f's_mov_b32 s{k}, 0')
            g.i('s_waitcnt lgkmcnt(0)')
            g.label(sk6)
        g.i(f's_cmp_lt_u32 s{S_STEP}, {NSEG-1}')
        g.settle()
        g.i(f's_cbranch_scc1 {top}')
        names = self.names
        self.at_final()
        self.loop(bail, done, role, slow, True)
        self.names = names
        for f in cold:
            f()
```

```python
OFF_XN   = 0x0000000
OFF_KX   = 0x0400000
OFF_VX   = 0x1400000
OFF_QX   = 0x2400000
OFF_H    = 0x3400000
OFF_O    = 0x4800000
OFF_G    = 0x5800000
OFF_KM   = 0x6000000
OFF_VM   = 0x6800000
OFF_PART = 0x6C00000
OFF_MB   = 0x6E00000
OFF_SYNC = 0x6E20000
OFF_FLAG = 0x6F00000
OFF_DIAG = 0x7000000
WS_BYTES = 268435456
NSEG = 64

def colmap(t, k):
    ga, hh, x1, sg, x0 = k >> 4, (k >> 3) & 1, (k >> 2) & 1, (k >> 1) & 1, k & 1
    if t == 4:
        return 512 + 16 * ga + 8 * sg + 4 * hh + 2 * x1 + x0
    q, w = (0, t) if t < 4 else (1, t - 5)
    return 256 * q + 128 * x1 + 32 * w + 16 * x0 + 4 * ga + 2 * sg + hh

assert sorted(colmap(t, k) for t in range(9) for k in range(64)) == list(range(576))
DBG_XCC = 0
DBG_PICK = 64
DBG_LN = 64
DBG_LNOK = 224
DBG_INIT = 192
FL_O = 0
FL_KM = 28672
FL_P1 = 16384
P1_REP = 16384
FL_BYTES = 65536
N_LN = 64
N_REP = 8
DBG_TICKET = [128, 96, 0, 16, 32, 48, 80, 112]
Q2 = 42
LIGHT_XCC = 2
CHAIN_XCC = 3
SEG_DIRECT = 60
TILE_REP = [t % 8 for t in range(62)]
REP_MASK = [sum(1 << t for t, r in enumerate(TILE_REP) if r == k) for k in range(8)]
REP_HALF = {6: (62, 0), 7: (62, 1), 0: (63, 0), 1: (63, 1)}
```

```python
import sys
from asmgen import *
from layout import *
import chain as C
import bulk as B

NAME = 'recurrent_scan__memory_aug_recurrent_mem_tr__dense_activation_silu__prompt'


def dispatch(g, l_chain, l_bulk, force_slow, LIGHT_XCC=LIGHT_XCC, pre=0):
    S_W, S_H, T0, T1, DBG, XCC = C.S_W, C.S_H, C.S_T0, C.S_T1, C.S_DBG, C.S_XCC
    g.i('v_lshrrev_b32 v1, 6, v0')
    g.i('v_and_b32 v0, 63, v0')
    g.i(f'v_readfirstlane_b32 s{S_W}, v1')
    g.i(f's_getreg_b32 s{XCC}, hwreg(HW_REG_XCC_ID, 0, 4)')
    rd, tb, tc, wr = [g.newlabel('el') for _ in range(4)]
    g.i(f'v_mov_b32 v2, {C.L_EL}')
    g.i(f's_cmp_lg_u32 s{S_W}, 0')
    g.i(f's_cbranch_scc1 {tc if pre else rd}')
    g.i('s_mov_b64 exec, 1')
    g.i('v_mov_b32 v4, 1')

    CLS, CNT = 16, 17
    pref = [2, 3, 0, 0, 4, 5, 6, 7]
    pref[LIGHT_XCC], pref[CHAIN_XCC] = 1, 0
    g.i(f's_mov_b32 s{T1}, {sum(p << (4*x) for x, p in enumerate(pref)):#x}')
    g.i(f's_and_b32 s{T0}, s{XCC}, 7')
    if force_slow:
        g.i(f's_lshr_b32 s{T0}, s2, 5')
    g.i(f's_lshl_b32 s{T0}, s{T0}, 2')
    g.i(f's_lshr_b32 s{CLS}, s{T1}, s{T0}')
    g.i(f's_and_b32 s{CLS}, s{CLS}, 7')
    if force_slow:
        g.i(f's_max_u32 s{CLS}, s{CLS}, 1')
    g.i(f's_mov_b32 s{CNT}, 8')
    g.i(f's_mov_b32 s18, {sum(o << (8*x) for x, o in enumerate(DBG_TICKET[:4])):#x}')
    g.i(f's_mov_b32 s19, {sum(o << (8*x) for x, o in enumerate(DBG_TICKET[4:])):#x}')
    g.label(tb)
    g.i(f's_lshl_b32 s{T0}, s{CLS}, 3')
    g.i(f's_lshr_b64 s[20:21], s[18:19], s{T0}')
    g.i(f's_and_b32 s{T0}, s20, 255')
    g.i(f'v_mov_b32 v3, s{T0}')
    g.i(f'global_atomic_add v5, v3, v4, s[{DBG}:{DBG+1}] sc0')
    g.wait_vm()
    g.i(f'v_readfirstlane_b32 s{T0}, v5')
    g.i(f's_lshl_b32 s{S_H}, s{CLS}, 5')
    g.i(f's_add_u32 s{S_H}, s{S_H}, s{T0}')
    g.i(f's_cmp_lt_u32 s{T0}, 32')
    g.i(f's_cbranch_scc1 {wr}')
    g.i(f's_mov_b32 s{S_H}, 256')
    g.i(f's_sub_u32 s{CNT}, s{CNT}, 1')
    g.i(f's_mov_b32 s{CLS}, s{CNT}')
    g.i(f's_cmp_ge_i32 s{CNT}, 0')
    g.i(f's_cbranch_scc1 {tb}')
    g.label(wr)
    g.i(f'v_mov_b32 v5, s{S_H}')
    g.i('ds_write_b32 v2, v5')
    g.i('s_mov_b64 exec, -1')
    g.wait_lds()
    if pre:
        g.i(f's_branch {rd}')
        g.label(tc)
        g.i(f's_cmp_lg_u32 s{XCC}, {CHAIN_XCC}')
        g.i(f's_cbranch_scc1 {rd}')
        g.i(f's_mov_b32 s8, s{C.S_PTR+2}')
        g.i(f's_mov_b32 s9, s{C.S_PTR+3}')
        g.i('s_mov_b32 s10, 4718592')
        g.i('s_mov_b32 s11, 0x20000')
        g.i('v_lshrrev_b32 v6, 1, v0')
        g.i('v_lshlrev_b32 v6, 13, v6')
        g.i('v_and_b32 v7, 1, v0')
        g.i('v_lshl_add_u32 v6, v7, 7, v6')
        g.i(f's_bfe_u32 s{T0}, s2, 0x50003')
        g.i(f's_lshl_b32 s{T0}, s{T0}, 8')
        g.i(f's_sub_u32 s{T1}, s{S_W}, 1')
        g.i(f's_lshl_b32 s{T1}, s{T1}, 18')
        g.i(f's_add_u32 s{T0}, s{T0}, s{T1}')
        g.pad(32)
        for n in range(pre):
            g.i(f'buffer_load_dword v60, v6, s[8:11], s{T0} offen')
            g.i(f's_add_u32 s{T0}, s{T0}, {128 * 8192}')
    g.label(rd)
    g.i('s_barrier')
    g.i('ds_read_b32 v5, v2')
    g.wait_lds()
    g.i(f'v_readfirstlane_b32 s{S_H}, v5')
    g.i('s_barrier')
    g.i(f's_cmp_lt_u32 s{S_H}, 32')
    g.i(f's_cbranch_scc1 {l_chain}')
    g.i(f's_cmp_ge_u32 s{S_H}, 256')
    g.i(f's_cbranch_scc1 fin0')
    g.i(f's_sub_u32 s{S_H}, s{S_H}, 32')


def build(out, diag=0, force_slow=False, prof=False, header='', bopt=(), early=1, asleep=8, **kw):
    g = Gen()
    name = NAME + '_kernel'
    g.raw(header + f'; @launch grid=(256,1,1) block=(256,1,1) lds={C.LDS_BYTES}')
    g.raw('; ---------------------------------------------------------------------------------------------------------------\n; ---------------------------------------------------------------------------------------------------------------')
    g.raw('.amdgcn_target "amdgcn-amd-amdhsa--gfx950"')
    g.raw('.text'); g.raw(f'.globl {name}'); g.raw('.p2align 8'); g.raw(f'.type {name},@function')
    g.label(name)
    g.i('s_cmp_ge_u32 s2, 256')
    g.i('s_cbranch_scc1 fin0')
    nprof = [0]

    def stamp():
        if prof:
            g.i('s_memrealtime s[100:101]')
            g.i('s_waitcnt lgkmcnt(0)')
            g.i(f's_mov_b32 s{88 + nprof[0]}, s100')
            nprof[0] += 1

    def dump(base):
        if prof:
            for k in range(8):
                g.i(f'v_writelane_b32 v14, s{88 + k}, {k}')
            g.i(f's_lshl_b32 s42, s{C.S_H}, 2')
            g.i(f's_add_u32 s42, s42, s{C.S_W}')
            g.i(f's_lshl_b32 s42, s42, 5')
            g.i(f's_add_u32 s42, s42, {OFF_DIAG + 0x200000 + base}')
            g.i('v_mbcnt_lo_u32_b32 v15, -1, 0')
            g.i('v_lshlrev_b32 v15, 2, v15')
            g.i('s_mov_b64 exec, 0xff')
            g.i(f'buffer_store_dword v14, v15, s[4:7], s42 offen')
            if prof == 2:
                g.i('s_not_b32 s88, s88')
                g.i('v_writelane_b32 v14, s88, 0')
                g.i(f'v_add_u32 v15, {4 if base == 0 else 28}, v15')
                g.i(f's_mov_b64 exec, {0x1f if base == 0 else 0xfe}')
                g.i(f'global_atomic_umax v15, v14, s[{C.S_DBG}:{C.S_DBG+1}]')
    g.i(f's_load_dwordx2 s[{B.P_X}:{B.P_X+1}], s[0:1], 0')
    g.i(f's_load_dwordx2 s[{C.S_PTR}:{C.S_PTR+1}], s[0:1], 8')
    g.i(f's_load_dwordx2 s[{C.S_PTR+2}:{C.S_PTR+3}], s[0:1], 16')
    g.i(f's_load_dwordx4 s[{C.S_PTR+4}:{C.S_PTR+7}], s[0:1], 24')
    g.i(f's_load_dwordx2 s[{C.S_PTR+8}:{C.S_PTR+9}], s[0:1], 40')
    g.i(f's_load_dwordx2 s[{B.P_W1}:{B.P_W1+1}], s[0:1], 64')
    g.i(f's_load_dwordx4 s[{B.P_W2}:{B.P_W2+3}], s[0:1], 72')
    g.i(f's_load_dwordx2 s[{C.S_DBG}:{C.S_DBG+1}], s[0:1], 88')
    g.i(f's_load_dwordx2 s[{C.S_WS}:{C.S_WS+1}], s[0:1], 96')
    if prof:
        for k in range(8):
            g.i(f's_mov_b32 s{88+k}, 0')
    stamp()
    g.i('s_waitcnt lgkmcnt(0)')
    g.i(f's_mov_b32 s{C.S_WS+2}, {WS_BYTES}')
    g.i(f's_mov_b32 s{C.S_WS+3}, 0x20000')
    dispatch(g, 'chain_far', 'bulk', force_slow, kw.pop('lx', LIGHT_XCC), kw.pop('dpre', 2))
    g.i('s_branch bulk')
    g.label('chain_far')
    g.i('s_branch chain')
    g.label('fin0')
    g.i('s_endpgm')
    g.forget()
    g.c('======== chain workgroup: weights of one head into registers and LDS')
    g.label('chain')
    stamp()
    ch = C.Chain(g, diag=diag, standalone=False, opt=kw.pop('opt', ()))
    for k_, v_ in kw.items():
        setattr(ch, k_, v_)
    if prof:
        g.i('s_getreg_b32 s94, hwreg(HW_REG_HW_ID)')
    ch.prologue()
    stamp()
    ch.after_wait = stamp

    def at(k):
        def f():
            if prof:
                g.i('s_memrealtime s[100:101]')
                g.i('s_waitcnt lgkmcnt(0)')
                g.i(f's_mov_b32 s{88 + k}, s100')
        return f
    ch.at_final = at(5)
    ch.start('fin1', 'done')
    g.label('done')
    if 'nowb' not in bopt:
        g.i(f's_or_b32 s42, s{C.S_H}, s{C.S_W}')
        g.i('s_cbranch_scc1 done3')
        g.i('s_waitcnt vmcnt(0)')
        g.i('buffer_wbl2 sc1')
        g.label('done3')
    stamp()
    dump(0)
    g.label('fin1')
    g.i('s_endpgm')
    g.forget()
    g.label('bulk')
    nprof[0] = 1
    stamp()
    b = B.Bulk(g, 'fin2', bopt)
    b.early = early
    b.asleep = asleep
    b.setup()
    b.decode()
    g.i(f's_cmp_ge_u32 s{B.S_LN}, {N_LN}')
    g.i('s_cbranch_scc1 proj')
    g.c('======== layer norm')
    b.layernorm()
    stamp()
    g.i(f's_cmp_lt_u32 s{B.S_RANK}, 32')
    g.i('s_cbranch_scc1 bend')
    g.c('======== K / V / Q / H projections')
    g.label('proj')
    nprof[0] = 2
    b.stamp = stamp
    b.at = at
    b.project()
    stamp()
    g.i(f's_cmp_ge_u32 s{B.S_I}, 30')
    g.i('s_cbranch_scc1 bend')
    g.i(f's_cmp_lt_u32 s{B.S_I}, 6')
    g.i('s_cbranch_scc1 attn')
    g.c('======== gate = silu(H w2)')
    b.stream_gemm(True)
    stamp()
    g.c('======== out = x + (O Wo) * gate')
    b.stream_gemm(False)
    stamp()
    g.i('s_branch bend')
    g.label('fin2')
    g.i('s_endpgm')
    g.forget()
    g.c('======== attention of the segment rows')
    g.label('attn')
    b.attention('bend')
    nprof[0] = 7
    stamp()
    g.label('bend')
    dump(4096)
    g.i('s_endpgm')
    g.raw(f'''.section .rodata,"a"
.p2align 6
.amdhsa_kernel {name}
  .amdhsa_next_free_vgpr 512
  .amdhsa_next_free_sgpr 102
  .amdhsa_accum_offset 256
  .amdhsa_group_segment_fixed_size 0
  .amdhsa_kernarg_size 104
  .amdhsa_user_sgpr_count 2
  .amdhsa_user_sgpr_kernarg_segment_ptr 1
  .amdhsa_system_sgpr_workgroup_id_x 1
.end_amdhsa_kernel''')
    open(out, 'w').write(g.text())
    if diag:
        open(out[:-2] + '_names.txt', 'w').write('\n'.join(ch.names))
    print(out, 'nops', g.nops, 'lines', len(g.lines), 'bytes', len(g.text()))


if __name__ == '__main__':
    ref = open(f'cdna_kernels/{NAME}.s.ref').read()
    header = ref[:ref.index('; @launch')]
    best = dict(dm=[10, 0, 10, 10], dq=24, wake=10, dr=[50, None, None], late=1, bp=1, io=16, wfl='nt')
    build(f'cdna_kernels/{NAME}.s', header=header, **best)
    build('full_prof.s', prof=True, **best)
    build('full_slow.s', prof=True, force_slow=True, **best)
    build('full_diag.s', prof=True, diag=4, **best)
    build('full_h.s', prof=2, header=header, **best)
    import json
    for i, kw in enumerate(json.load(open('fvariants.json'))):
        build(f'fv{i}.s', prof=True, **dict(best, **kw))
    for i, kw in enumerate(json.load(open('hvariants.json'))):
        build(f'hv{i}.s', header=header, **dict(best, **kw))
```
